```python
import torch

def _softmax(x, axis=-1):
    return torch.softmax(x, dim=axis)

def _gelu(x):
    return torch.nn.functional.gelu(x, approximate='tanh')

def _silu(x):
    return torch.nn.functional.silu(x)

def _sigmoid(x):
    return torch.sigmoid(x)

def _layernorm(x, axis=-1, eps=1e-05):
    m = x.mean(dim=axis, keepdim=True)
    v = x.var(dim=axis, keepdim=True, unbiased=False)
    return (x - m) / torch.sqrt(v + eps)

def _scatter_add(tgt, idx, src, axis=0):
    return tgt.clone().index_add_(axis, idx, src)

def _segment_sum(src, seg, n):
    out = torch.zeros((n,) + src.shape[1:], dtype=src.dtype)
    return out.index_add_(0, seg, src)

def _pad(x, pw):
    flat = tuple((v for pair in reversed(pw) for v in pair))
    return torch.nn.functional.pad(x, flat)
kernel_name = 'gated_mix__memory_aug_recurrent_mem_tr__moe_arch_mod__prompt'

def setup_inputs():

    _w = lambda a: (lambda t: t.to(torch.bfloat16) if t.is_floating_point() else t)(torch.as_tensor(a))

    def _A_setup():
        B, S, Dm = (1, 2048, 448)
        H, Dh = (16, 256)
        M, seg = (8, 32)
        seg = min(seg, S)
        S = S // seg * seg
        return {'x': _w((lambda *s: torch.randn(*s, dtype=torch.bfloat16) * 0.05)(B, S, Dm)), 'mem0': _w((lambda *s: torch.randn(*s, dtype=torch.bfloat16) * 0.8)(B, M, Dm)), 'Wq': _w((lambda *s: torch.randn(*s, dtype=torch.bfloat16) * 1.6)(Dm, H, Dh) * Dm ** (-0.5)), 'Wk': _w((lambda *s: torch.randn(*s, dtype=torch.bfloat16) * 1.6)(Dm, H, Dh) * Dm ** (-0.5)), 'Wv': _w((lambda *s: torch.randn(*s, dtype=torch.bfloat16) * 0.8)(Dm, H, Dh) * Dm ** (-0.5)), 'Wo': _w((lambda *s: torch.randn(*s, dtype=torch.bfloat16) * 0.8)(H, Dh, Dm) * (H * Dh) ** (-0.5)), 'seg_len': seg}
    _A_in = _A_setup()

    def _B_setup():
        B, S, D, F, C = (1, 2048, 448, 1792, 1)
        return {'x': _w((lambda *s: torch.randn(*s, dtype=torch.bfloat16) * 0.05)(B, S, D)), 'w_r': _w((lambda *s: torch.randn(*s, dtype=torch.bfloat16) * 1.6)(D)), 'w_gate': _w((lambda *s: torch.randn(*s, dtype=torch.bfloat16) * 0.2)(D, F)), 'w_up': _w((lambda *s: torch.randn(*s, dtype=torch.bfloat16) * 0.2)(D, F)), 'w_down': _w((lambda *s: torch.randn(*s, dtype=torch.bfloat16) * 0.2)(F, D))}
    _B_in = _B_setup()
    return {'A_x': _A_in['x'], 'A_mem0': _A_in['mem0'], 'A_Wq': _A_in['Wq'], 'A_Wk': _A_in['Wk'], 'A_Wv': _A_in['Wv'], 'A_Wo': _A_in['Wo'], 'A_seg_len': _A_in['seg_len'], 'B_x': _B_in['x'], 'B_w_r': _B_in['w_r'], 'B_w_gate': _B_in['w_gate'], 'B_w_up': _B_in['w_up'], 'B_w_down': _B_in['w_down'], 'gate_w': _w((lambda *s: torch.randn(*s, dtype=torch.bfloat16) * 0.05)(448) * 16.0)}

def reference(A_x, A_mem0, A_Wq, A_Wk, A_Wv, A_Wo, A_seg_len, B_x, B_w_r, B_w_gate, B_w_up, B_w_down, gate_w):

    def _A_ref(x, mem0, Wq, Wk, Wv, Wo, seg_len):
        B, S, Dm = x.shape
        H, Dh = (Wq.shape[1], Wq.shape[2])
        M = mem0.shape[1]
        scale = Dh ** (-0.5)
        n_seg = S // seg_len
        L = M + seg_len
        idx = torch.arange(L)
        mask = (idx[:, None] < M) | (idx[:, None] >= idx[None, :])
        mem = mem0
        outs = []
        for s in range(n_seg):
            xs = x[:, s * seg_len:(s + 1) * seg_len, :].clone()
            h = torch.concatenate([mem, xs], axis=1)
            q = torch.einsum('btd,dhe->bhte', h, Wq)
            k = torch.einsum('btd,dhe->bhte', h, Wk)
            v = torch.einsum('btd,dhe->bhte', h, Wv)
            scores = torch.einsum('bhqe,bhke->bhqk', q, k) * scale
            scores = torch.where(mask[None, None], scores, -1000000000.0)
            p = _softmax(scores, axis=-1)
            o = torch.einsum('bhqk,bhke->bhqe', p, v)
            o = torch.einsum('bhte,hed->btd', o, Wo)
            mem = o[:, :M, :].clone()
            outs.append(o[:, M:, :])
        return torch.concatenate(outs, axis=1)

    def _B_ref(x, w_r, w_gate, w_up, w_down):
        B, S, D = x.shape
        C = 1
        r = x @ w_r
        idx = torch.argsort(-r, axis=-1)[:, :C]
        idx_e = (lambda x, n, axis: torch.repeat_interleave(x, n, dim=axis))(idx.reshape(B, C, 1), D, axis=2)
        x_sel = (lambda x, i, axis: torch.take_along_dim(x, i, dim=axis))(x, idx_e, axis=1)
        g = _silu(x_sel @ w_gate)
        u = x_sel @ w_up
        y = g * u @ w_down
        r_sel = _sigmoid((lambda x, i, axis: torch.take_along_dim(x, i, dim=axis))(r, idx, axis=1))
        y = y * r_sel.reshape(B, C, 1)
        b_off = (torch.arange(B) * S).reshape(B, 1)
        flat_idx = (idx + b_off).reshape(B * C)
        zero = (x * 0.0).reshape(B * S, D)
        upd = _scatter_add(zero, flat_idx, y.reshape(B * C, D), axis=0)
        return x + upd.reshape(B, S, D)
    x = A_x
    g = _sigmoid((x * gate_w).sum(-1, keepdims=True))
    a = _A_ref(x, A_mem0, A_Wq, A_Wk, A_Wv, A_Wo, A_seg_len)
    b = _B_ref(x, B_w_r, B_w_gate, B_w_up, B_w_down)
    return g * a + (1 - g) * b
```

```python
import re

TRANS = ("v_exp_f32", "v_log_f32", "v_rcp_f32", "v_rsq_f32", "v_sqrt_f32", "v_sin_f32", "v_cos_f32", "v_rcp_iflag_f32")
REG_RE = re.compile(r"^(-|abs\()?([vas])(\d+|\[(\d+):(\d+)\])\)?$")


def regs_of(tok):
    tok = tok.strip()
    if tok in ("vcc", "exec", "m0", "scc"):
        return {("x", tok)}
    if tok in ("vcc_lo", "vcc_hi"):
        return {("x", "vcc")}
    if tok in ("exec_lo", "exec_hi"):
        return {("x", "exec")}
    m = REG_RE.match(tok)
    if not m:
        return set()
    k = m.group(2)
    if m.group(4) is not None:
        return {(k, i) for i in range(int(m.group(4)), int(m.group(5)) + 1)}
    return {(k, int(m.group(3)))}


def split_ops(s):
    out, depth, cur = [], 0, ""
    for ch in s:
        if ch in "[(":
            depth += 1
        if ch in "])":
            depth -= 1
        if ch == "," and depth == 0:
            out.append(cur.strip()); cur = ""
        else:
            cur += ch
    if cur.strip():
        out.append(cur.strip())
    return out


class Ins:
    __slots__ = ("text", "mn", "cls", "rd", "wr", "passes", "srcC", "ab", "dpp", "states", "wide_store", "lanesel")


def mfma_passes(mn):
    if "32x32" in mn:
        return 8
    return 4


def parse(text):
    t = text.split(";")[0].strip()
    parts = t.split(None, 1)
    mn = parts[0]
    rest = parts[1] if len(parts) > 1 else ""
    ops = split_ops(rest)
    mods = ""
    if ops:
        sp = ops[-1].split(None, 1)
        if len(sp) > 1 and not ops[-1].startswith("hwreg"):
            ops[-1] = sp[0]; mods = sp[1]
    I = Ins(); I.text = text; I.mn = mn; I.rd = set(); I.wr = set(); I.passes = 0; I.srcC = set(); I.ab = set()
    I.dpp = ("_dpp" in mn) or ("quad_perm" in mods) or ("row_" in mods); I.states = 1; I.wide_store = set(); I.lanesel = set()
    R = [regs_of(o) for o in ops]
    if mn.startswith("v_smfmac"):
        I.cls = "mfma"; I.states = 2; I.passes = mfma_passes(mn); I.wr = R[0]; I.srcC = R[0]; I.ab = R[1] | R[2] | R[3]; I.rd = R[0] | I.ab
    elif mn.startswith("v_mfma"):
        I.cls = "mfma"; I.states = 2; I.passes = mfma_passes(mn); I.wr = R[0]; I.srcC = R[3]; I.ab = R[1] | R[2]; I.rd = R[3] | I.ab
    elif mn.startswith("ds_"):
        I.cls = "ds"
        if mn.startswith("ds_read") or mn.startswith("ds_bpermute") or mn.startswith("ds_permute") or mn.startswith("ds_swizzle"):
            I.wr = R[0]; I.rd = set().union(*R[1:]) if len(R) > 1 else set()
        else:
            I.rd = set().union(*R)
    elif mn.startswith("buffer_") or mn.startswith("global_"):
        I.cls = "vmem"
        islds = " lds" in (" " + mods) or mn.startswith("global_load_lds")
        if "load" in mn and not islds:
            I.wr = R[0]; I.rd = set().union(*R[1:])
        elif "atomic" in mn:
            I.rd = set().union(*R)
            if "sc0" in mods:
                I.wr = R[0]
        else:
            I.rd = set().union(*R) if R else set()
            if islds:
                I.rd |= {("x", "m0")}
            if "store" in mn and ("x3" in mn or "x4" in mn):
                I.wide_store = R[0] if mn.startswith("buffer_") else R[1]
    elif mn.startswith("v_"):
        I.cls = "trans" if any(mn.startswith(x) for x in TRANS) else "valu"
        if mn.startswith("v_cmp"):
            I.wr = R[0]; I.rd = set().union(*R[1:])
            if mn.startswith("v_cmpx"):
                I.wr |= {("x", "exec")}
        elif mn.startswith("v_permlane") and "swap" in mn:
            I.wr = R[0] | R[1]; I.rd = R[0] | R[1]; I.cls = "permlane"
        elif mn.startswith("v_swap"):
            I.wr = R[0] | R[1]; I.rd = R[0] | R[1]
        elif mn.startswith("v_readfirstlane") or mn.startswith("v_readlane"):
            I.wr = R[0]; I.rd = set().union(*R[1:]); I.cls = "readlane"
            if len(R) > 2:
                I.lanesel = R[2]
        elif mn.startswith("v_writelane"):
            I.wr = R[0]; I.rd = set().union(*R); I.lanesel = R[2]
        elif mn.startswith("v_add_co") or mn.startswith("v_sub_co") or mn.startswith("v_addc_co") or mn.startswith("v_subb_co"):
            I.wr = R[0] | R[1]; I.rd = set().union(*R[2:])
        elif mn.startswith("v_nop"):
            pass
        else:
            I.wr = R[0]; I.rd = set().union(*R[1:]) if len(R) > 1 else set()
            if mn.startswith("v_fmac") or mn.startswith("v_dot2c") or mn.startswith("v_pk_fmac") or I.dpp:
                I.rd |= R[0]
            if mn.startswith("v_dot"):
                I.ab = R[1] | R[2]
            if mn.startswith("v_cndmask") and len(ops) == 3:
                I.rd |= {("x", "vcc")}
    elif mn.startswith("s_"):
        I.cls = "salu"
        if mn == "s_nop":
            I.states = int(ops[0], 0) + 1
        elif mn.startswith(("s_cmp", "s_bitcmp")):
            I.rd = set().union(*R); I.wr = {("x", "scc")}
        elif mn.startswith(("s_waitcnt", "s_barrier", "s_branch", "s_cbranch", "s_sleep", "s_setprio", "s_endpgm", "s_sethalt")):
            pass
        elif mn.startswith(("s_load", "s_memtime", "s_memrealtime", "s_buffer_load")):
            I.cls = "smem"; I.wr = R[0]; I.rd = set().union(*R[1:]) if len(R) > 1 else set()
        else:
            I.wr = R[0] if R else set(); I.rd = set().union(*R[1:]) if len(R) > 1 else set()
            if "saveexec" in mn:
                I.wr |= {("x", "exec")}
    else:
        raise ValueError("unknown instruction: " + text)
    return I


def isv(r):
    return r[0] in ("v", "a")


def need(prod, cons):
    n = 0
    pv = prod.cls in ("valu", "trans", "permlane", "readlane")
    cv = cons.cls in ("valu", "trans", "permlane", "readlane")
    if pv:
        wv = {r for r in prod.wr if isv(r)}
        ws = {r for r in prod.wr if not isv(r)}
        if cons.cls == "mfma" and wv & cons.rd:
            n = max(n, 2)
        if cv and cons.dpp and wv & cons.rd:
            n = max(n, 2)
        if cons.cls == "permlane" and wv & cons.rd:
            n = max(n, 2)
        if cons.cls == "readlane" and wv & cons.rd:
            n = max(n, 1)
        if prod.mn.startswith("v_dot"):
            if cons.mn != prod.mn and wv & (cons.rd | cons.wr):
                n = max(n, 3)
            elif cons.mn == prod.mn and wv & cons.ab:
                n = max(n, 3)
        if prod.cls == "trans" and cv and cons.cls != "trans" and wv & cons.rd:
            n = max(n, 1)
        if prod.cls == "trans" and cons.cls == "trans" and wv & cons.rd:
            n = max(n, 1)
        if ws:
            if cv and ws & cons.rd:
                n = max(n, 2)
            if cv and ws & cons.lanesel:
                n = max(n, 4)
            if cons.cls == "vmem" and ws & cons.rd:
                n = max(n, 5)
            if cons.cls in ("salu", "smem") and ws & cons.rd:
                n = max(n, 1)
            if ("x", "exec") in ws:
                if cons.cls == "mfma" or cons.cls in ("readlane", "permlane"):
                    n = max(n, 4)
                if cons.dpp:
                    n = max(n, 5)
    if prod.cls == "mfma":
        P = prod.passes
        big = {2: 5, 4: 8, 8: 12, 16: 20}[P]
        ovl = {2: 4, 4: 6, 8: 10, 16: 18}[P]
        war = {2: 1, 4: 3, 8: 7, 16: 15}[P]
        if cons.cls == "mfma":
            if prod.wr & cons.ab:
                n = max(n, big)
            if prod.wr & cons.srcC:
                if not (prod.wr == cons.srcC and prod.passes == cons.passes):
                    n = max(n, ovl)
            elif prod.wr & cons.wr:
                n = max(n, ovl)
        else:
            if prod.wr & (cons.rd | cons.wr):
                n = max(n, big)
            if (cv or cons.cls in ("ds", "vmem")) and prod.srcC & cons.wr:
                n = max(n, war)
    if prod.wide_store:
        if prod.wide_store & cons.wr:
            n = max(n, 2)
    if prod.cls == "salu" and ("x", "m0") in prod.wr and ("x", "m0") in cons.rd and cons.cls == "vmem":
        n = max(n, 1)
    return n


class Asm:
    def __init__(self):
        self.lines = []
        self.hist = []
        self.pads = 0
        self.padlog = []
        self.uid = 0

    def raw(self, text):
        self.lines.append(text)

    def c(self, text):
        self.lines.append("    ; " + text)

    def label(self, name):
        self.lines.append(name + ":")

    def newlabel(self, base="L"):
        self.uid += 1
        return f"{base}_{self.uid}"

    def __call__(self, text):
        for t in text.strip().split("\n"):
            t = t.strip()
            if not t or t.startswith(";"):
                continue
            if t.endswith(":"):
                self.label(t[:-1]); continue
            self.ins(t)

    def ins(self, text):
        if text.startswith("buffer_load") and "s[16:19]" in text and " sc1" not in text:
            text = text.replace(" lds", " sc1 lds") if text.endswith(" lds") else text + " sc1"
        I = parse(text)
        dist = 0
        pad = 0
        for P in reversed(self.hist):
            if dist >= 20:
                break
            n = need(P, I)
            if n > dist:
                pad = max(pad, n - dist)
            dist += P.states
        if pad:
            self.pads += pad
            self.padlog.append((len(self.lines), pad, text))
            while pad > 0:
                k = min(pad, 16)
                self._emit(parse(f"s_nop {k-1}"), auto=True)
                pad -= k
        self._emit(I)

    def _emit(self, I, auto=False):
        self.lines.append("    " + I.text + ("    ; auto-pad" if auto else ""))
        self.hist.append(I)
        if len(self.hist) > 40:
            self.hist = self.hist[-40:]

    def flush(self, n=12):
        self.ins(f"s_nop {n-1}")

    def text(self):
        return "\n".join(self.lines) + "\n"


def vr(base, n=1):
    return f"v{base}" if n == 1 else f"v[{base}:{base+n-1}]"


def ar(base, n=1):
    return f"a{base}" if n == 1 else f"a[{base}:{base+n-1}]"


def sr(base, n=1):
    return f"s{base}" if n == 1 else f"s[{base}:{base+n-1}]"
```

```python
from asmlib import *
from layout import *

S_X, S_OUT, S_DBG, S_WS = 4, 8, 10, 12
SRD_WS, SRD_X, SRD_DBG = 16, 20, 24
S_WAVE, S_ROLE, S_FB, S_LIM, S_CNT, S_STEP = 28, 29, 30, 31, 32, 33
S_K = 34
S_T0, S_T1, S_T2, S_T3 = 41, 42, 43, 44
S_MEMOFF, S_PSOFF = 45, 46
S_XO = 47
S_SLP, S_SL2 = 48, 49
S_RDY, S_MN = 56, 57
S_XB = 58
S_STP = 60
S_CNTS = 64
S_STB = 87
SPIN_LIMIT = 200000
OPT = dict(sleepT=0, sleepV=0, nox=0, sleepVm=1, memtime=0, novx=0, lat=0, nowarm=0, lead=3, wide=0, adapt=0, nomn=1, vdelay=0, lo=1, hi=2)
WS = f"s[{SRD_WS}:{SRD_WS+3}]"
XS = f"s[{SRD_X}:{SRD_X+3}]"
OOB = 0x7FFFFFF0

T_TR, T_PART = 8192, 16384
V_PART, V_WL = 8192, 16384
NWL = 12

V_IDX, V_FA, V_TMP = 1, 2, 19
MF, ACC = 20, 48
LN, G4, L15 = 40, 41, 42


def common_setup(a):
    a(f"""
    v_and_b32 v{LN}, 63, v0
    v_lshrrev_b32 v{G4}, 4, v{LN}
    v_and_b32 v{L15}, 15, v{LN}
    v_and_b32 v20, 1, v0
    v_cmp_eq_u32 vcc, 0, v20
    v_mov_b32 v20, 0xEEEE
    v_mov_b32 v21, 0x4444
    v_cndmask_b32 v{V_IDX}, v20, v21, vcc
    s_lshl_b32 s{S_T0}, s{S_WAVE}, 1
    """)
    for u in range(7):
        a(f"""
        s_add_u32 s{S_T1}, s{S_T0}, {u}
        s_sub_u32 s{S_T2}, s{S_T1}, 7
        s_cmp_ge_u32 s{S_T1}, 7
        s_cselect_b32 s{S_K+u}, s{S_T2}, s{S_T1}
        s_lshl_b32 s{S_T1}, s{S_K+u}, 10
        v_lshl_add_u32 v{V_FA+u}, v{LN}, 4, s{S_T1}
        """)
    a(f"s_mov_b32 s{S_LIM}, {SPIN_LIMIT}")
    a(f"s_mov_b32 s{S_STEP}, 0")
    a(f"s_mov_b32 s{S_MEMOFF}, {MEMS_OFF}")
    a(f"s_mov_b32 s{S_PSOFF}, {PS_OFF}")


def poll(a, loads, regs, depth2=True, sleep=0):
    n = len(loads)
    top, done = a.newlabel("poll"), a.newlabel("polled")
    a(f"s_mov_b32 s{S_CNT}, s{S_LIM}")
    if depth2:
        for l in loads:
            a(l)
    a.label(top)
    for l in loads:
        a(l)
    a(f"s_waitcnt vmcnt({n if depth2 else 0})")
    r = list(regs)
    a(f"v_max3_u32 v{V_TMP}, v{r[0]}, v{r[1]}, v{r[2]}")
    r = r[3:]
    while len(r) >= 2:
        a(f"v_max3_u32 v{V_TMP}, v{V_TMP}, v{r[0]}, v{r[1]}"); r = r[2:]
    if r:
        a(f"v_max_u32 v{V_TMP}, v{V_TMP}, v{r[0]}")
    a(f"v_cmp_eq_u32 vcc, -1, v{V_TMP}")
    a(f"s_cbranch_vccz {done}")
    if sleep:
        a(f"s_sleep {sleep}")
    a(f"""
    s_sub_u32 s{S_CNT}, s{S_CNT}, 1
    s_cmp_lg_u32 s{S_CNT}, 0
    s_cbranch_scc1 {top}
    s_mov_b32 s{S_LIM}, 1
    """)
    a.label(done)


def backoff(a, sreg):
    top, done = a.newlabel("bo"), a.newlabel("bod")
    a(f"""
    s_mov_b32 s{S_T0}, s{sreg}
    {top}:
    s_cmp_eq_u32 s{S_T0}, 0
    s_cbranch_scc1 {done}
    s_sleep 1
    s_sub_u32 s{S_T0}, s{S_T0}, 1
    s_branch {top}
    {done}:
    """)


def adapt(a, sreg, saved):
    lo, hi = OPT["lo"], OPT["hi"]
    a(f"""
    s_sub_u32 s{S_T0}, s{S_LIM}, s{saved}
    s_sub_u32 s{S_T1}, s{sreg}, 1
    s_max_i32 s{S_T1}, s{S_T1}, 0
    s_cmp_lt_u32 s{S_T0}, {lo}
    s_cselect_b32 s{sreg}, s{S_T1}, s{sreg}
    s_sub_u32 s{S_T1}, s{S_T0}, {hi}
    s_add_u32 s{S_T1}, s{S_T1}, s{sreg}
    s_min_u32 s{S_T1}, s{S_T1}, 48
    s_cmp_gt_u32 s{S_T0}, {hi}
    s_cselect_b32 s{sreg}, s{S_T1}, s{sreg}
    """)


def stamp(a, k, diag):
    if diag:
        a(f"{'s_memtime' if OPT['memtime'] else 's_memrealtime'} s[{S_STP+2*k}:{S_STP+2*k+1}]")


def stamp_setup(a, diag):
    if diag:
        a(f"s_lshl_b32 s{S_STB}, s{S_ROLE}, 2\ns_add_u32 s{S_STB}, s{S_STB}, s{S_WAVE}\ns_lshl_b32 s{S_STB}, s{S_STB}, 11\ns_add_u32 s{S_STB}, s{S_STB}, {STAMP_OFF}")


def stamp_store(a, n, diag, t0, t1):
    if not diag:
        return
    a("s_waitcnt lgkmcnt(0)")
    a(f"s_lshl_b32 s{S_T0}, s{S_STEP}, 5")
    a(f"s_add_u32 s{S_T0}, s{S_T0}, s{S_STB}")
    a("s_mov_b64 exec, 1")
    for k in range(n):
        a(f"v_mov_b32 v{t0}, s{S_STP+2*k}")
        a(f"v_mov_b32 v{t1}, {4*k}")
        a(f"buffer_store_dword v{t0}, v{t1}, {WS}, s{S_T0} offen")
    a("s_mov_b64 exec, -1")


def smf(acc, A, B):
    return f"v_smfmac_f32_16x16x64_bf16 {vr(acc,4)}, {vr(A,4)}, {B}, v{V_IDX}"


DPPS = ["quad_perm:[1,0,3,2]", "quad_perm:[2,3,0,1]", "row_half_mirror", "row_mirror"]


def mem_polls():
    return [f"buffer_load_dwordx4 {vr(MF+4*u,4)}, v{V_FA+u}, {WS}, s{S_MEMOFF} offen sc1" for u in range(2)]


def gen_T(a, diag=False):
    SA, XK = 76, 88
    (V_XA0, V_XA1, V_MK0, V_MK1, V_TW, V_TRD, V_PW, V_PR, V_PA0, V_PA1) = range(9, 19)
    V_MASK = 0

    def W(jj, u):
        o = (u * 7 + jj) if u < 2 else 14 + jj * 5 + (u - 2)
        return ar(8 * o, 8) if o < 32 else vr(120 + 8 * (o - 32), 8)

    a.label("L_role_T")
    a.c("T role: head = S_ROLE")
    common_setup(a)
    h = S_ROLE
    S_ODD, S_TAU0, S_TAUL, S_CC0, S_CCL = 80, 81, 82, 83, 84
    a(f"""
    s_and_b32 s{S_ODD}, s{S_WAVE}, 1
    s_mul_i32 s{S_T0}, s{S_WAVE}, 7
    s_add_u32 s{S_TAU0}, s{S_T0}, s{S_ODD}
    s_lshr_b32 s{S_CC0}, s{S_TAU0}, 1
    s_add_u32 s{S_T1}, s{S_T0}, 6
    s_cmp_eq_u32 s{S_ODD}, 1
    s_cselect_b32 s{S_TAUL}, s{S_T0}, s{S_T1}
    s_lshr_b32 s{S_CCL}, s{S_TAUL}, 1
    v_lshlrev_b32 v43, 4, v{LN}
    s_mul_i32 s{S_T3}, s{h}, {28*14*FR}
    """)
    a.c("weights -> registers")
    for jj in range(7):
        if jj < 6:
            a(f"s_add_u32 s{S_T0}, s{S_TAU0}, {jj}")
        else:
            a(f"s_mov_b32 s{S_T0}, s{S_TAUL}")
        a(f"s_mul_i32 s{S_T0}, s{S_T0}, {14*FR}")
        a(f"s_add_u32 s{S_T0}, s{S_T0}, s{S_T3}")
        for u in range(7):
            w = W(jj, u)
            k, base = w[0], int(w[2:].split(":")[0])
            a(f"s_lshl_b32 s{S_T1}, s{S_K+u}, 11")
            a(f"s_add_u32 s{S_T1}, s{S_T1}, s{S_T0}")
            a(f"buffer_load_dwordx4 {k}[{base}:{base+3}], v43, {WS}, s{S_T1} offen")
            a(f"buffer_load_dwordx4 {k}[{base+4}:{base+7}], v43, {WS}, s{S_T1} offen offset:1024")
    a.c("address registers")
    a(f"""
    v_and_b32 v20, 1, v{G4}
    v_lshrrev_b32 v21, 1, v{G4}
    v_cmp_eq_u32 vcc, 1, v20
    v_add_u32 v22, s{S_CC0}, v20
    s_add_u32 s{S_T0}, s{S_CC0}, 2
    v_mov_b32 v23, s{S_T0}
    v_mov_b32 v24, s{S_CCL}
    v_cndmask_b32 v23, v23, v24, vcc
    v_mov_b32 v24, s{S_ODD}
    v_cndmask_b32 v24, 0, v24, vcc
    v_lshlrev_b32 v{V_XA0}, 4, v{LN}
    v_and_b32 v25, 7, v{L15}
    v_lshlrev_b32 v25, 5, v25
    v_lshl_add_u32 v25, v21, 3, v25
    v_lshl_add_u32 v{V_MK0}, v22, 9, v25
    v_lshl_add_u32 v{V_MK1}, v23, 9, v25
    v_lshl_add_u32 v{V_MK1}, v24, 4, v{V_MK1}
    s_lshl_b32 s{S_T2}, s{S_WAVE}, 11
    s_add_u32 s{S_T2}, s{S_T2}, {T_TR}
    v_lshlrev_b32 v25, 5, v{L15}
    v_lshl_add_u32 v25, v{G4}, 3, v25
    v_add_u32 v{V_TW}, s{S_T2}, v25
    v_lshl_add_u32 v{V_TRD}, v{LN}, 3, s{S_T2}
    s_lshl_b32 s{S_T2}, s{S_WAVE}, 11
    s_add_u32 s{S_T2}, s{S_T2}, {T_PART}
    v_lshlrev_b32 v25, 9, v{G4}
    v_lshl_add_u32 v25, v{L15}, 4, v25
    v_add_u32 v{V_PW}, s{S_T2}, v25
    s_lshl_b32 s{S_T2}, s{S_WAVE}, 9
    s_add_u32 s{S_T2}, s{S_T2}, {T_PART}
    v_and_b32 v25, 31, v{LN}
    v_lshl_add_u32 v{V_PR}, v25, 4, s{S_T2}
    s_lshl_b32 s{S_T0}, s{S_WAVE}, 1
    v_add_u32 v26, s{S_T0}, v20
    s_and_b32 s85, s{h}, 1
    s_bfe_u32 s86, s{h}, 0x10001
    s_lshr_b32 s{S_T0}, s{h}, 2
    s_mul_i32 s{S_T0}, s{S_T0}, {PS_W}
    s_lshl_b32 s{S_T1}, s86, 10
    s_add_u32 s{S_T1}, s{S_T1}, s{S_T0}
    s_lshl_b32 s{S_T2}, s85, 9
    s_add_u32 s{S_T1}, s{S_T1}, s{S_T2}
    v_lshrrev_b32 v27, 3, v{L15}
    v_lshlrev_b32 v27, 8, v27
    v_lshl_add_u32 v27, v26, 5, v27
    v_and_b32 v28, 1, v{L15}
    v_lshl_add_u32 v27, v28, 4, v27
    v_bfe_u32 v29, v{L15}, 1, 2
    v_lshl_add_u32 v27, v29, 2, v27
    v_add_u32 v27, s{S_T1}, v27
    s_add_u32 s{S_T1}, s{S_T0}, 2048
    s_lshl_b32 s{S_T2}, s86, 9
    s_add_u32 s{S_T1}, s{S_T1}, s{S_T2}
    s_lshl_b32 s{S_T2}, s85, 2
    s_add_u32 s{S_T1}, s{S_T1}, s{S_T2}
    v_bfe_u32 v29, v{L15}, 2, 1
    v_lshlrev_b32 v29, 8, v29
    v_lshl_add_u32 v29, v26, 5, v29
    v_lshl_add_u32 v29, v28, 4, v29
    v_bfe_u32 v30, v{L15}, 1, 1
    v_lshl_add_u32 v29, v30, 3, v29
    v_add_u32 v29, s{S_T1}, v29
    v_mov_b32 v30, {OOB}
    v_cmp_gt_u32 vcc, 32, v{LN}
    v_cndmask_b32 v{V_PA0}, v30, v27, vcc
    v_cndmask_b32 v29, v30, v29, vcc
    v_cmp_gt_u32 vcc, 8, v{L15}
    v_cndmask_b32 v{V_PA1}, v30, v29, vcc
    v_mov_b32 v30, 0xf149f2ca
    v_cndmask_b32 v{V_MASK}, v30, 0, vcc
    s_lshl_b32 s{S_XO}, s{S_WAVE}, 13
    s_add_u32 s{S_XO}, s{S_XO}, {XK_OFF}
    s_mov_b32 s{S_SLP}, 0
    """)
    stamp_setup(a, diag)

    def xloads():
        for sg in range(2):
            for f in range(4):
                a(f"buffer_load_dwordx4 {vr(XK+16*sg+4*f,4)}, v{V_XA0}, {WS}, s{S_XO} offen offset:{f*1024}")
            a(f"s_add_u32 s{S_XO}, s{S_XO}, {4096 if sg == 0 else XK_STEP-4096}")

    def zero():
        for r in range(28):
            a(f"v_mov_b32 v{ACC+r}, 0")
        for r in range(12):
            a(f"v_mov_b32 v{SA+r}, " + (f"v{V_MASK}" if r in (8, 10) else "0"))

    xloads()
    zero()
    a("s_waitcnt vmcnt(0) lgkmcnt(0)")
    a("s_barrier")

    acc = lambda j: ACC + 4 * j
    a.label("L_T_step")
    poll(a, mem_polls(), range(MF, MF + 8))
    stamp(a, 0, diag)
    a(f"ds_write_b128 v{V_FA}, {vr(MF,4)}")
    a(smf(acc(0), MF, W(0, 0)))
    a(f"s_mov_b32 s{S_SL2}, s{S_CNT}")
    a(f"ds_write_b128 v{V_FA+1}, {vr(MF+4,4)}")
    for j in range(1, 7):
        a(smf(acc(j), MF, W(j, 0)))
    a("s_waitcnt lgkmcnt(0)")
    a("s_barrier")
    for u in range(2, 7):
        a(f"ds_read_b128 {vr(MF+4*u,4)}, v{V_FA+u}")
    for j in range(7):
        a(smf(acc(j), MF + 4, W(j, 1)))

    MK0, MK1 = MF, acc(2)
    TB0, TB1 = acc(0), acc(1)

    def mkreads(dst, addr):
        return [f"ds_read2_b32 {vr(dst+4*b+2*d,2)}, v{addr} offset0:{64*b+d} offset1:{64*b+d+4}" for b in range(2) for d in range(2)]

    def add2(A_):
        return [f"v_add_f32 v{A_}, v{A_}, v{A_+1}", f"v_add_f32 v{A_+2}, v{A_+2}, v{A_+3}"]

    def cvt(p):
        A_, B_ = acc(2 * p), acc(2 * p + 1)
        return [f"v_cvt_pk_bf16_f32 v{B_+3}, v{A_+2}, v{B_+2}", f"v_cvt_pk_bf16_f32 v{B_+2}, v{A_}, v{B_}"]

    def trans(p, wreg, dst):
        return [f"ds_write_b64 v{V_TW}, {vr(wreg,2)} offset:{512*p}", f"ds_read_b64_tr_b16 {vr(dst,2)}, v{V_TRD} offset:{512*p}"]

    def sstep(sg, tb, mk):
        B = [vr(XK + 16 * sg, 8), vr(XK + 16 * sg + 8, 8), vr(mk, 8)]
        return [smf(SA + 4 * t, tb, B[t]) for t in range(3)]

    pre = {n: [] for n in range(35)}
    side = {n: [] for n in range(35)}
    for u in range(5):
        pre[u].append(f"s_waitcnt lgkmcnt({4-u})")
    mk = mkreads(MK0, V_MK0)
    side[5] += ["s_waitcnt vmcnt(0)", mk[0]]
    side[6] += [mk[1]]; side[7] += [mk[2]]; side[10] += [mk[3]]
    for p in range(3):
        n0 = 10 * p
        x = add2(acc(2 * p)); side[n0 + 8].append(x[0]); side[n0 + 9].append(x[1])
        x = add2(acc(2 * p + 1)); side[n0 + 13].append(x[0]); side[n0 + 14].append(x[1])
        if p < 2:
            x = cvt(p); side[n0 + 15].append(x[0]); side[n0 + 16].append(x[1])
            x = trans(p, acc(2 * p + 1) + 2, TB0 + 2 * p); side[n0 + 17].append(x[0]); side[n0 + 18].append(x[1])
    mk = mkreads(MK1, V_MK1)
    for k in range(4):
        side[30 + k].append(mk[k])
    n = 0
    for jj in range(7):
        for u in range(2, 7):
            for s_ in pre[n]:
                a(s_)
            a(smf(acc(jj), MF + 4 * u, W(jj, u)))
            for s_ in side[n]:
                a(s_)
            n += 1
    for s_ in cvt(2) + trans(2, acc(5) + 2, TB1):
        a(s_)
    s0 = sstep(0, TB0, MK0)
    L = acc(6)
    a("s_waitcnt lgkmcnt(6)")
    a(s0[0])
    a(s0[1])
    for s_ in add2(L):
        a(s_)
    a(s0[2])
    a(f"v_cvt_pk_bf16_f32 v{L+3}, v{L+2}, 0")
    a(f"v_cvt_pk_bf16_f32 v{L+2}, v{L}, 0")
    for s_ in trans(3, L + 2, TB1 + 2):
        a(s_)
    a("s_waitcnt lgkmcnt(0)")
    for s_ in sstep(1, TB1, MK1):
        a(s_)
    stamp(a, 1, diag)
    Q0, Q1 = acc(4), acc(5)
    for t in range(3):
        a(f"v_add_f32 v{Q0+t}, v{SA+4*t}, v{SA+4*t+1}")
        a(f"v_add_f32 v{Q1+t}, v{SA+4*t+2}, v{SA+4*t+3}")
    a(f"ds_write_b96 v{V_PW}, {vr(Q0,3)}")
    a(f"ds_write_b96 v{V_PW}, {vr(Q1,3)} offset:256")
    a("s_waitcnt lgkmcnt(0)")
    a("s_barrier")
    R = ACC
    for w in range(4):
        a(f"ds_read_b128 {vr(R+4*w,4)}, v{V_PR} offset:{2048*w}")
    a(f"""
    s_waitcnt lgkmcnt(2)
    v_pk_add_f32 {vr(R,2)}, {vr(R,2)}, {vr(R+4,2)}
    v_add_f32 v{R+2}, v{R+2}, v{R+6}
    s_waitcnt lgkmcnt(0)
    v_pk_add_f32 {vr(R+8,2)}, {vr(R+8,2)}, {vr(R+12,2)}
    v_add_f32 v{R+10}, v{R+10}, v{R+14}
    v_pk_add_f32 {vr(R,2)}, {vr(R,2)}, {vr(R+8,2)}
    v_add_f32 v{R+2}, v{R+2}, v{R+10}
    v_max3_f32 v{R+4}, v{R}, v{R+1}, v{R+2}
    """)
    for d in DPPS:
        a(f"v_max_f32_dpp v{R+4}, v{R+4}, v{R+4} {d} row_mask:0xf bank_mask:0xf")
    for r in range(3):
        a(f"v_sub_f32 v{R+r}, v{R+r}, v{R+4}")
    for r in range(3):
        a(f"v_exp_f32 v{R+r}, v{R+r}")
    a(f"v_add_f32 v{R+5}, v{R}, v{R+1}")
    a(f"v_add_f32 v{R+5}, v{R+5}, v{R+2}")
    for d in DPPS:
        a(f"v_add_f32_dpp v{R+5}, v{R+5}, v{R+5} {d} row_mask:0xf bank_mask:0xf")
    a(f"v_rcp_f32 v{R+5}, v{R+5}")
    a(f"""
    v_mul_f32 v{R}, v{R}, v{R+5}
    v_mul_f32 v{R+1}, v{R+1}, v{R+5}
    v_cvt_pk_bf16_f32 v{R+6}, v{R}, v{R+1}
    buffer_store_dword v{R+6}, v{V_PA0}, {WS}, s{S_PSOFF} offen
    v_mul_f32 v{R+2}, v{R+2}, v{R+5}
    v_cvt_pk_bf16_f32 v{R+7}, v{R+2}, v{R+2}
    buffer_store_dword v{R+7}, v{V_PA1}, {WS}, s{S_PSOFF} offen
    s_cmp_eq_u32 s{S_FB}, 0
    s_cbranch_scc1 L_T_nofb
    buffer_store_dword v{R+6}, v{V_PA0}, {WS}, s{S_PSOFF} offen sc1
    buffer_store_dword v{R+7}, v{V_PA1}, {WS}, s{S_PSOFF} offen sc1
    L_T_nofb:
    """)
    stamp(a, 2, diag)
    if OPT["lat"]:
        a("s_waitcnt vmcnt(0) lgkmcnt(0)")
        stamp(a, 3, diag)
    if not OPT["nox"]:
        xloads()
    if OPT["lat"]:
        a("s_waitcnt vmcnt(0)")
        stamp(a, 4, diag)
    stamp_store(a, 5, diag, R + 8, R + 9)
    zero()
    if OPT["sleepT"]:
        a(f"s_sleep {OPT['sleepT']}")
    if OPT["adapt"]:
        adapt(a, S_SLP, S_SL2)
        backoff(a, S_SLP)
    a(f"""
    s_add_u32 s{S_MEMOFF}, s{S_MEMOFF}, {MEMS_STEP}
    s_add_u32 s{S_PSOFF}, s{S_PSOFF}, {PS_STEP}
    s_add_u32 s{S_STEP}, s{S_STEP}, 1
    s_cmp_lt_u32 s{S_STEP}, 63
    s_cbranch_scc1 L_T_step
    s_waitcnt vmcnt(0)
    s_endpgm
    """)


def gen_V(a, diag=False):
    VXB, VPB, PF, WLB = 80, 112, 128, 140
    YA = ACC
    V_L16, V_PQ, V_PW, V_PR, V_MS, V_MN, V_WLA, V_FL = range(9, 17)
    NREG = 56 - NWL

    def order(un, u):
        return (u * 8 + un) if u < 2 else 16 + un * 5 + (u - 2)

    def ldsk(o):
        n = o - 16
        return n // 3 if (n >= 0 and n % 3 == 2 and n // 3 < NWL) else None

    def Wreg(o):
        r = o - sum(1 for q in range(o) if ldsk(q) is not None)
        assert r < NREG
        return ar(8 * r, 8) if r < 32 else vr(160 + 8 * (r - 32), 8)

    a.label("L_role_V")
    a.c("V role: column slice c = S_ROLE-16; unit un = 2*hl + t")
    common_setup(a)
    S_C = 80
    a(f"""
    s_sub_u32 s{S_C}, s{S_ROLE}, 16
    v_lshlrev_b32 v{V_L16}, 4, v{LN}
    s_mul_i32 s{S_XB}, s{S_WAVE}, {NWL*2048}
    s_add_u32 s{S_XB}, s{S_XB}, {V_WL}
    v_add_u32 v{V_WLA}, s{S_XB}, v{V_L16}
    s_lshl_b32 s{S_T3}, s{S_WAVE}, 2
    s_mul_i32 s{S_T3}, s{S_T3}, {28*14*FR}
    s_mul_i32 s{S_T0}, s{S_C}, {2*14*FR}
    s_add_u32 s{S_T3}, s{S_T3}, s{S_T0}
    s_add_u32 s{S_T3}, s{S_T3}, {WB_OFF}
    """)
    for un in range(8):
        hl, t = un >> 1, un & 1
        a(f"s_add_u32 s{S_T0}, s{S_T3}, {(hl*28+t)*14*FR}")
        for u in range(7):
            o = order(un, u)
            a(f"s_lshl_b32 s{S_T1}, s{S_K+u}, 11")
            a(f"s_add_u32 s{S_T1}, s{S_T1}, s{S_T0}")
            if ldsk(o) is None:
                w = Wreg(o)
                k, base = w[0], int(w[2:].split(":")[0])
                a(f"buffer_load_dwordx4 {k}[{base}:{base+3}], v{V_L16}, {WS}, s{S_T1} offen")
                a(f"buffer_load_dwordx4 {k}[{base+4}:{base+7}], v{V_L16}, {WS}, s{S_T1} offen offset:1024")
            else:
                a(f"s_add_u32 m0, s{S_XB}, {ldsk(o)*2048}")
                a(f"buffer_load_dwordx4 v{V_L16}, {WS}, s{S_T1} offen lds")
                a(f"buffer_load_dwordx4 v{V_L16}, {WS}, s{S_T1} offen offset:1024 lds")
    a(f"""
    s_mul_i32 s{S_T0}, s{S_WAVE}, {PS_W}
    v_add_u32 v{V_PQ}, s{S_T0}, v{V_L16}
    s_lshl_b32 s{S_T0}, s{S_WAVE}, 10
    s_add_u32 s{S_T0}, s{S_T0}, {V_PART}
    v_add_u32 v{V_PW}, s{S_T0}, v{V_L16}
    v_and_b32 v20, 1, v{G4}
    v_lshlrev_b32 v21, 4, v{L15}
    v_lshl_add_u32 v21, v20, 3, v21
    s_lshl_b32 s{S_T0}, s{S_WAVE}, 8
    s_add_u32 s{S_T0}, s{S_T0}, {V_PART}
    v_add_u32 v{V_PR}, s{S_T0}, v21
    s_lshl_b32 s{S_T0}, s{S_WAVE}, 1
    v_add_u32 v22, s{S_T0}, v20
    v_lshrrev_b32 v23, 3, v{L15}
    v_lshlrev_b32 v23, 8, v23
    v_lshl_add_u32 v23, v22, 5, v23
    v_and_b32 v24, 1, v{L15}
    v_lshl_add_u32 v23, v24, 4, v23
    v_bfe_u32 v24, v{L15}, 1, 2
    v_lshl_add_u32 v23, v24, 2, v23
    s_lshl_b32 s{S_T0}, s{S_C}, 9
    v_add_u32 v23, s{S_T0}, v23
    v_mul_u32_u24 v24, 896, v22
    v_lshl_add_u32 v24, v{L15}, 2, v24
    s_lshl_b32 s{S_T0}, s{S_C}, 6
    v_add_u32 v24, s{S_T0}, v24
    v_mov_b32 v25, {OOB}
    v_cmp_gt_u32 vcc, 32, v{LN}
    v_cndmask_b32 v{V_MS}, v25, v23, vcc
    v_cndmask_b32 v{V_MN}, v25, v24, vcc
    v_and_b32 v24, 3, v{LN}
    s_lshl_b32 s{S_T0}, s{S_WAVE}, 2
    v_add_u32 v24, s{S_T0}, v24
    v_mul_u32_u24 v24, 14, v24
    v_add_u32 v24, s{S_C}, v24
    v_lshlrev_b32 v24, 6, v24
    v_add_u32 v{V_FL}, {PROG_OFF}, v24
    s_mov_b32 s{S_RDY}, 0
    s_mov_b32 s{S_SLP}, 0
    s_mov_b32 s{S_MN}, {0}
    s_lshl_b32 s{S_T0}, s{S_WAVE}, 2
    s_mul_i32 s{S_T0}, s{S_T0}, {28*FR}
    s_lshl_b32 s{S_T1}, s{S_C}, 11
    s_add_u32 s{S_T0}, s{S_T0}, s{S_T1}
    s_add_u32 s{S_XO}, s{S_T0}, {VX_OFF}
    """)
    stamp_setup(a, diag)
    for r in range(32):
        a(f"v_mov_b32 v{ACC+r}, 0")
    a("s_waitcnt vmcnt(0) lgkmcnt(0)")
    a("s_barrier")

    acc = lambda un: ACC + 4 * un
    a.label("L_V_step")
    poll(a, mem_polls(), range(MF, MF + 8), depth2=False, sleep=OPT["sleepVm"])
    stamp(a, 0, diag)
    a(f"ds_write_b128 v{V_FA}, {vr(MF,4)}")
    a(smf(acc(0), MF, Wreg(order(0, 0))))
    a(f"ds_write_b128 v{V_FA+1}, {vr(MF+4,4)}")
    a(f"""
    s_cmp_lt_u32 s{S_STEP}, s{S_RDY}
    s_cbranch_scc1 L_V_vxok
    s_mov_b32 s{S_CNT}, s{S_LIM}
    L_V_vxpoll:
    buffer_load_dwordx4 {vr(PF,4)}, v{V_FL}, {WS}, 0 offen sc1
    s_waitcnt vmcnt(0)
    v_min3_u32 v{V_TMP}, v{PF}, v{PF+1}, v{PF+2}
    v_min_u32 v{V_TMP}, v{V_TMP}, v{PF+3}
    v_readlane_b32 s{S_T0}, v{V_TMP}, 0
    v_readlane_b32 s{S_T1}, v{V_TMP}, 1
    v_readlane_b32 s{S_T2}, v{V_TMP}, 2
    v_readlane_b32 s{S_T3}, v{V_TMP}, 3
    s_min_u32 s{S_T0}, s{S_T0}, s{S_T1}
    s_min_u32 s{S_T2}, s{S_T2}, s{S_T3}
    s_min_u32 s{S_RDY}, s{S_T0}, s{S_T2}
    s_lshl_b32 s{S_RDY}, s{S_RDY}, 2
    s_cmp_lt_u32 s{S_STEP}, s{S_RDY}
    s_cbranch_scc1 L_V_vxok
    s_sleep 4
    s_sub_u32 s{S_CNT}, s{S_CNT}, 1
    s_cmp_lg_u32 s{S_CNT}, 0
    s_cbranch_scc1 L_V_vxpoll
    s_mov_b32 s{S_LIM}, 1
    L_V_vxok:
    """)
    if OPT["lat"]:
        a("s_waitcnt vmcnt(0) lgkmcnt(0)")
        stamp(a, 4, diag)
    vx = []
    for hl in range(0 if OPT["novx"] else 4):
        vx.append([f"s_add_u32 s{S_T0}, s{S_XO}, {hl*28*FR}",
                   f"buffer_load_dwordx4 {vr(VXB+4*hl,4)}, v{V_L16}, {WS}, s{S_T0} offen sc1",
                   f"buffer_load_dwordx4 {vr(VXB+16+4*hl,4)}, v{V_L16}, {WS}, s{S_T0} offen offset:1024 sc1"])
    for un in range(1, 8):
        a(smf(acc(un), MF, Wreg(order(un, 0))))
        if un - 1 < len(vx):
            for s_ in vx[un - 1]:
                a(s_)
    a(f"s_add_u32 s{S_XO}, s{S_XO}, {VX_STEP}")
    if OPT["lat"]:
        a("s_waitcnt vmcnt(0)")
        stamp(a, 5, diag)
    a("s_waitcnt lgkmcnt(0)")
    a("s_barrier")
    for u in range(2, 7):
        a(f"ds_read_b128 {vr(MF+4*u,4)}, v{V_FA+u}")

    def wlread(k):
        b = WLB + 8 * (k & 1)
        return [f"ds_read_b128 {vr(b,4)}, v{V_WLA} offset:{k*2048}", f"ds_read_b128 {vr(b+4,4)}, v{V_WLA} offset:{k*2048+1024}"]
    for s_ in wlread(0) + wlread(1):
        a(s_)
    for un in range(8):
        a(smf(acc(un), MF + 4, Wreg(order(un, 1))))
    a("s_waitcnt lgkmcnt(4)")

    def cvt(un):
        hl, t = un >> 1, un & 1
        A_ = acc(un)
        return [f"v_cvt_pk_bf16_f32 v{VPB+8*t+2*hl}, v{A_}, v{A_+1}", f"v_cvt_pk_bf16_f32 v{VPB+8*t+2*hl+1}, v{A_+2}, v{A_+3}"]

    side = {n: [] for n in range(40)}
    for un in range(7):
        x = cvt(un)
        side[5 * un + 8].append(x[0]); side[5 * un + 9].append(x[1])
    for r in range(8):
        side[20 + r].append(f"v_mov_b32 v{YA+r}, 0")
    n = 0
    for un in range(8):
        for u in range(2, 7):
            o = order(un, u)
            if ldsk(o) is None:
                a(smf(acc(un), MF + 4 * u, Wreg(o)))
            else:
                k = ldsk(o)
                a(f"s_waitcnt lgkmcnt({2 if k + 1 < NWL else 0})")
                a(smf(acc(un), MF + 4 * u, vr(WLB + 8 * (k & 1), 8)))
                if k + 2 < NWL:
                    for s_ in wlread(k + 2):
                        a(s_)
            for s_ in side[n]:
                a(s_)
            n += 1
    for s_ in cvt(7):
        a(s_)
    stamp(a, 1, diag)
    if OPT["sleepV"]:
        a(f"s_sleep {OPT['sleepV']}")
    if OPT["adapt"]:
        backoff(a, S_SLP)
    poll(a, [f"buffer_load_dwordx4 {vr(PF+4*q,4)}, v{V_PQ}, {WS}, s{S_PSOFF} offen offset:{1024*q} sc1" for q in range(3)],
         range(PF, PF + 12))
    for q in range(2):
        for t in range(2):
            a(smf(YA + 4 * t, PF + 4 * q, vr(VXB + 16 * t + 8 * q, 8)))
    for t in range(2):
        a(smf(YA + 4 * t, PF + 8, vr(VPB + 8 * t, 8)))
    stamp(a, 2, diag)
    Y = ACC + 8
    a(f"""
    s_add_u32 s{S_MEMOFF}, s{S_MEMOFF}, {MEMS_STEP}
    v_add_f32 v{Y}, v{YA}, v{YA+1}
    v_add_f32 v{Y+2}, v{YA+2}, v{YA+3}
    v_add_f32 v{Y+1}, v{YA+4}, v{YA+5}
    v_add_f32 v{Y+3}, v{YA+6}, v{YA+7}
    ds_write_b128 v{V_PW}, {vr(Y,4)}
    s_waitcnt lgkmcnt(0)
    s_barrier
    """)
    R = ACC + 12
    for w in range(4):
        a(f"ds_read_b64 {vr(R+2*w,2)}, v{V_PR} offset:{1024*w}")
    a(f"""
    s_waitcnt lgkmcnt(2)
    v_pk_add_f32 {vr(R,2)}, {vr(R,2)}, {vr(R+2,2)}
    s_waitcnt lgkmcnt(0)
    v_pk_add_f32 {vr(R+4,2)}, {vr(R+4,2)}, {vr(R+6,2)}
    v_pk_add_f32 {vr(R,2)}, {vr(R,2)}, {vr(R+4,2)}
    v_cvt_pk_bf16_f32 v{R+2}, v{R}, v{R+1}
    buffer_store_dword v{R+2}, v{V_MS}, {WS}, s{S_MEMOFF} offen
    {"" if OPT["nomn"] else f"buffer_store_dword v{R+2}, v{V_MN}, {WS}, s{S_MN} offen sc1"}
    s_cmp_eq_u32 s{S_FB}, 0
    s_cbranch_scc1 L_V_nofb
    buffer_store_dword v{R+2}, v{V_MS}, {WS}, s{S_MEMOFF} offen sc1
    L_V_nofb:
    """)
    stamp(a, 3, diag)
    if OPT["adapt"]:
        adapt(a, S_SLP, S_CNT)
    if OPT["vdelay"]:
        a(f"s_sleep {OPT['vdelay']}")
    stamp_store(a, 6, diag, R + 4, R + 5)
    for r in range(32):
        if ACC + r != R + 2:
            a(f"v_mov_b32 v{ACC+r}, 0")
    a(f"v_mov_b32 v{R+2}, 0")
    a(f"""
    s_add_u32 s{S_MN}, s{S_MN}, 0
    s_add_u32 s{S_PSOFF}, s{S_PSOFF}, {PS_STEP}
    s_add_u32 s{S_STEP}, s{S_STEP}, 1
    s_cmp_lt_u32 s{S_STEP}, 63
    s_cbranch_scc1 L_V_step
    s_waitcnt vmcnt(0)
    s_endpgm
    """)


def gen_warm(a):
    LEAD = OPT["lead"]
    a.label("L_role_W")
    a(f"""
    v_and_b32 v{LN}, 63, v0
    s_sub_u32 s{S_T0}, s{S_ROLE}, 30
    s_lshl_b32 s{S_T0}, s{S_T0}, 2
    s_add_u32 s80, s{S_T0}, s{S_WAVE}
    v_lshlrev_b32 v2, 7, v{LN}
    s_min_u32 s{S_T0}, s80, 6
    s_lshl_b32 s{S_T0}, s{S_T0}, 10
    v_lshl_add_u32 v6, v{LN}, 4, s{S_T0}
    s_mul_i32 s{S_T0}, s80, 28
    v_min_u32 v3, 27, v{LN}
    v_add_u32 v3, s{S_T0}, v3
    v_lshlrev_b32 v3, 6, v3
    v_add_u32 v3, {PROG_OFF}, v3
    v_mov_b32 v4, 0
    s_mul_i32 s{S_XO}, s80, {56*FR}
    s_add_u32 s{S_XO}, s{S_XO}, {VX_OFF}
    s_mov_b32 s{S_STEP}, 0
    s_mov_b32 s{S_LIM}, {SPIN_LIMIT}
    s_mov_b32 s{S_MEMOFF}, {MEMS_OFF+MEMS_STEP}
    L_W_step:
    s_cmp_lt_u32 s{S_STEP}, {LEAD+1}
    s_cbranch_scc1 L_W_paced
    s_mov_b32 s{S_CNT}, s{S_LIM}
    L_W_pace:
    buffer_load_dwordx4 v[20:23], v6, {WS}, s{S_MEMOFF} offen sc1
    s_waitcnt vmcnt(0)
    v_max3_u32 v5, v20, v21, v22
    v_max_u32 v5, v5, v23
    v_cmp_eq_u32 vcc, -1, v5
    s_cbranch_vccz L_W_paced2
    s_sleep 2
    s_sub_u32 s{S_CNT}, s{S_CNT}, 1
    s_cmp_lg_u32 s{S_CNT}, 0
    s_cbranch_scc1 L_W_pace
    s_mov_b32 s{S_LIM}, 1
    L_W_paced2:
    s_add_u32 s{S_T0}, s{S_MEMOFF}, {MEMR_OFF-MEMS_OFF}
    buffer_store_dwordx4 v[20:23], v6, {WS}, s{S_T0} offen sc1
    s_add_u32 s{S_MEMOFF}, s{S_MEMOFF}, {MEMS_STEP}
    L_W_paced:
    s_cmp_ge_u32 s{S_STEP}, {0 if OPT["nowarm"] else 64}
    s_cbranch_scc1 L_W_next
    s_cmp_lt_u32 s80, 4
    s_cbranch_scc0 L_W_notx
    s_mul_i32 s{S_T0}, s{S_STEP}, {XK_STEP}
    s_lshl_b32 s{S_T1}, s80, 13
    s_add_u32 s{S_T0}, s{S_T0}, s{S_T1}
    s_add_u32 s{S_T0}, s{S_T0}, {XK_OFF}
    buffer_load_dword v8, v2, {WS}, s{S_T0} offen
    s_branch L_W_vx
    L_W_notx:
    s_cmp_eq_u32 s80, 4
    s_cbranch_scc0 L_W_notm
    s_mul_i32 s{S_T0}, s{S_STEP}, {MEMS_STEP}
    s_add_u32 s{S_T0}, s{S_T0}, {MEMS_OFF}
    buffer_load_dword v8, v2, {WS}, s{S_T0} offen sc1
    s_branch L_W_vx
    L_W_notm:
    s_cmp_eq_u32 s80, 7
    s_cbranch_scc1 L_W_vx
    s_mul_i32 s{S_T0}, s{S_STEP}, {PS_STEP}
    s_sub_u32 s{S_T1}, s80, 5
    s_mul_i32 s{S_T1}, s{S_T1}, 6144
    s_add_u32 s{S_T0}, s{S_T0}, s{S_T1}
    s_add_u32 s{S_T0}, s{S_T0}, {PS_OFF}
    buffer_load_dword v8, v2, {WS}, s{S_T0} offen sc1
    L_W_vx:
    s_mov_b32 s{S_CNT}, s{S_LIM}
    v_mov_b32 v7, s{S_STEP}
    L_W_flag:
    v_cmp_lt_u32 vcc, v7, v4
    s_cmp_eq_u64 vcc, -1
    s_cbranch_scc1 L_W_go
    buffer_load_dwordx4 v[24:27], v3, {WS}, 0 offen sc1
    s_waitcnt vmcnt(0)
    v_min3_u32 v4, v24, v25, v26
    v_min_u32 v4, v4, v27
    v_lshlrev_b32 v4, 2, v4
    v_cmp_lt_u32 vcc, v7, v4
    s_cmp_eq_u64 vcc, -1
    s_cbranch_scc1 L_W_go
    s_sleep 8
    s_sub_u32 s{S_CNT}, s{S_CNT}, 1
    s_cmp_lg_u32 s{S_CNT}, 0
    s_cbranch_scc1 L_W_flag
    s_mov_b32 s{S_LIM}, 1
    L_W_go:
    """)
    for k in range(7):
        a(f"s_add_u32 s{S_T0}, s{S_XO}, {k*8192}")
        a(f"buffer_load_dword v{12+k}, v2, {WS}, s{S_T0} offen sc1")
    a(f"""
    s_add_u32 s{S_XO}, s{S_XO}, {VX_STEP}
    L_W_next:
    s_add_u32 s{S_STEP}, s{S_STEP}, 1
    s_cmp_lt_u32 s{S_STEP}, {64+LEAD}
    s_cbranch_scc1 L_W_step
    s_waitcnt vmcnt(0)
    s_endpgm
    """)


def gen_main_prologue(a, force_fb=False):
    a(f"""
    s_cmp_ge_u32 s2, 256
    s_cbranch_scc1 L_exit
    s_load_dwordx2 s[{S_X}:{S_X+1}], s[0:1], 0
    s_load_dwordx4 s[{S_OUT}:{S_OUT+3}], s[0:1], 104
    s_load_dwordx2 s[{S_WS}:{S_WS+1}], s[0:1], 120
    v_lshrrev_b32 v1, 6, v0
    s_getreg_b32 s{S_T3}, hwreg(HW_REG_XCC_ID)
    v_readfirstlane_b32 s{S_WAVE}, v1
    s_and_b32 s{S_T3}, s{S_T3}, 15
    s_waitcnt lgkmcnt(0)
    s_mov_b32 s{SRD_WS}, s{S_WS}
    s_mov_b32 s{SRD_WS+1}, s{S_WS+1}
    s_mov_b32 s{SRD_WS+2}, 0x10000000
    s_mov_b32 s{SRD_WS+3}, 0x20000
    s_mov_b32 s{SRD_X}, s{S_X}
    s_mov_b32 s{SRD_X+1}, s{S_X+1}
    s_mov_b32 s{SRD_X+2}, {2048*896}
    s_mov_b32 s{SRD_X+3}, 0x20000
    s_mov_b32 s{SRD_DBG}, s{S_DBG}
    s_mov_b32 s{SRD_DBG+1}, s{S_DBG+1}
    s_mov_b32 s{SRD_DBG+2}, 256
    s_mov_b32 s{SRD_DBG+3}, 0x20000
    s_cmp_lg_u32 s{S_WAVE}, 0
    s_cbranch_scc1 L_elect_wait
    s_lshl_b32 s{S_T0}, s{S_T3}, 2
    v_mov_b32 v2, s{S_T0}
    v_mov_b32 v3, 1
    s_mov_b64 exec, 1
    buffer_atomic_add v3, v2, s[{SRD_DBG}:{SRD_DBG+3}], 0 offen sc0 sc1
    s_mov_b64 exec, -1
    v_and_b32 v4, 15, v0
    v_lshlrev_b32 v4, 2, v4
    s_waitcnt vmcnt(0)
    v_readfirstlane_b32 s{S_T2}, v3
    s_mov_b32 s{S_CNT}, {SPIN_LIMIT}
    L_elect_poll:
    buffer_load_dword v5, v4, s[{SRD_DBG}:{SRD_DBG+3}], 0 offen sc1
    s_waitcnt vmcnt(0)
    s_mov_b32 s{S_T0}, 0
    """)
    for x in range(16):
        a(f"v_readlane_b32 s{S_CNTS+x}, v5, {x}")
    for x in range(16):
        a(f"s_add_u32 s{S_T0}, s{S_T0}, s{S_CNTS+x}")
    a(f"""
    s_cmp_ge_u32 s{S_T0}, 256
    s_cbranch_scc1 L_elect_done
    s_sleep 2
    s_sub_u32 s{S_CNT}, s{S_CNT}, 1
    s_cmp_lg_u32 s{S_CNT}, 0
    s_cbranch_scc1 L_elect_poll
    L_elect_done:
    s_mov_b32 s{S_T1}, 99
    """)
    if not force_fb:
        for x in range(15, -1, -1):
            a(f"s_cmp_ge_u32 s{S_CNTS+x}, 32")
            a(f"s_cselect_b32 s{S_T1}, {x}, s{S_T1}")
    a(f"""
    s_cmp_eq_u32 s{S_T1}, 99
    s_cselect_b32 s{S_FB}, 1, 0
    s_cselect_b32 s{S_T1}, 0, s{S_T1}
    s_mov_b32 s{S_T0}, 0
    """)
    for x in range(16):
        a(f"s_cmp_lt_u32 {x}, s{S_T3}")
        a(f"s_cselect_b32 s{S_CNT}, s{S_CNTS+x}, 0")
        a(f"s_add_u32 s{S_T2}, s{S_T2}, s{S_CNT}")
        a(f"s_cmp_lt_u32 {x}, s{S_T1}")
        a(f"s_cselect_b32 s{S_CNT}, s{S_CNTS+x}, 0")
        a(f"s_add_u32 s{S_T0}, s{S_T0}, s{S_CNT}")
    a(f"""
    s_sub_u32 s{S_T1}, s{S_T2}, s{S_T0}
    s_add_u32 s{S_CNT}, s{S_T2}, 32
    s_cmp_lt_u32 s{S_T2}, s{S_T0}
    s_cselect_b32 s{S_CNT}, s{S_CNT}, s{S_T2}
    s_cmp_lt_u32 s{S_T1}, 32
    s_cselect_b32 s{S_ROLE}, s{S_T1}, s{S_CNT}
    s_lshl_b32 s{S_T0}, s{S_FB}, 16
    s_or_b32 s{S_T0}, s{S_T0}, s{S_ROLE}
    v_mov_b32 v2, 0
    v_mov_b32 v3, s{S_T0}
    ds_write_b32 v2, v3
    s_waitcnt lgkmcnt(0)
    L_elect_wait:
    s_barrier
    v_mov_b32 v2, 0
    ds_read_b32 v3, v2
    s_waitcnt lgkmcnt(0)
    v_readfirstlane_b32 s{S_T0}, v3
    s_and_b32 s{S_ROLE}, s{S_T0}, 0xffff
    s_lshr_b32 s{S_FB}, s{S_T0}, 16
    s_barrier
    s_cmp_lt_u32 s{S_ROLE}, 16
    s_cbranch_scc1 L_role_T
    s_cmp_lt_u32 s{S_ROLE}, 30
    s_cbranch_scc1 L_role_V
    s_cmp_lt_u32 s{S_ROLE}, 32
    s_cbranch_scc1 L_role_W
    """)
```

```python
from asmlib import *
from layout import *
import gen_chain as gc
from gen_chain import (SRD_WS, SRD_X, S_WAVE, S_ROLE, S_LIM, S_CNT, S_STEP, S_T0, S_T1, S_T2, S_T3, S_OUT, WS, XS,
                       SPIN_LIMIT, OOB)
from gen_prep import f32hex, srd, LOG2E

S_H, S_C, S_RANK, S_FLG = 34, 35, 36, 37
LN, G, L15, L16, IDX, TMP = 1, 2, 3, 4, 5, 6
NEG = "0xf149f2ca"


def WBr(t, ks, n=4):
    return ar(56 * t + 4 * ks, n)


def WAr(t, ks):
    return ar(112 + 56 * t + 4 * ks, 4)


def flagwait(a, vaddr, vthr, vval, sleep=8):
    top, go = a.newlabel("fw"), a.newlabel("fgo")
    a(f"""
    s_mov_b32 s{S_CNT}, s{S_LIM}
    {top}:
    buffer_load_dword v{vval}, v{vaddr}, {WS}, 0 offen sc1
    s_waitcnt vmcnt(0)
    v_cmp_lt_u32 vcc, v{vthr}, v{vval}
    s_cmp_eq_u64 vcc, -1
    s_cbranch_scc1 {go}
    s_sleep {sleep}
    s_sub_u32 s{S_CNT}, s{S_CNT}, 1
    s_cmp_lg_u32 s{S_CNT}, 0
    s_cbranch_scc1 {top}
    s_mov_b32 s{S_LIM}, 1
    {go}:
    """)


def mempoll(a, dst, soff, sleep=4):
    top, done = a.newlabel("mp"), a.newlabel("mpd")
    a(f"s_mov_b32 s{S_CNT}, s{S_LIM}")
    a(f"s_add_u32 s{S_T3}, s{soff}, 4096")
    a.label(top)
    for u in range(7):
        so = soff if u < 4 else S_T3
        a(f"buffer_load_dwordx4 {vr(dst+4*u,4)}, v{L16}, {WS}, s{so} offen offset:{(u&3)*1024} sc1")
    a("s_waitcnt vmcnt(0)")
    r = list(range(dst, dst + 28))
    a(f"v_max3_u32 v{TMP}, v{r[0]}, v{r[1]}, v{r[2]}")
    r = r[3:]
    while len(r) >= 2:
        a(f"v_max3_u32 v{TMP}, v{TMP}, v{r[0]}, v{r[1]}"); r = r[2:]
    a(f"v_max_u32 v{TMP}, v{TMP}, v{r[0]}")
    a(f"""
    v_cmp_eq_u32 vcc, -1, v{TMP}
    s_cbranch_vccz {done}
    s_sleep {sleep}
    s_sub_u32 s{S_CNT}, s{S_CNT}, 1
    s_cmp_lg_u32 s{S_CNT}, 0
    s_cbranch_scc1 {top}
    s_mov_b32 s{S_LIM}, 1
    {done}:
    """)


def xg_reduce(a, op, v, t):
    a(f"v_mov_b32 v{t}, v{v}")
    a(f"v_permlane16_swap_b32 v{v}, v{t}")
    a(f"{op} v{v}, v{v}, v{t}")
    a(f"v_mov_b32 v{t}, v{v}")
    a(f"v_permlane32_swap_b32 v{v}, v{t}")
    a(f"{op} v{v}, v{v}, v{t}")


def full_reduce(a, op, v, t):
    for d in gc.DPPS:
        a(f"{op}_dpp v{v}, v{v}, v{v} {d} row_mask:0xf bank_mask:0xf")
    xg_reduce(a, op, v, t)


def rbf(a, v):
    a(f"v_cvt_pk_bf16_f32 v{v}, v{v}, v{v}")
    a(f"v_and_b32 v{v}, 0xffff0000, v{v}")


def gen_helper(a, diag=False):
    a.c("helper: rank = role-32")
    a(f"""
    s_sub_u32 s{S_RANK}, s{S_ROLE}, 32
    s_mul_i32 s{S_H}, s{S_RANK}, 4682
    s_lshr_b32 s{S_H}, s{S_H}, 16
    s_mul_i32 s{S_T0}, s{S_H}, 14
    s_sub_u32 s{S_C}, s{S_RANK}, s{S_T0}
    s_lshl_b32 s{S_FLG}, s{S_RANK}, 6
    s_add_u32 s{S_FLG}, s{S_FLG}, {PROG_OFF}
    s_mov_b32 s{S_LIM}, {SPIN_LIMIT}
    v_and_b32 v{LN}, 63, v0
    v_lshrrev_b32 v{G}, 4, v{LN}
    v_and_b32 v{L15}, 15, v{LN}
    v_lshlrev_b32 v{L16}, 4, v{LN}
    v_and_b32 v8, 1, v0
    v_cmp_eq_u32 vcc, 0, v8
    v_mov_b32 v8, 0xEEEE
    v_mov_b32 v9, 0x4444
    v_cndmask_b32 v{IDX}, v8, v9, vcc
    s_mul_i32 s{S_T0}, s{S_H}, 28
    s_lshl_b32 s{S_T1}, s{S_C}, 1
    s_add_u32 s{S_T0}, s{S_T0}, s{S_T1}
    s_mul_i32 s{S_T0}, s{S_T0}, {14*FR}
    s_add_u32 s{S_T1}, s{S_T0}, {WB_OFF}
    """)
    XB, AV, AT, OV = 32, 144, 160, 16
    S_XA, S_XB2, S_VO, S_TO = 45, 46, 47, 48
    a(f"""
    s_mul_i32 s{S_XA}, s{S_WAVE}, {28*FR}
    s_add_u32 s{S_XA}, s{S_XA}, {XF_OFF}
    """)

    def xload(ks, mt):
        f = mt * 14 + ks
        return [f"s_add_u32 s{S_T2}, s{S_XA}, {(f & ~3) * FR}",
                f"buffer_load_dwordx4 {vr(XB+8*ks+4*mt,4)}, v{L16}, {WS}, s{S_T2} offen offset:{(f&3)*FR}"]
    for f in range(28):
        a(f"buffer_load_dwordx4 {ar(4*f,4)}, v{L16}, {WS}, s{S_T1} offen offset:{(f&3)*FR}")
        if f & 3 == 3:
            a(f"s_add_u32 s{S_T1}, s{S_T1}, 4096")
    for ks in range(14):
        for mt in range(2):
            for s_ in xload(ks, mt):
                a(s_)
    for f in range(28):
        a(f"buffer_load_dwordx4 {ar(112+4*f,4)}, v{L16}, {WS}, s{S_T0} offen offset:{(f&3)*FR}")
        if f & 3 == 3:
            a(f"s_add_u32 s{S_T0}, s{S_T0}, 4096")
    a(f"""
    s_lshl_b32 s{S_T0}, s{S_WAVE}, 4
    s_add_u32 s{S_T0}, s{S_T0}, s{S_H}
    s_mul_i32 s{S_T0}, s{S_T0}, 14
    s_add_u32 s{S_T0}, s{S_T0}, s{S_C}
    s_lshl_b32 s{S_T0}, s{S_T0}, 11
    s_add_u32 s{S_VO}, s{S_T0}, {VX_OFF}
    s_add_u32 s{S_TO}, s{S_T0}, {TX_OFF}
    s_lshl_b32 s{S_T0}, s{S_WAVE}, 2
    v_mov_b32 v7, s{S_T0}
    s_mov_b32 s{S_STEP}, 0
    s_waitcnt vmcnt(0)
    H_gemm:
    s_add_u32 s{S_XA}, s{S_XA}, {4*28*FR}
    s_cmp_eq_u32 s{S_STEP}, 15
    s_cselect_b32 s{S_XA}, {XF_OFF}, s{S_XA}
    v_mov_b32 v8, s{S_STEP}
    """)
    for ks in range(14):
        a(f"s_waitcnt vmcnt({30 if ks < 13 else 26})")
        z = ks == 0
        for mt in range(2):
            for t in range(2):
                d = AV + 8 * mt + 4 * t
                a(f"v_mfma_f32_16x16x32_bf16 {vr(d,4)}, {vr(XB+8*ks+4*mt,4)}, {WBr(t,ks)}, {'0' if z else vr(d,4)}")
            for t in range(2):
                d = AT + 8 * mt + 4 * t
                a(f"v_mfma_f32_16x16x32_bf16 {vr(d,4)}, {WAr(t,ks)}, {vr(XB+8*ks+4*mt,4)}, {'0' if z else vr(d,4)}")
            for s_ in xload(ks, mt):
                a(s_)
    a("s_mov_b64 exec, 1")
    a(f"buffer_store_dword v8, v7, {WS}, s{S_FLG} offen sc1")
    a("s_mov_b64 exec, -1")
    for t in range(2):
        o = OV + 4 * t
        for mt in range(2):
            d = AV + 8 * mt + 4 * t
            a(f"v_cvt_pk_bf16_f32 v{o+2*mt}, v{d}, v{d+1}")
            a(f"v_cvt_pk_bf16_f32 v{o+2*mt+1}, v{d+2}, v{d+3}")
        a(f"buffer_store_dwordx4 {vr(o,4)}, v{L16}, {WS}, s{S_VO} offen offset:{t*FR} sc1")
    for mt in range(2):
        o = OV + 8 + 4 * mt
        for t in range(2):
            d = AT + 8 * mt + 4 * t
            a(f"v_cvt_pk_bf16_f32 v{o+t}, v{d}, v{d+1}")
            a(f"v_cvt_pk_bf16_f32 v{o+2+t}, v{d+2}, v{d+3}")
        a(f"buffer_store_dwordx4 {vr(o,4)}, v{L16}, {WS}, s{S_TO} offen offset:{mt*FR} sc1")
    a(f"""
    s_add_u32 s{S_VO}, s{S_VO}, {4*VX_STEP}
    s_add_u32 s{S_TO}, s{S_TO}, {4*VX_STEP}
    s_add_u32 s{S_STEP}, s{S_STEP}, 1
    s_cmp_lt_u32 s{S_STEP}, 16
    s_cbranch_scc1 H_gemm
    v_mov_b32 v8, 16
    s_waitcnt vmcnt(0)
    s_mov_b64 exec, 1
    buffer_store_dword v8, v7, {WS}, s{S_FLG} offen sc1
    s_mov_b64 exec, -1
    s_cmp_lt_u32 s{S_RANK}, 28
    s_cbranch_scc0 H_phase2
    """)
    gen_mod(a)
    a.label("H_phase2")
    a(f"""
    s_cmp_eq_u32 s{S_WAVE}, 0
    s_cbranch_scc1 H_vp
    s_cmp_eq_u32 s{S_WAVE}, 3
    s_cbranch_scc1 H_f2
    """)
    gen_f1(a)
    gen_vp(a)
    gen_f2(a)


def gen_mod(a):
    SG, SU, SD = 48, 52, 56
    S_IDX, S_RM = 60, 61
    a(f"""
    s_load_dwordx4 s[64:67], s[0:1], 72
    s_load_dwordx2 s[68:69], s[0:1], 88
    s_mov_b32 s{S_T0}, {RG_OFF}
    s_mov_b32 s{S_T1}, {RG_OFF+4096}
    """)
    R = 32
    for k in range(8):
        a(f"buffer_load_dwordx4 {vr(R+4*k,4)}, v{L16}, {WS}, s{S_T0 if k < 4 else S_T1} offen offset:{(k&3)*1024}")
    a("s_waitcnt lgkmcnt(0)")
    srd(a, SG, 64, 448 * 3584)
    srd(a, SU, 66, 448 * 3584)
    srd(a, SD, 68, 1792 * 896)
    a("s_waitcnt vmcnt(0)")
    a(f"v_max3_f32 v8, v{R}, v{R+1}, v{R+2}")
    for k in range(3, 31, 2):
        a(f"v_max3_f32 v8, v8, v{R+k}, v{R+k+1}")
    a(f"v_max_f32 v8, v8, v{R+31}")
    full_reduce(a, "v_max_f32", 8, 9)
    a(f"v_lshlrev_b32 v10, 2, v{LN}")
    a(f"v_mov_b32 v11, 0x7fffffff")
    for k in range(31, -1, -1):
        a(f"v_cmp_eq_f32 vcc, v8, v{R+k}")
        a(f"v_add_u32 v12, {256*(k>>2)+(k&3)}, v10")
        a(f"v_cndmask_b32 v11, v11, v12, vcc")
    full_reduce(a, "v_min_u32", 11, 9)
    a(f"""
    v_min_u32 v11, 2047, v11
    v_readfirstlane_b32 s{S_IDX}, v11
    v_readfirstlane_b32 s{S_RM}, v8
    v_lshrrev_b32 v12, 3, v{LN}
    v_and_b32 v13, 7, v{LN}
    v_lshlrev_b32 v14, 1, v12
    v_mul_u32_u24 v15, 3584, v12
    v_lshl_add_u32 v15, v13, 4, v15
    s_mul_i32 s{S_T0}, s{S_IDX}, 896
    s_mul_i32 s{S_T1}, s{S_WAVE}, 224
    s_add_u32 s{S_T0}, s{S_T0}, s{S_T1}
    s_mul_i32 s{S_T1}, s{S_WAVE}, {112*3584}
    s_lshl_b32 s{S_T2}, s{S_RANK}, 7
    s_add_u32 s{S_T1}, s{S_T1}, s{S_T2}
    """)
    XSEL, WG_, WU_, AC = 16, 32, 88, 144
    for i in range(14):
        a(f"buffer_load_ushort v{XSEL+i}, v14, {XS}, s{S_T0} offen offset:{16*i}")
    for i in range(14):
        a(f"buffer_load_dwordx4 {vr(WG_+4*i,4)}, v15, s[{SG}:{SG+3}], s{S_T1} offen")
        a(f"buffer_load_dwordx4 {vr(WU_+4*i,4)}, v15, s[{SU}:{SU+3}], s{S_T1} offen")
        a(f"s_add_u32 s{S_T1}, s{S_T1}, {8*3584}")
    for r in range(16):
        a(f"v_mov_b32 v{AC+r}, 0")
    for i in range(14):
        a(f"s_waitcnt vmcnt({26-2*i})")
        a(f"v_lshlrev_b32 v{XSEL+i}, 16, v{XSEL+i}")
        for m, base in enumerate((WG_, WU_)):
            for q in range(4):
                w = base + 4 * i + q
                a(f"v_lshlrev_b32 v8, 16, v{w}")
                a(f"v_and_b32 v9, 0xffff0000, v{w}")
                a(f"v_fmac_f32 v{AC+8*m+2*q}, v8, v{XSEL+i}")
                a(f"v_fmac_f32 v{AC+8*m+2*q+1}, v9, v{XSEL+i}")
    a(f"""
    s_lshl_b32 s{S_T0}, s{S_WAVE}, 12
    v_lshlrev_b32 v8, 9, v12
    v_lshl_add_u32 v8, v13, 5, v8
    v_add_u32 v8, s{S_T0}, v8
    ds_write_b128 v8, {vr(AC,4)}
    ds_write_b128 v8, {vr(AC+4,4)} offset:16
    ds_write_b128 v8, {vr(AC+8,4)} offset:256
    ds_write_b128 v8, {vr(AC+12,4)} offset:272
    s_lshl_b32 s{S_T0}, s{S_RANK}, 6
    s_lshl_b32 s{S_T1}, s{S_WAVE}, 4
    s_add_u32 s{S_T0}, s{S_T0}, s{S_T1}
    s_mul_i32 s{S_T0}, s{S_T0}, 896
    v_mov_b32 v9, {OOB}
    v_cmp_gt_u32 vcc, 56, v{LN}
    v_cndmask_b32 v9, v9, v{L16}, vcc
    """)
    WD = 32
    for i in range(16):
        a(f"buffer_load_dwordx4 {vr(WD+4*i,4)}, v9, s[{SD}:{SD+3}], s{S_T0} offen")
        a(f"s_add_u32 s{S_T0}, s{S_T0}, 896")
    a(f"""
    s_waitcnt lgkmcnt(0)
    s_barrier
    v_lshlrev_b32 v10, 2, v{LN}
    v_mov_b32 v12, 0
    v_mov_b32 v13, 0
    """)
    P = 100
    for half in range(4):
        for p in range(8):
            a(f"ds_read2_b32 {vr(P+2*p,2)}, v10 offset0:0 offset1:64")
            a(f"v_add_u32 v10, 512, v10")
        a("s_waitcnt lgkmcnt(0)")
        for p in range(8):
            a(f"v_add_f32 v12, v12, v{P+2*p}")
            a(f"v_add_f32 v13, v13, v{P+2*p+1}")
    rbf(a, 12)
    rbf(a, 13)
    a(f"""
    v_mul_f32 v14, {f32hex(-LOG2E)}, v12
    v_exp_f32 v14, v14
    v_add_f32 v14, 1.0, v14
    v_rcp_f32 v14, v14
    v_mul_f32 v12, v12, v14
    """)
    rbf(a, 12)
    a("v_mul_f32 v12, v12, v13")
    rbf(a, 12)
    a(f"s_lshl_b32 s{S_T1}, s{S_WAVE}, 4")
    for r in range(8):
        a(f"v_mov_b32 v{AC+r}, 0")
    for i in range(16):
        a(f"s_add_u32 s{S_T2}, s{S_T1}, {i}")
        a(f"v_readlane_b32 s{S_T0}, v12, s{S_T2}")
        a(f"s_waitcnt vmcnt({15-i})")
        for q in range(4):
            w = WD + 4 * i + q
            a(f"v_lshlrev_b32 v8, 16, v{w}")
            a(f"v_and_b32 v9, 0xffff0000, v{w}")
            a(f"v_fmac_f32 v{AC+2*q}, s{S_T0}, v8")
            a(f"v_fmac_f32 v{AC+2*q+1}, s{S_T0}, v9")
    a(f"""
    s_barrier
    s_lshl_b32 s{S_T0}, s{S_WAVE}, 11
    v_lshlrev_b32 v8, 5, v{LN}
    v_add_u32 v9, s{S_T0}, v8
    ds_write_b128 v9, {vr(AC,4)}
    ds_write_b128 v9, {vr(AC+4,4)} offset:16
    s_waitcnt lgkmcnt(0)
    s_barrier
    s_cmp_lg_u32 s{S_WAVE}, 0
    s_cbranch_scc1 H_mod_done
    """)
    for w in range(1, 4):
        a(f"ds_read_b128 {vr(P+8*w,4)}, v8 offset:{2048*w}")
        a(f"ds_read_b128 {vr(P+8*w+4,4)}, v8 offset:{2048*w+16}")
    a("s_waitcnt lgkmcnt(0)")
    for w in range(1, 4):
        for r in range(8):
            a(f"v_add_f32 v{AC+r}, v{AC+r}, v{P+8*w+r}")
    a(f"""
    v_mov_b32 v9, {OOB}
    v_cmp_gt_u32 vcc, 56, v{LN}
    v_cndmask_b32 v9, v9, v8, vcc
    s_mul_i32 s{S_T0}, s{S_RANK}, 1792
    s_add_u32 s{S_T0}, s{S_T0}, {YM_OFF}
    buffer_store_dwordx4 {vr(AC,4)}, v9, {WS}, s{S_T0} offen sc1
    buffer_store_dwordx4 {vr(AC+4,4)}, v9, {WS}, s{S_T0} offen offset:16 sc1
    v_mov_b32 v10, s{S_IDX}
    v_mov_b32 v11, s{S_RM}
    v_mov_b32 v12, 32
    v_mov_b32 v13, 28
    v_mov_b32 v14, 1
    s_mov_b64 exec, 1
    buffer_store_dwordx2 v[10:11], v12, {WS}, s{S_FLG} offen sc1
    s_waitcnt vmcnt(0)
    buffer_store_dword v14, v13, {WS}, s{S_FLG} offen sc1
    s_mov_b64 exec, -1
    H_mod_done:
    s_barrier
    """)


def gen_vp(a):
    MFm, AC, O = 32, 64, 72
    S_MO, S_VPO = 45, 46
    a.label("H_vp")
    a(f"""
    s_mov_b32 s{S_STEP}, 0
    s_mov_b32 s{S_MO}, {MEMR_OFF}
    s_lshl_b32 s{S_VPO}, s{S_RANK}, 10
    s_add_u32 s{S_VPO}, s{S_VPO}, {VP_OFF}
    v_mov_b32 v7, 16
    H_vp_step:
    """)
    for r in range(8):
        a(f"v_mov_b32 v{AC+r}, 0")
    mempoll(a, MFm, S_MO)
    for u in range(7):
        for t in range(2):
            a(f"v_smfmac_f32_16x16x64_bf16 {vr(AC+4*t,4)}, {vr(MFm+4*u,4)}, {WBr(t,2*u,8)}, v{IDX}")
    a(f"s_add_u32 s{S_STEP}, s{S_STEP}, 1")
    a(f"v_mov_b32 v8, s{S_STEP}")
    for t in range(2):
        a(f"v_cvt_pk_bf16_f32 v{O+2*t}, v{AC+4*t}, v{AC+4*t+1}")
        a(f"v_cvt_pk_bf16_f32 v{O+2*t+1}, v{AC+4*t+2}, v{AC+4*t+3}")
    a(f"""
    buffer_store_dwordx4 {vr(O,4)}, v{L16}, {WS}, s{S_VPO} offen sc1
    s_waitcnt vmcnt(0)
    s_mov_b64 exec, 1
    buffer_store_dword v8, v7, {WS}, s{S_FLG} offen sc1
    s_mov_b64 exec, -1
    s_add_u32 s{S_MO}, s{S_MO}, {MEMS_STEP}
    s_add_u32 s{S_VPO}, s{S_VPO}, {224*FR}
    s_cmp_lt_u32 s{S_STEP}, 64
    s_cbranch_scc1 H_vp_step
    s_waitcnt vmcnt(0)
    s_endpgm
    """)


def gen_f1(a):
    TXr, KX, MKr, D, MSK = 16, 72, 184, 240, 8
    MFm = KX
    V_FA, V_LB, V_MA, V_PM, V_FLG = 252, 253, 254, 255, 7
    S_S, S_N, S_QT, S_MO = 45, 46, 47, 48
    a(f"""
    s_sub_u32 s{S_QT}, s{S_WAVE}, 1
    s_mov_b32 s{S_S}, s{S_C}
    s_mov_b32 s{S_N}, 0
    s_lshl_b32 s{S_T0}, s{S_QT}, 4
    v_add_u32 v16, s{S_T0}, v{L15}
    v_lshlrev_b32 v17, 2, v{G}
    v_mov_b32 v18, {NEG}
    """)
    for kt in range(2):
        for r in range(4):
            a(f"v_add_u32 v19, {16*kt+r}, v17")
            a(f"v_cmp_le_u32 vcc, v19, v16")
            a(f"v_cndmask_b32 v{MSK+4*kt+r}, v18, 0, vcc")
    a(f"""
    s_lshl_b32 s{S_T0}, s{S_WAVE}, 13
    v_add_u32 v{V_LB}, s{S_T0}, v{L16}
    v_lshrrev_b32 v16, 1, v{G}
    v_lshlrev_b32 v16, 8, v16
    v_lshrrev_b32 v17, 1, v{L15}
    v_lshl_add_u32 v16, v17, 5, v16
    v_and_b32 v17, 1, v{G}
    v_lshl_add_u32 v16, v17, 3, v16
    v_add_u32 v{V_MA}, s{S_T0}, v16
    s_and_b32 s{S_T0}, s{S_H}, 1
    s_lshl_b32 s{S_T0}, s{S_T0}, 3
    v_add_u32 v{V_PM}, s{S_T0}, v{L16}
    v_min_u32 v16, 13, v{LN}
    s_mul_i32 s{S_T0}, s{S_H}, 14
    v_add_u32 v16, s{S_T0}, v16
    v_lshlrev_b32 v16, 6, v16
    v_add_u32 v{V_FA}, {PROG_OFF}, v16
    s_lshl_b32 s{S_T0}, s{S_QT}, 2
    s_add_u32 s{S_T0}, s{S_T0}, 20
    v_mov_b32 v{V_FLG}, s{S_T0}
    H_f1_step:
    s_and_b32 s{S_T0}, s{S_S}, 3
    s_lshl_b32 s{S_T0}, s{S_T0}, 2
    v_add_u32 v{D}, s{S_T0}, v{V_FA}
    s_lshr_b32 s{S_T0}, s{S_S}, 2
    v_mov_b32 v{D+1}, s{S_T0}
    """)
    flagwait(a, D, D + 1, D + 2)
    a(f"""
    s_lshl_b32 s{S_T0}, s{S_S}, 4
    s_add_u32 s{S_T0}, s{S_T0}, s{S_H}
    s_mul_i32 s{S_T0}, s{S_T0}, {28*FR}
    s_lshl_b32 s{S_T1}, s{S_QT}, 10
    s_add_u32 s{S_T0}, s{S_T0}, s{S_T1}
    s_add_u32 s{S_T0}, s{S_T0}, {TX_OFF}
    s_mul_i32 s{S_T1}, s{S_S}, {28*FR}
    s_add_u32 s{S_T1}, s{S_T1}, {XF_OFF}
    s_add_u32 s{S_T2}, s{S_T1}, {14*FR}
    """)
    for ks in range(14):
        a(f"buffer_load_dwordx4 {vr(TXr+4*ks,4)}, v{L16}, {WS}, s{S_T0} offen offset:{(ks&1)*2048} sc1")
        a(f"buffer_load_dwordx4 {vr(KX+8*ks,4)}, v{L16}, {WS}, s{S_T1} offen offset:{(ks&3)*1024}")
        a(f"buffer_load_dwordx4 {vr(KX+8*ks+4,4)}, v{L16}, {WS}, s{S_T2} offen offset:{(ks&3)*1024}")
        if ks & 1:
            a(f"s_add_u32 s{S_T0}, s{S_T0}, 4096")
        if ks & 3 == 3:
            a(f"s_add_u32 s{S_T1}, s{S_T1}, 4096\ns_add_u32 s{S_T2}, s{S_T2}, 4096")
    for ks in range(14):
        a(f"s_waitcnt vmcnt({39-3*ks})")
        for kt in range(2):
            c_ = vr(MSK + 4 * kt, 4) if ks == 0 else vr(D + 4 * kt, 4)
            a(f"v_mfma_f32_16x16x32_bf16 {vr(D+4*kt,4)}, {vr(KX+8*ks+4*kt,4)}, {vr(TXr+4*ks,4)}, {c_}")
    a(f"s_mul_i32 s{S_MO}, s{S_S}, {MEMS_STEP}")
    a(f"s_add_u32 s{S_MO}, s{S_MO}, {MEMR_OFF}")
    a("s_nop 7")
    mempoll(a, MFm, S_MO, sleep=2)
    for u in range(7):
        a(f"ds_write_b128 v{V_LB}, {vr(MFm+4*u,4)} offset:{u*1024}")
    a(f"v_mov_b32 v{TMP}, v{V_MA}")
    for ks in range(14):
        o = 128 * (ks & 1)
        a(f"ds_read2_b32 {vr(MKr+4*ks,2)}, v{TMP} offset0:{o} offset1:{o+4}")
        a(f"ds_read2_b32 {vr(MKr+4*ks+2,2)}, v{TMP} offset0:{o+1} offset1:{o+5}")
        if ks & 1:
            a(f"v_add_u32 v{TMP}, 1024, v{TMP}")
        if ks == 6:
            a("s_waitcnt lgkmcnt(0)")
    for ks in range(14):
        if ks >= 7:
            a(f"s_waitcnt lgkmcnt({2*(13-ks)})")
        c_ = "0" if ks == 0 else vr(D + 8, 4)
        a(f"v_mfma_f32_16x16x32_bf16 {vr(D+8,4)}, {vr(MKr+4*ks,4)}, {vr(TXr+4*ks,4)}, {c_}")
    Mx, T2 = KX, KX + 1
    a(f"""
    s_lshl_b32 s{S_T0}, s{S_S}, 1
    s_add_u32 s{S_T0}, s{S_T0}, s{S_QT}
    s_mul_i32 s{S_T0}, s{S_T0}, {24*FR}
    s_add_u32 s{S_T0}, s{S_T0}, {PX_OFF}
    s_lshl_b32 s{S_T1}, s{S_H}, 10
    s_add_u32 s{S_T1}, s{S_T1}, s{S_T0}
    s_lshr_b32 s{S_T2}, s{S_H}, 1
    s_lshl_b32 s{S_T2}, s{S_T2}, 10
    s_add_u32 s{S_T2}, s{S_T2}, s{S_T0}
    s_add_u32 s{S_T2}, s{S_T2}, {16*FR}
    v_max3_f32 v{Mx}, v{D}, v{D+1}, v{D+2}
    v_max3_f32 v{Mx}, v{Mx}, v{D+3}, v{D+4}
    v_max3_f32 v{Mx}, v{Mx}, v{D+5}, v{D+6}
    v_max3_f32 v{Mx}, v{Mx}, v{D+7}, v{D+8}
    v_max_f32 v{Mx}, v{Mx}, v{D+10}
    """)
    xg_reduce(a, "v_max_f32", Mx, T2)
    vals = list(range(D, D + 8)) + [D + 8, D + 10]
    for v in vals:
        a(f"v_sub_f32 v{v}, v{v}, v{Mx}")
    for v in vals:
        a(f"v_exp_f32 v{v}, v{v}")
    a(f"v_add_f32 v{Mx}, v{vals[0]}, v{vals[1]}")
    for v in vals[2:]:
        a(f"v_add_f32 v{Mx}, v{Mx}, v{v}")
    xg_reduce(a, "v_add_f32", Mx, T2)
    a(f"v_rcp_f32 v{Mx}, v{Mx}")
    for v in vals:
        a(f"v_mul_f32 v{v}, v{v}, v{Mx}")
    O = KX + 4
    for q in range(4):
        a(f"v_cvt_pk_bf16_f32 v{O+q}, v{D+2*q}, v{D+2*q+1}")
    a(f"""
    v_cvt_pk_bf16_f32 v{O+4}, v{D+8}, v{D+8}
    v_cvt_pk_bf16_f32 v{O+5}, v{D+10}, v{D+10}
    buffer_store_dwordx4 {vr(O,4)}, v{L16}, {WS}, s{S_T1} offen sc1
    buffer_store_dwordx2 {vr(O+4,2)}, v{V_PM}, {WS}, s{S_T2} offen sc1
    s_add_u32 s{S_N}, s{S_N}, 1
    v_mov_b32 v{TMP}, s{S_N}
    s_waitcnt vmcnt(0)
    s_mov_b64 exec, 1
    buffer_store_dword v{TMP}, v{V_FLG}, {WS}, s{S_FLG} offen sc1
    s_mov_b64 exec, -1
    s_add_u32 s{S_S}, s{S_S}, 14
    s_cmp_lt_u32 s{S_S}, 64
    s_cbranch_scc1 H_f1_step
    s_waitcnt vmcnt(0)
    s_endpgm
    """)


def gen_f2(a):
    PXX, PXM, VPr, D, XV, GV = 16, 80, 112, 176, 184, 188
    V_F0, V_F1, V_THR, V_VAL, V_OA = 8, 9, 10, 11, 12
    S_U, S_S, S_QT, S_MT, S_IDX, S_RS = 45, 46, 47, 48, 49, 50
    SO = 52
    a.label("H_f2")
    srd(a, SO, S_OUT, 2048 * 896)
    a(f"""
    v_mov_b32 v{V_F0}, {PROG_OFF+28}
    v_mov_b32 v{V_THR}, 0
    """)
    flagwait(a, V_F0, V_THR, V_VAL)
    a(f"""
    v_mov_b32 v{V_F0}, {PROG_OFF+32}
    buffer_load_dwordx2 v[14:15], v{V_F0}, {WS}, 0 offen sc1
    s_and_b32 s{S_QT}, s{S_H}, 1
    s_lshr_b32 s{S_S}, s{S_H}, 1
    s_mov_b32 s{S_U}, 0
    v_mul_u32_u24 v{V_F0}, {14*64}, v{L15}
    v_add_u32 v{V_F0}, {PROG_OFF}, v{V_F0}
    v_mul_u32_u24 v{V_OA}, 896, v{L15}
    v_lshl_add_u32 v{V_OA}, v{G}, 4, v{V_OA}
    s_waitcnt vmcnt(0)
    v_readfirstlane_b32 s{S_IDX}, v14
    v_cvt_pk_bf16_f32 v15, v15, v15
    v_and_b32 v15, 0xffff0000, v15
    v_mul_f32 v15, {f32hex(-LOG2E)}, v15
    v_exp_f32 v15, v15
    v_add_f32 v15, 1.0, v15
    v_rcp_f32 v15, v15
    v_cvt_pk_bf16_f32 v15, v15, v15
    v_and_b32 v15, 0xffff0000, v15
    v_readfirstlane_b32 s{S_RS}, v15
    H_f2_step:
    s_lshl_b32 s{S_MT}, s{S_S}, 1
    s_add_u32 s{S_MT}, s{S_MT}, s{S_QT}
    s_lshl_b32 s{S_T0}, s{S_C}, 6
    s_and_b32 s{S_T1}, s{S_S}, 3
    s_lshl_b32 s{S_T1}, s{S_T1}, 2
    s_add_u32 s{S_T1}, s{S_T1}, s{S_T0}
    v_add_u32 v{V_F1}, s{S_T1}, v{V_F0}
    s_lshr_b32 s{S_T1}, s{S_S}, 2
    v_mov_b32 v{V_THR}, s{S_T1}
    """)
    flagwait(a, V_F1, V_THR, V_VAL)
    a(f"""
    s_mul_i32 s{S_T0}, s{S_S}, {VX_STEP}
    s_lshl_b32 s{S_T1}, s{S_C}, 11
    s_add_u32 s{S_T0}, s{S_T0}, s{S_T1}
    s_add_u32 s{S_T0}, s{S_T0}, {VX_OFF}
    """)
    for h in range(16):
        for t in range(2):
            a(f"buffer_load_dwordx4 {ar(8*h+4*t,4)}, v{L16}, {WS}, s{S_T0} offen offset:{t*FR} sc1")
        a(f"s_add_u32 s{S_T0}, s{S_T0}, {28*FR}")
    a(f"""
    s_mul_i32 s{S_T0}, s{S_MT}, 14
    s_add_u32 s{S_T0}, s{S_T0}, s{S_C}
    s_lshl_b32 s{S_T0}, s{S_T0}, 10
    s_add_u32 s{S_T0}, s{S_T0}, {XF_OFF}
    buffer_load_dwordx4 {vr(XV,4)}, v{L16}, {WS}, s{S_T0} offen
    s_lshl_b32 s{S_T0}, s{S_MT}, 6
    s_add_u32 s{S_T0}, s{S_T0}, {RG_OFF+8192}
    v_lshlrev_b32 v13, 2, v{L15}
    buffer_load_dword v{GV}, v13, {WS}, s{S_T0} offen
    ; lanes 0..15: V' flag (h', c) word 4 > s ; lanes 16..: F1 flag (h', s%14) word 5+qt > s/14
    s_mul_i32 s{S_T1}, s{S_S}, 4682
    s_lshr_b32 s{S_T1}, s{S_T1}, 16
    s_mul_i32 s{S_T2}, s{S_T1}, 14
    s_sub_u32 s{S_T2}, s{S_S}, s{S_T2}
    s_lshl_b32 s{S_T2}, s{S_T2}, 6
    s_lshl_b32 s{S_T3}, s{S_QT}, 2
    s_add_u32 s{S_T2}, s{S_T2}, s{S_T3}
    s_add_u32 s{S_T2}, s{S_T2}, 20
    s_lshl_b32 s{S_T0}, s{S_C}, 6
    s_add_u32 s{S_T0}, s{S_T0}, 16
    v_mov_b32 v13, s{S_T0}
    v_mov_b32 v14, s{S_T2}
    v_mov_b32 v15, s{S_S}
    v_mov_b32 v{V_THR}, s{S_T1}
    v_cmp_gt_u32 vcc, 16, v{LN}
    v_cndmask_b32 v13, v14, v13, vcc
    v_cndmask_b32 v{V_THR}, v{V_THR}, v15, vcc
    v_add_u32 v{V_F1}, v13, v{V_F0}
    """)
    flagwait(a, V_F1, V_THR, V_VAL, sleep=2)
    a(f"""
    s_mul_i32 s{S_T0}, s{S_MT}, {24*FR}
    s_add_u32 s{S_T0}, s{S_T0}, {PX_OFF}
    s_mul_i32 s{S_T1}, s{S_S}, {224*FR}
    s_lshl_b32 s{S_T2}, s{S_C}, 10
    s_add_u32 s{S_T1}, s{S_T1}, s{S_T2}
    s_add_u32 s{S_T1}, s{S_T1}, {VP_OFF}
    """)
    for f in range(24):
        dst = PXX + 4 * f
        a(f"buffer_load_dwordx4 {vr(dst,4)}, v{L16}, {WS}, s{S_T0} offen offset:{(f&3)*FR} sc1")
        if f & 3 == 3:
            a(f"s_add_u32 s{S_T0}, s{S_T0}, 4096")
    for h in range(16):
        a(f"buffer_load_dwordx4 {vr(VPr+4*h,4)}, v{L16}, {WS}, s{S_T1} offen sc1")
        a(f"s_add_u32 s{S_T1}, s{S_T1}, {14*FR}")
    for h in range(16):
        a(f"s_waitcnt vmcnt({39-h})")
        for t in range(2):
            c_ = "0" if h == 0 else vr(D + 4 * t, 4)
            a(f"v_mfma_f32_16x16x32_bf16 {vr(D+4*t,4)}, {ar(8*h+4*t,4)}, {vr(PXX+4*h,4)}, {c_}")
    for hp in range(8):
        b = VPr + 8 * hp
        a(f"s_waitcnt vmcnt({14-2*hp})")
        a(f"v_swap_b32 v{b+2}, v{b+4}")
        a(f"v_swap_b32 v{b+3}, v{b+5}")
        for t in range(2):
            a(f"v_mfma_f32_16x16x32_bf16 {vr(D+4*t,4)}, {vr(b+4*t,4)}, {vr(PXM+4*hp,4)}, {vr(D+4*t,4)}")
    B = PXX
    for r in range(4):
        a(f"v_lshlrev_b32 v{B+2*r}, 16, v{XV+r}")
        a(f"v_and_b32 v{B+2*r+1}, 0xffff0000, v{XV+r}")
    a(f"""
    s_lshr_b32 s{S_T0}, s{S_IDX}, 4
    s_cmp_lg_u32 s{S_T0}, s{S_MT}
    s_cbranch_scc1 H_f2_nomod
    v_min_u32 v13, 27, v{LN}
    v_lshlrev_b32 v13, 6, v13
    v_add_u32 v13, {PROG_OFF+28}, v13
    v_mov_b32 v{V_THR}, 0
    """)
    flagwait(a, 13, V_THR, V_VAL)
    Y, YL = PXM, PXM + 8
    a(f"""
    v_lshlrev_b32 v13, 5, v{G}
    s_lshl_b32 s{S_T0}, s{S_C}, 7
    s_add_u32 s{S_T0}, s{S_T0}, {YM_OFF}
    s_mov_b32 s{S_T1}, 28
    """)
    for r in range(8):
        a(f"v_mov_b32 v{Y+r}, 0")
    a(f"""
    H_f2_ysum:
    buffer_load_dwordx4 {vr(YL,4)}, v13, {WS}, s{S_T0} offen sc1
    buffer_load_dwordx4 {vr(YL+4,4)}, v13, {WS}, s{S_T0} offen offset:16 sc1
    s_add_u32 s{S_T0}, s{S_T0}, 1792
    s_waitcnt vmcnt(0)
    """)
    for r in range(8):
        a(f"v_add_f32 v{Y+r}, v{Y+r}, v{YL+r}")
    a(f"""
    s_sub_u32 s{S_T1}, s{S_T1}, 1
    s_cmp_lg_u32 s{S_T1}, 0
    s_cbranch_scc1 H_f2_ysum
    s_and_b32 s{S_T0}, s{S_IDX}, 15
    v_cmp_eq_u32 vcc, s{S_T0}, v{L15}
    """)
    for r in range(8):
        rbf(a, Y + r)
        a(f"v_mul_f32 v{Y+r}, s{S_RS}, v{Y+r}")
        rbf(a, Y + r)
        a(f"v_add_f32 v{Y+r}, v{Y+r}, v{B+r}")
        rbf(a, Y + r)
        a(f"v_cndmask_b32 v{B+r}, v{B+r}, v{Y+r}, vcc")
    a.label("H_f2_nomod")
    OM = PXM + 16
    a(f"v_sub_f32 v{OM}, 1.0, v{GV}")
    rbf(a, OM)
    O = PXM + 20
    for r in range(4):
        lo, hi = D + r, D + 4 + r
        T = PXM + 24
        a(f"v_cvt_pk_bf16_f32 v{T}, v{lo}, v{hi}")
        a(f"v_lshlrev_b32 v{lo}, 16, v{T}")
        a(f"v_and_b32 v{hi}, 0xffff0000, v{T}")
        a(f"v_mul_f32 v{lo}, v{lo}, v{GV}")
        a(f"v_mul_f32 v{hi}, v{hi}, v{GV}")
        a(f"v_cvt_pk_bf16_f32 v{T}, v{lo}, v{hi}")
        a(f"v_lshlrev_b32 v{lo}, 16, v{T}")
        a(f"v_and_b32 v{hi}, 0xffff0000, v{T}")
        a(f"v_mul_f32 v{B+2*r}, v{B+2*r}, v{OM}")
        a(f"v_mul_f32 v{B+2*r+1}, v{B+2*r+1}, v{OM}")
        a(f"v_cvt_pk_bf16_f32 v{T}, v{B+2*r}, v{B+2*r+1}")
        a(f"v_lshlrev_b32 v{B+2*r}, 16, v{T}")
        a(f"v_and_b32 v{B+2*r+1}, 0xffff0000, v{T}")
        a(f"v_add_f32 v{lo}, v{lo}, v{B+2*r}")
        a(f"v_add_f32 v{hi}, v{hi}, v{B+2*r+1}")
        a(f"v_cvt_pk_bf16_f32 v{O+r}, v{lo}, v{hi}")
    a(f"""
    s_mul_i32 s{S_T0}, s{S_MT}, {16*896}
    s_lshl_b32 s{S_T1}, s{S_C}, 6
    s_add_u32 s{S_T0}, s{S_T0}, s{S_T1}
    buffer_store_dwordx4 {vr(O,4)}, v{V_OA}, s[{SO}:{SO+3}], s{S_T0} offen
    s_add_u32 s{S_S}, s{S_S}, 8
    s_add_u32 s{S_U}, s{S_U}, 1
    s_cmp_lt_u32 s{S_U}, 8
    s_cbranch_scc1 H_f2_step
    s_waitcnt vmcnt(0)
    s_endpgm
    """)
```

```python
from asmlib import *
from layout import *
import math, struct

def f32hex(x):
    return "0x%08x" % struct.unpack("<I", struct.pack("<f", x))[0]

C1 = math.log2(math.e) / 16.0
LOG2E = math.log2(math.e)


def srd(a, d, ptr, size):
    a(f"s_mov_b32 s{d}, s{ptr}\ns_mov_b32 s{d+1}, s{ptr+1}\ns_mov_b32 s{d+2}, {size}\ns_mov_b32 s{d+3}, 0x20000")


def gen_prep(a):
    WSZ_B = 448 * 4096 * 2
    WS_, SA_, SB_ = 24, 28, 32
    WSs, SAs, SBs = f"s[{WS_}:{WS_+3}]", f"s[{SA_}:{SA_+3}]", f"s[{SB_}:{SB_+3}]"
    sW, sH, sP, sJ, t0, t1, t2, t3 = 36, 37, 38, 39, 40, 41, 42, 43
    LN, G, L15 = 1, 2, 3
    a(f"""
    s_cmp_ge_u32 s2, 256
    s_cbranch_scc1 P_exit
    s_load_dwordx4 s[4:7], s[0:1], 0
    s_load_dwordx8 s[8:15], s[0:1], 16
    s_load_dwordx2 s[16:17], s[0:1], 64
    s_load_dwordx2 s[18:19], s[0:1], 96
    s_load_dwordx2 s[20:21], s[0:1], 120
    v_lshrrev_b32 v1, 6, v0
    v_readfirstlane_b32 s{sW}, v1
    v_and_b32 v{LN}, 63, v0
    v_lshrrev_b32 v{G}, 4, v{LN}
    v_and_b32 v{L15}, 15, v{LN}
    s_and_b32 s{t0}, s2, 7
    s_lshr_b32 s{t1}, s2, 3
    s_waitcnt lgkmcnt(0)
    """)
    srd(a, WS_, 20, 0x10000000)
    a(f"""
    s_cmp_ge_u32 s{t1}, 28
    s_cbranch_scc1 P_misc
    ; group q = xcd*4 + k/7, slice j = k%7
    s_mul_i32 s{t2}, s{t1}, 37
    s_lshr_b32 s{t2}, s{t2}, 8
    s_mul_i32 s{t3}, s{t2}, 7
    s_sub_u32 s{sJ}, s{t1}, s{t3}
    s_lshl_b32 s{t0}, s{t0}, 2
    s_add_u32 s{t0}, s{t0}, s{t2}
    s_lshr_b32 s{sH}, s{t0}, 1
    s_and_b32 s{sP}, s{t0}, 1
    s_cmp_eq_u32 s{sP}, 0
    s_cselect_b32 s{SA_}, s8, s12
    s_cselect_b32 s{SA_+1}, s9, s13
    s_mov_b32 s{SA_+2}, {WSZ_B}
    s_mov_b32 s{SA_+3}, 0x20000
    s_cselect_b32 s{SB_}, s10, s14
    s_cselect_b32 s{SB_+1}, s11, s15
    s_mov_b32 s{SB_+2}, {WSZ_B}
    s_mov_b32 s{SB_+3}, 0x20000
    """)
    BR, ACC, AF = 128, 96, 32
    VB, VT, RA = 4, 5, 8
    sBUF, sKS, sOUT = 44, 45, 46
    a(f"""
    v_lshrrev_b32 v6, 5, v{LN}
    v_and_b32 v7, 31, v{LN}
    v_xor_b32 v7, v7, v6
    v_lshlrev_b32 v7, 4, v7
    v_lshl_add_u32 v{VB}, v6, 13, v7
    s_lshl_b32 s{sBUF}, s{sW}, 14
    s_lshl_b32 s47, s{sH}, 9
    """)

    def dma_block(ks_sreg, bufoff):
        a(f"s_lshl_b32 s{t0}, s{ks_sreg}, 18")
        a(f"s_add_u32 s{t0}, s{t0}, s47")
        for i in range(16):
            k = ((i >> 2) << 2) | (2 * (i & 1))
            a(f"v_xor_b32 v{VT}, {k << 4}, v{VB}")
            a(f"s_add_u32 m0, s{sBUF}, {bufoff + i*1024}")
            a(f"buffer_load_dwordx4 v{VT}, {SAs}, s{t0} offen lds")
            if i < 15:
                a(f"s_add_u32 s{t0}, s{t0}, 16384")

    a(f"s_mov_b32 s{sKS}, s{sW}")
    dma_block(sKS, 0)
    a(f"""
    s_cmp_eq_u32 s{sP}, 0
    s_cbranch_scc0 P_stageWo
    """)
    a(f"""
    s_lshl_b32 s{t0}, s{sJ}, 19
    s_lshl_b32 s{t1}, s{sW}, 17
    s_add_u32 s{t0}, s{t0}, s{t1}
    s_add_u32 s{t0}, s{t0}, s47
    s_lshl_b32 s{t1}, s{sW}, 13
    s_add_u32 s{t1}, s{t1}, 65536
    s_and_b32 s{t2}, s{sW}, 1
    s_lshl_b32 s{t2}, s{t2}, 7
    v_xor_b32 v12, s{t2}, v{VB}
    """)
    for ii in range(8):
        k = ((ii >> 2) << 2) | (((ii >> 1) & 1) << 1)
        a(f"v_xor_b32 v{VT}, {k << 4}, v12")
        a(f"s_add_u32 m0, s{t1}, {ii*1024}")
        a(f"buffer_load_dwordx4 v{VT}, {SBs}, s{t0} offen lds")
        a(f"s_add_u32 s{t0}, s{t0}, 16384")
    a(f"""
    v_lshrrev_b32 v12, 2, v{L15}
    v_lshlrev_b32 v12, 3, v12
    v_bfe_u32 v13, v{L15}, 1, 1
    v_lshl_add_u32 v12, v13, 2, v12
    v_and_b32 v13, 1, v{L15}
    v_add_u32 v12, v12, v13
    v_lshlrev_b32 v12, 9, v12
    v_add_u32 v12, 65536, v12
    """)
    for e in range(4):
        a(f"v_add_u32 v13, {4*e}, v{G}")
        a(f"v_xor_b32 v13, v13, v{L15}")
        a(f"v_lshl_add_u32 v{RA+e}, v13, 4, v12")
    a("s_waitcnt vmcnt(0)")
    a("s_barrier")
    for tl in range(4):
        for es in range(8):
            a(f"ds_read_b128 {vr(BR+32*tl+4*es,4)}, v{RA+(es&3)} offset:{(tl>>1)*16384+(tl&1)*1024+(es>>2)*256}")
            if es == 7 and tl in (1, 3):
                a("s_waitcnt lgkmcnt(0)")
    a("s_branch P_bdone")
    a.label("P_stageWo")
    a(f"""
    v_lshrrev_b32 v12, 3, v{LN}
    v_and_b32 v13, 7, v{LN}
    v_mul_u32_u24 v14, 896, v12
    v_lshl_add_u32 v14, v13, 4, v14
    s_lshl_b32 s{t0}, s{sH}, 8
    s_lshl_b32 s{t1}, s{sW}, 6
    s_add_u32 s{t0}, s{t0}, s{t1}
    s_mul_i32 s{t0}, s{t0}, 896
    s_lshl_b32 s{t2}, s{sJ}, 7
    s_add_u32 s{t0}, s{t0}, s{t2}
    """)
    for i in range(8):
        a(f"buffer_load_dwordx4 {vr(AF+4*i,4)}, v14, {SBs}, s{t0} offen")
        a(f"s_add_u32 s{t0}, s{t0}, {8*896}")
    a(f"""
    v_mul_u32_u24 v15, 192, v12
    v_lshrrev_b32 v16, 2, v13
    v_lshl_add_u32 v15, v16, 6, v15
    v_and_b32 v16, 3, v13
    v_lshl_add_u32 v15, v16, 3, v15
    s_mul_i32 s{t1}, s{t1}, 192
    s_add_u32 s{t1}, s{t1}, 65536
    v_add_u32 v15, s{t1}, v15
    s_mov_b32 s{t2}, 0x05040100
    s_mov_b32 s{t3}, 0x07060302
    """)
    for i in range(8):
        d = AF + 4 * i
        a(f"s_waitcnt vmcnt({7-i})")
        a(f"v_perm_b32 v16, v{d+1}, v{d}, s{t2}")
        a(f"v_perm_b32 v17, v{d+3}, v{d+2}, s{t2}")
        a(f"v_perm_b32 v18, v{d+1}, v{d}, s{t3}")
        a(f"v_perm_b32 v19, v{d+3}, v{d+2}, s{t3}")
        a(f"ds_write_b64 v15, v[16:17] offset:{i*1536+(i&1)*32}")
        a(f"ds_write_b64 v15, v[18:19] offset:{i*1536+(i&1)*32+32}")
    a(f"""
    v_lshrrev_b32 v12, 2, v{L15}
    v_lshl_add_u32 v12, v{G}, 3, v12
    v_mul_u32_u24 v12, 192, v12
    v_and_b32 v13, 1, v{G}
    v_lshl_add_u32 v12, v13, 5, v12
    v_and_b32 v13, 3, v{L15}
    v_lshl_add_u32 v12, v13, 3, v12
    v_add_u32 v12, 65536, v12
    s_waitcnt lgkmcnt(0)
    s_barrier
    """)
    for tl in range(4):
        for es in range(8):
            for hh in range(2):
                a(f"ds_read_b64_tr_b16 {vr(BR+32*tl+4*es+2*hh,2)}, v12 offset:{es*6144+hh*768+tl*32}")
            if es in (3, 7):
                a("s_waitcnt lgkmcnt(0)")
    a.label("P_bdone")
    a("s_barrier")
    a(f"""
    v_lshrrev_b32 v12, 2, v{L15}
    v_lshlrev_b32 v12, 3, v12
    v_and_b32 v13, 3, v{L15}
    v_add_u32 v12, v12, v13
    v_lshlrev_b32 v12, 9, v12
    v_add_u32 v12, s{sBUF}, v12
    """)
    for e in range(4):
        a(f"v_add_u32 v13, {4*e}, v{G}")
        a(f"v_xor_b32 v13, v13, v{L15}")
        a(f"v_lshl_add_u32 v{RA+e}, v13, 4, v12")
    a(f"""
    v_lshlrev_b32 v6, 4, v{LN}
    s_mul_i32 s{sOUT}, s{sH}, 28
    s_lshl_b32 s{t0}, s{sJ}, 2
    s_add_u32 s{sOUT}, s{sOUT}, s{t0}
    s_mul_i32 s{sOUT}, s{sOUT}, {14*FR}
    s_mul_i32 s{t0}, s{sP}, {WB_OFF}
    s_add_u32 s{sOUT}, s{sOUT}, s{t0}
    s_cmp_eq_u32 s{sP}, 0
    s_cselect_b32 s48, {f32hex(C1)}, 1.0
    """)
    for it in range(4):
        if it == 3:
            a(f"s_cmp_ge_u32 s{sW}, 2\ns_cbranch_scc1 P_done")
        nxt = it < 3
        if nxt:
            a(f"s_add_u32 s49, s{sKS}, 4")
            if it == 2:
                a(f"s_min_u32 s49, s49, 13")
            dma_block(49, 65536 if it % 2 == 0 else 0)
        pend = (16 if nxt else 0) + (4 if it > 0 else 0)
        a(f"s_waitcnt vmcnt({pend})")
        for es in range(8):
            for tt in range(2):
                a(f"ds_read_b128 {vr(AF+8*es+4*tt,4)}, v{RA+(es&3)} offset:{tt*2048+(es>>2)*256}")
        for es in range(8):
            a(f"s_waitcnt lgkmcnt({14-2*es})")
            for tt in range(2):
                for tl in range(4):
                    d = ACC + 8 * tl + 4 * tt
                    a(f"v_mfma_f32_16x16x32_bf16 {vr(d,4)}, {vr(AF+8*es+4*tt,4)}, {vr(BR+32*tl+4*es,4)}, {'0' if es == 0 else vr(d,4)}")
        for e in range(4):
            a(f"v_xor_b32 v{RA+e}, 65536, v{RA+e}")
        a(f"s_lshl_b32 s{t0}, s{sKS}, 10")
        a(f"s_add_u32 s{t0}, s{t0}, s{sOUT}")
        for tl in range(4):
            d = ACC + 8 * tl
            for r in range(8):
                a(f"v_mul_f32 v{d+r}, s48, v{d+r}")
            o = 12 + 4 * tl
            for q in range(4):
                a(f"v_cvt_pk_bf16_f32 v{o+q}, v{d+2*q}, v{d+2*q+1}")
            a(f"buffer_store_dwordx4 {vr(o,4)}, v6, {WSs}, s{t0} offen")
            a(f"s_add_u32 s{t0}, s{t0}, {14*FR}")
        a(f"s_add_u32 s{sKS}, s{sKS}, 4")
    a.label("P_done")
    a("s_waitcnt vmcnt(0)")
    a.label("P_exit")
    a("s_endpgm")

    a.label("P_misc")
    sM = 44
    XS_ = SA_
    a(f"""
    s_lshl_b32 s{t0}, s{t0}, 2
    s_sub_u32 s{t1}, s{t1}, 28
    s_add_u32 s{sM}, s{t0}, s{t1}
    """)
    srd(a, XS_, 4, 2048 * 896)
    a(f"""
    v_lshlrev_b32 v4, 4, v{LN}
    s_lshl_b32 s{t0}, s{sM}, 6
    s_lshl_b32 s{t1}, s{sW}, 4
    s_add_u32 s{t0}, s{t0}, s{t1}
    s_mul_i32 s{t0}, s{t0}, 896
    s_mul_i32 s{t1}, s{t1}, 912
    s_mov_b32 exec_lo, -1
    s_mov_b32 exec_hi, 0x00ffffff
    """)
    for r in range(16):
        a(f"s_add_u32 m0, s{t1}, {r*912}")
        a(f"buffer_load_dwordx4 v4, {SAs}, s{t0} offen lds")
        a(f"s_add_u32 s{t0}, s{t0}, 896")
    a("s_mov_b64 exec, -1")
    srd(a, SB_, 16, 896)
    a(f"v_lshlrev_b32 v5, 4, v{G}")
    for ks in range(14):
        a(f"buffer_load_dwordx4 {vr(128+4*ks,4)}, v5, {SBs}, 0 offen offset:{64*ks}")
    srd(a, 48, 18, 896)
    for ks in range(14):
        a(f"buffer_load_dwordx4 {vr(192+4*ks,4)}, v5, s[48:51], 0 offen offset:{64*ks}")
    NS = SENT_END - MEMS_OFF
    per = -(-NS // (128 * 1024))
    a(f"""
    v_mov_b32 v8, -1
    v_mov_b32 v9, -1
    v_mov_b32 v10, -1
    v_mov_b32 v11, -1
    s_lshl_b32 s{t0}, s{sM}, 2
    s_add_u32 s{t0}, s{t0}, s{sW}
    s_lshl_b32 s{t2}, s{t0}, 7
    s_mul_i32 s{t0}, s{t0}, {per*1024}
    s_add_u32 s{t0}, s{t0}, {MEMS_OFF}
    """)
    for k in range(per):
        a(f"""
        s_sub_u32 s{t1}, s{t0}, {MEMS_OFF}
        s_cmp_lt_u32 s{t1}, {MEMS_STEP}
        s_cselect_b32 s{t3}, 0x7ffffff0, s{t0}
        s_sub_u32 s{t1}, s{t0}, {MEMR_OFF}
        s_cmp_lt_u32 s{t1}, {MEMS_STEP}
        s_cselect_b32 s{t3}, 0x7ffffff0, s{t3}
        s_cmp_ge_u32 s{t0}, {SENT_END}
        s_cselect_b32 s{t3}, 0x7ffffff0, s{t3}
        buffer_store_dwordx4 v[8:11], v4, {WSs}, s{t3} offen
        s_add_u32 s{t0}, s{t0}, 1024
        """)
    a(f"""
    v_mov_b32 v12, 0
    v_lshlrev_b32 v13, 2, v{LN}
    s_add_u32 s{t2}, s{t2}, {PROG_OFF}
    s_mov_b32 exec_hi, 0
    buffer_store_dword v12, v13, {WSs}, s{t2} offen
    s_mov_b64 exec, -1
    s_cmp_lg_u32 s{sM}, 0
    s_cbranch_scc1 P_nomem
    """)
    srd(a, 52, 6, 7168)
    a(f"""
    v_bfe_u32 v12, v{LN}, 1, 3
    v_mul_u32_u24 v12, 896, v12
    v_lshl_add_u32 v12, v{G}, 5, v12
    v_and_b32 v13, 1, v{LN}
    v_lshl_add_u32 v12, v13, 2, v12
    s_lshl_b32 s{t0}, s{sW}, 3
    s_lshl_b32 s{t1}, s{sW}, 2
    v_add_u32 v13, s{t1}, v4
    """)
    for ks in range(7):
        a(f"buffer_load_dword v{16+ks}, v12, s[52:55], s{t0} offen offset:{128*ks}")
    a(f"s_mov_b32 s{t0}, {MEMS_OFF}\ns_mov_b32 s{t1}, {MEMR_OFF}")
    a("s_waitcnt vmcnt(0)")
    for ks in range(7):
        a(f"buffer_store_dword v{16+ks}, v13, {WSs}, s{t0} offen")
        a(f"buffer_store_dword v{16+ks}, v13, {WSs}, s{t1} offen")
        a(f"s_add_u32 s{t0}, s{t0}, 1024\ns_add_u32 s{t1}, s{t1}, 1024")
    a.label("P_nomem")
    a("s_waitcnt vmcnt(0)")
    a("s_barrier")
    a(f"""
    s_lshl_b32 s{t0}, s{sW}, 4
    v_add_u32 v6, s{t0}, v{L15}
    v_mul_u32_u24 v6, 912, v6
    v_lshl_add_u32 v6, v{G}, 4, v6
    s_lshl_b32 s{t0}, s{sM}, 2
    s_add_u32 s{t0}, s{t0}, s{sW}
    s_lshl_b32 s{t2}, s{t0}, 6
    s_mul_i32 s{t0}, s{t0}, {14*FR}
    s_add_u32 s{t0}, s{t0}, {XF_OFF}
    v_mov_b32 v8, 0
    v_mov_b32 v9, 0
    """)
    for ks in range(14):
        a(f"ds_read_b128 {vr(16+4*ks,4)}, v6 offset:{64*ks}")
    for ks in range(14):
        a(f"s_waitcnt lgkmcnt({13-ks})")
        a(f"buffer_store_dwordx4 {vr(16+4*ks,4)}, v4, {WSs}, s{t0} offen")
        a(f"s_add_u32 s{t0}, s{t0}, 1024")
        for q in range(4):
            a(f"v_dot2_f32_bf16 v8, v{16+4*ks+q}, v{128+4*ks+q}, v8")
            a(f"v_dot2_f32_bf16 v9, v{16+4*ks+q}, v{192+4*ks+q}, v9")
    a(f"""
    v_mov_b32 v10, v8
    v_mov_b32 v11, v9
    v_permlane16_swap_b32 v8, v10
    v_permlane16_swap_b32 v9, v11
    v_add_f32 v8, v8, v10
    v_add_f32 v9, v9, v11
    v_mov_b32 v10, v8
    v_mov_b32 v11, v9
    v_permlane32_swap_b32 v8, v10
    v_permlane32_swap_b32 v9, v11
    v_add_f32 v8, v8, v10
    v_add_f32 v9, v9, v11
    v_cvt_pk_bf16_f32 v9, v9, v9
    v_and_b32 v9, 0xffff0000, v9
    v_mul_f32 v9, {f32hex(-LOG2E)}, v9
    v_exp_f32 v9, v9
    v_add_f32 v9, 1.0, v9
    v_rcp_f32 v9, v9
    v_cvt_pk_bf16_f32 v9, v9, v9
    v_and_b32 v9, 0xffff0000, v9
    s_add_u32 s{t2}, s{t2}, {RG_OFF}
    v_lshlrev_b32 v13, 2, v{LN}
    s_mov_b64 exec, 0xffff
    buffer_store_dword v8, v13, {WSs}, s{t2} offen
    s_add_u32 s{t2}, s{t2}, 8192
    buffer_store_dword v9, v13, {WSs}, s{t2} offen
    s_mov_b64 exec, -1
    """)
    sODD, sCC0, sCCL = 45, 46, 47
    a(f"""
    s_and_b32 s{sODD}, s{sW}, 1
    s_mul_i32 s{t0}, s{sW}, 7
    s_add_u32 s{sCC0}, s{t0}, s{sODD}
    s_lshr_b32 s{sCC0}, s{sCC0}, 1
    s_add_u32 s{t1}, s{t0}, 6
    s_cmp_eq_u32 s{sODD}, 1
    s_cselect_b32 s{sCCL}, s{t0}, s{t1}
    s_lshr_b32 s{sCCL}, s{sCCL}, 1
    v_and_b32 v20, 1, v{G}
    v_lshrrev_b32 v21, 1, v{G}
    v_cmp_eq_u32 vcc, 1, v20
    v_add_u32 v22, s{sCC0}, v20
    s_add_u32 s{t0}, s{sCC0}, 2
    v_mov_b32 v23, s{t0}
    v_mov_b32 v24, s{sCCL}
    v_cndmask_b32 v23, v23, v24, vcc
    v_mov_b32 v24, s{sODD}
    v_cndmask_b32 v24, 0, v24, vcc
    v_bfe_u32 v25, v{L15}, 1, 1
    v_lshlrev_b32 v25, 4, v25
    v_lshrrev_b32 v26, 2, v{L15}
    v_lshl_add_u32 v25, v26, 2, v25
    v_and_b32 v26, 1, v{L15}
    v_lshl_add_u32 v25, v26, 1, v25
    v_mul_u32_u24 v25, 912, v25
    v_lshl_add_u32 v25, v21, 4, v25
    v_lshl_add_u32 v6, v22, 6, v25
    v_lshl_add_u32 v7, v23, 6, v25
    v_lshl_add_u32 v7, v24, 2, v7
    s_lshl_b32 s{t0}, s{sM}, 1
    s_mul_i32 s{t0}, s{t0}, {XK_STEP}
    s_lshl_b32 s{t1}, s{sW}, 13
    s_add_u32 s{t0}, s{t0}, s{t1}
    s_add_u32 s{t0}, s{t0}, {XK_OFF}
    """)
    for seg in range(2):
        base = 32 + 32 * seg
        for t in range(2):
            for b in range(2):
                off = seg * 32 * 912 + t * 912 + b * 32
                a(f"ds_read_b128 {vr(base+8*t+4*b,4)}, v6 offset:{off}")
        a(f"v_add_u32 v5, {seg*32*912}, v7")
        for t in range(2):
            for b in range(2):
                o4 = (t * 912 + b * 32) // 4
                a(f"ds_read2_b32 {vr(base+16+8*t+4*b,2)}, v5 offset0:{o4} offset1:{o4+1}")
                a(f"ds_read2_b32 {vr(base+16+8*t+4*b+2,2)}, v5 offset0:{o4+2} offset1:{o4+3}")
        a("s_waitcnt lgkmcnt(0)")
        for f in range(8):
            a(f"buffer_store_dwordx4 {vr(base+4*f,4)}, v4, {WSs}, s{t0} offen offset:{(f&3)*1024}")
            if f == 3:
                a(f"s_add_u32 s{t0}, s{t0}, 4096")
        a(f"s_add_u32 s{t0}, s{t0}, {XK_STEP-4096}")
    a("s_waitcnt vmcnt(0)")
    a("s_endpgm")
```

```python
D, H, M, SEG, NSEG = 448, 16, 8, 32, 64
FR = 1024
WA_OFF = 0x0
WSZ = 16 * 28 * 14 * FR
WB_OFF = WSZ
VX_OFF = 2 * WSZ
VXSZ = 64 * 16 * 14 * 2 * FR
VX_STEP = 16 * 28 * FR
TX_OFF = VX_OFF + VXSZ
MEMS_OFF = TX_OFF + VXSZ
MEMS_STEP = 7 * FR
PS_OFF = MEMS_OFF + 64 * MEMS_STEP
PS_W = 3 * FR
PS_STEP = 4 * PS_W
MEMR_OFF = PS_OFF + 64 * PS_STEP
SENT_END = MEMR_OFF + 64 * MEMS_STEP
PROG_OFF = SENT_END
PROG_SZ = 256 * 64
XK_OFF = PROG_OFF + PROG_SZ
XK_STEP = 32 * FR
XF_OFF = XK_OFF + 64 * XK_STEP
RG_OFF = XF_OFF + 128 * 14 * FR
VP_OFF = RG_OFF + 16384
PX_OFF = VP_OFF + 64 * 224 * FR
PX_U = 1536
YM_OFF = PX_OFF + 64 * 2 * 16 * PX_U
STAMP_OFF = YM_OFF + 65536
WS_USED = STAMP_OFF + (1 << 20)


def colA(tile, m):
    return 32 * (tile >> 1) + 8 * (m >> 2) + 4 * (tile & 1) + (m & 3)


def colB(tile, m):
    return 32 * (tile >> 1) + 2 * m + (tile & 1)


def xkey_of_slot(gb, s):
    return 4 * gb + s if s < 4 else 16 + 4 * gb + (s - 4)


def skey(t, n):
    return 16 * ((n >> 1) & 1) + 4 * (n >> 2) + 2 * (n & 1) + t


def xk_col(w, sg, beta, gb):
    odd = w & 1
    cc0 = (7 * w + odd) >> 1
    ccl = (7 * w if odd else 7 * w + 6) >> 1
    if sg == 0:
        return 32 * (cc0 + (gb & 1)) + 8 * (2 * beta + (gb >> 1))
    if gb & 1:
        return 32 * ccl + 8 * (2 * beta + (gb >> 1))
    return 32 * (cc0 + 2) + 8 * (2 * beta + (gb >> 1))
```

```python
import sys
from asmlib import *
from layout import *
import gen_chain as gc
import gen_prep as gp

HDR = open("gated_mix__memory_aug_recurrent_mem_tr__moe_arch_mod__prompt.s.ref").read().split("; Override launch")[0]

def kd(name, vgpr, accum, sgpr=102):
    return f""".p2align 6
.amdhsa_kernel {name}
  .amdhsa_next_free_vgpr {vgpr}
  .amdhsa_next_free_sgpr {sgpr}
  .amdhsa_accum_offset {accum}
  .amdhsa_group_segment_fixed_size 0
  .amdhsa_kernarg_size 128
  .amdhsa_user_sgpr_count 2
  .amdhsa_user_sgpr_kernarg_segment_ptr 1
  .amdhsa_system_sgpr_workgroup_id_x 1
.end_amdhsa_kernel
"""

def kstart(a, name):
    a.raw(f".globl {name}\n.p2align 8\n.type {name},@function\n{name}:")
    a.hist = []

def build(diag=False, force_fb=False, prep=True, main=True, helpers=True):
    a = Asm()
    hdr = HDR
    kds = ""
    if prep:
        kstart(a, "prep_kernel")
        gp.gen_prep(a)
        hdr += "; @launch kernel=prep_kernel grid=(256,1,1) block=(256,1,1) lds=131072\n"
        kds += kd("prep_kernel", 256, 256)
    if main:
        kstart(a, "main_kernel")
        gc.gen_main_prologue(a, force_fb, diag)
        if helpers:
            import gen_help as gh
            gh.gen_helper(a, diag)
        a.label("L_exit")
        a("s_endpgm")
        gc.gen_T(a, diag)
        gc.gen_V(a, diag)
        gc.gen_warm(a)
        hdr += "; @launch kernel=main_kernel grid=(256,1,1) block=(256,1,1) lds=131072\n"
        kds += kd("main_kernel", 512, 256)
    txt = hdr + '.amdgcn_target "amdgcn-amd-amdhsa--gfx950"\n.text\n' + a.text() + '.section .rodata,"a"\n' + kds
    return txt, a

if __name__ == "__main__":
    for kv in sys.argv[2:]:
        if "=" in kv:
            k, v = kv.split("="); gc.OPT[k] = int(v)
    txt, a = build(diag="diag" in sys.argv, force_fb="fb" in sys.argv, prep="noprep" not in sys.argv,
                   main="nomain" not in sys.argv, helpers="nohelp" not in sys.argv)
    open(sys.argv[1], "w").write(txt)
    print("pads:", a.pads, "lines", len(a.lines))
    if "v" in sys.argv:
        for ln, p, t in a.padlog: print("  pad", p, "before", t)
```

```python
from asmlib import *
from layout import *

S_X, S_OUT, S_DBG, S_WS = 4, 8, 10, 12
SRD_WS, SRD_X, SRD_DBG = 16, 20, 24
S_WAVE, S_ROLE, S_FB, S_LIM, S_CNT, S_STEP = 28, 29, 30, 31, 32, 33
S_K = 34
S_T0, S_T1, S_T2, S_T3 = 41, 42, 43, 44
S_MEMOFF, S_PSOFF = 45, 46
S_XO = 47
S_SLP, S_SL2 = 48, 49
S_RDY, S_MN = 56, 57
S_XB = 58
S_STP = 60
S_CNTS = 64
S_STB = 87
SPIN_LIMIT = 200000
OPT = dict(sleepT=0, sleepV=0, nox=0, sleepVm=1, memtime=0, novx=0, lat=0, nowarm=0, lead=3, wide=0, adapt=0, nomn=1, vdelay=0, lo=1, hi=2, nvx=0, rsleep=16)
WS = f"s[{SRD_WS}:{SRD_WS+3}]"
XS = f"s[{SRD_X}:{SRD_X+3}]"
OOB = 0x7FFFFFF0

T_TR, T_PART = 8192, 16384
V_PART, V_WL = 8192, 16384
NWL = 12

V_IDX, V_FA, V_TMP = 1, 2, 19
MF, ACC = 20, 48
LN, G4, L15 = 40, 41, 42


def common_setup(a):
    a(f"""
    v_and_b32 v{LN}, 63, v0
    v_lshrrev_b32 v{G4}, 4, v{LN}
    v_and_b32 v{L15}, 15, v{LN}
    v_and_b32 v20, 1, v0
    v_cmp_eq_u32 vcc, 0, v20
    v_mov_b32 v20, 0xEEEE
    v_mov_b32 v21, 0x4444
    v_cndmask_b32 v{V_IDX}, v20, v21, vcc
    s_lshl_b32 s{S_T0}, s{S_WAVE}, 1
    """)
    for u in range(7):
        a(f"""
        s_add_u32 s{S_T1}, s{S_T0}, {u}
        s_sub_u32 s{S_T2}, s{S_T1}, 7
        s_cmp_ge_u32 s{S_T1}, 7
        s_cselect_b32 s{S_K+u}, s{S_T2}, s{S_T1}
        s_lshl_b32 s{S_T1}, s{S_K+u}, 10
        v_lshl_add_u32 v{V_FA+u}, v{LN}, 4, s{S_T1}
        """)
    a(f"s_mov_b32 s{S_LIM}, {SPIN_LIMIT}")
    a(f"s_mov_b32 s{S_STEP}, 0")
    a(f"s_mov_b32 s{S_MEMOFF}, {MEMS_OFF}")
    a(f"s_mov_b32 s{S_PSOFF}, {PS_OFF}")


def poll(a, loads, regs, depth2=True, sleep=0):
    n = len(loads)
    top, done = a.newlabel("poll"), a.newlabel("polled")
    a(f"s_mov_b32 s{S_CNT}, s{S_LIM}")
    if depth2:
        for l in loads:
            a(l)
    a.label(top)
    for l in loads:
        a(l)
    a(f"s_waitcnt vmcnt({n if depth2 else 0})")
    r = list(regs)
    a(f"v_max3_u32 v{V_TMP}, v{r[0]}, v{r[1]}, v{r[2]}")
    r = r[3:]
    while len(r) >= 2:
        a(f"v_max3_u32 v{V_TMP}, v{V_TMP}, v{r[0]}, v{r[1]}"); r = r[2:]
    if r:
        a(f"v_max_u32 v{V_TMP}, v{V_TMP}, v{r[0]}")
    a(f"v_cmp_eq_u32 vcc, -1, v{V_TMP}")
    a(f"s_cbranch_vccz {done}")
    if sleep:
        a(f"s_sleep {sleep}")
    a(f"""
    s_sub_u32 s{S_CNT}, s{S_CNT}, 1
    s_cmp_lg_u32 s{S_CNT}, 0
    s_cbranch_scc1 {top}
    s_mov_b32 s{S_LIM}, 1
    """)
    a.label(done)


def backoff(a, sreg):
    top, done = a.newlabel("bo"), a.newlabel("bod")
    a(f"""
    s_mov_b32 s{S_T0}, s{sreg}
    {top}:
    s_cmp_eq_u32 s{S_T0}, 0
    s_cbranch_scc1 {done}
    s_sleep 1
    s_sub_u32 s{S_T0}, s{S_T0}, 1
    s_branch {top}
    {done}:
    """)


def adapt(a, sreg, saved):
    lo, hi = OPT["lo"], OPT["hi"]
    a(f"""
    s_sub_u32 s{S_T0}, s{S_LIM}, s{saved}
    s_sub_u32 s{S_T1}, s{sreg}, 1
    s_max_i32 s{S_T1}, s{S_T1}, 0
    s_cmp_lt_u32 s{S_T0}, {lo}
    s_cselect_b32 s{sreg}, s{S_T1}, s{sreg}
    s_sub_u32 s{S_T1}, s{S_T0}, {hi}
    s_add_u32 s{S_T1}, s{S_T1}, s{sreg}
    s_min_u32 s{S_T1}, s{S_T1}, 48
    s_cmp_gt_u32 s{S_T0}, {hi}
    s_cselect_b32 s{sreg}, s{S_T1}, s{sreg}
    """)


def stamp(a, k, diag):
    if diag:
        a(f"{'s_memtime' if OPT['memtime'] else 's_memrealtime'} s[{S_STP+2*k}:{S_STP+2*k+1}]")


def stamp_setup(a, diag):
    if diag:
        a(f"s_lshl_b32 s{S_STB}, s{S_ROLE}, 2\ns_add_u32 s{S_STB}, s{S_STB}, s{S_WAVE}\ns_lshl_b32 s{S_STB}, s{S_STB}, 11\ns_add_u32 s{S_STB}, s{S_STB}, {STAMP_OFF}")


def stamp_store(a, n, diag, t0, t1):
    if not diag:
        return
    a("s_waitcnt lgkmcnt(0)")
    a(f"s_lshl_b32 s{S_T0}, s{S_STEP}, 5")
    a(f"s_add_u32 s{S_T0}, s{S_T0}, s{S_STB}")
    a("s_mov_b64 exec, 1")
    for k in range(n):
        a(f"v_mov_b32 v{t0}, s{S_STP+2*k}")
        a(f"v_mov_b32 v{t1}, {4*k}")
        a(f"buffer_store_dword v{t0}, v{t1}, {WS}, s{S_T0} offen")
    a("s_mov_b64 exec, -1")


EVT_OFF = STAMP_OFF + (1 << 19)


def evt(a, k, diag, t0, t1, role=None):
    if not diag:
        return
    a(f"""
    s_memrealtime s[96:97]
    s_lshl_b32 s98, s{S_ROLE if role is None else role}, 2
    s_add_u32 s98, s98, s{S_WAVE}
    s_lshl_b32 s98, s98, 5
    s_add_u32 s98, s98, {EVT_OFF + 4*k}
    s_waitcnt lgkmcnt(0)
    v_mov_b32 v{t0}, s96
    v_mov_b32 v{t1}, 0
    s_mov_b64 exec, 1
    buffer_store_dword v{t0}, v{t1}, {WS}, s98 offen
    s_mov_b64 exec, -1
    s_waitcnt vmcnt(0)
    """)


def smf(acc, A, B):
    return f"v_smfmac_f32_16x16x64_bf16 {vr(acc,4)}, {vr(A,4)}, {B}, v{V_IDX}"


DPPS = ["quad_perm:[1,0,3,2]", "quad_perm:[2,3,0,1]", "row_half_mirror", "row_mirror"]


def mem_polls():
    return [f"buffer_load_dwordx4 {vr(MF+4*u,4)}, v{V_FA+u}, {WS}, s{S_MEMOFF} offen sc1" for u in range(2)]


def gen_T(a, diag=False):
    SA, XK = 76, 88
    (V_XA0, V_XA1, V_MK0, V_MK1, V_TW, V_TRD, V_PW, V_PR, V_PA0, V_PA1) = range(9, 19)
    V_MASK = 0

    def W(jj, u):
        o = (u * 7 + jj) if u < 2 else 14 + jj * 5 + (u - 2)
        return ar(8 * o, 8) if o < 32 else vr(120 + 8 * (o - 32), 8)

    a.label("L_role_T")
    a.c("T role: head = S_ROLE")
    evt(a, 1, diag, 20, 21)
    common_setup(a)
    h = S_ROLE
    S_ODD, S_TAU0, S_TAUL, S_CC0, S_CCL = 80, 81, 82, 83, 84
    a(f"""
    s_and_b32 s{S_ODD}, s{S_WAVE}, 1
    s_mul_i32 s{S_T0}, s{S_WAVE}, 7
    s_add_u32 s{S_TAU0}, s{S_T0}, s{S_ODD}
    s_lshr_b32 s{S_CC0}, s{S_TAU0}, 1
    s_add_u32 s{S_T1}, s{S_T0}, 6
    s_cmp_eq_u32 s{S_ODD}, 1
    s_cselect_b32 s{S_TAUL}, s{S_T0}, s{S_T1}
    s_lshr_b32 s{S_CCL}, s{S_TAUL}, 1
    v_lshlrev_b32 v43, 4, v{LN}
    s_mul_i32 s{S_T3}, s{h}, {28*14*FR}
    """)
    a.c("weights -> registers")
    for jj in range(7):
        if jj < 6:
            a(f"s_add_u32 s{S_T0}, s{S_TAU0}, {jj}")
        else:
            a(f"s_mov_b32 s{S_T0}, s{S_TAUL}")
        a(f"s_mul_i32 s{S_T0}, s{S_T0}, {14*FR}")
        a(f"s_add_u32 s{S_T0}, s{S_T0}, s{S_T3}")
        for u in range(7):
            w = W(jj, u)
            k, base = w[0], int(w[2:].split(":")[0])
            a(f"s_lshl_b32 s{S_T1}, s{S_K+u}, 11")
            a(f"s_add_u32 s{S_T1}, s{S_T1}, s{S_T0}")
            a(f"buffer_load_dwordx4 {k}[{base}:{base+3}], v43, {WS}, s{S_T1} offen")
            a(f"buffer_load_dwordx4 {k}[{base+4}:{base+7}], v43, {WS}, s{S_T1} offen offset:1024")
    a.c("address registers")
    a(f"""
    v_and_b32 v20, 1, v{G4}
    v_lshrrev_b32 v21, 1, v{G4}
    v_cmp_eq_u32 vcc, 1, v20
    v_add_u32 v22, s{S_CC0}, v20
    s_add_u32 s{S_T0}, s{S_CC0}, 2
    v_mov_b32 v23, s{S_T0}
    v_mov_b32 v24, s{S_CCL}
    v_cndmask_b32 v23, v23, v24, vcc
    v_mov_b32 v24, s{S_ODD}
    v_cndmask_b32 v24, 0, v24, vcc
    v_lshlrev_b32 v{V_XA0}, 4, v{LN}
    v_and_b32 v25, 7, v{L15}
    v_lshlrev_b32 v25, 5, v25
    v_lshl_add_u32 v25, v21, 3, v25
    v_lshl_add_u32 v{V_MK0}, v22, 9, v25
    v_lshl_add_u32 v{V_MK1}, v23, 9, v25
    v_lshl_add_u32 v{V_MK1}, v24, 4, v{V_MK1}
    s_lshl_b32 s{S_T2}, s{S_WAVE}, 11
    s_add_u32 s{S_T2}, s{S_T2}, {T_TR}
    v_lshlrev_b32 v25, 5, v{L15}
    v_lshl_add_u32 v25, v{G4}, 3, v25
    v_add_u32 v{V_TW}, s{S_T2}, v25
    v_lshl_add_u32 v{V_TRD}, v{LN}, 3, s{S_T2}
    s_lshl_b32 s{S_T2}, s{S_WAVE}, 11
    s_add_u32 s{S_T2}, s{S_T2}, {T_PART}
    v_lshlrev_b32 v25, 9, v{G4}
    v_lshl_add_u32 v25, v{L15}, 4, v25
    v_add_u32 v{V_PW}, s{S_T2}, v25
    s_lshl_b32 s{S_T2}, s{S_WAVE}, 9
    s_add_u32 s{S_T2}, s{S_T2}, {T_PART}
    v_and_b32 v25, 31, v{LN}
    v_lshl_add_u32 v{V_PR}, v25, 4, s{S_T2}
    s_lshl_b32 s{S_T0}, s{S_WAVE}, 1
    v_add_u32 v26, s{S_T0}, v20
    s_and_b32 s85, s{h}, 1
    s_bfe_u32 s86, s{h}, 0x10001
    s_lshr_b32 s{S_T0}, s{h}, 2
    s_mul_i32 s{S_T0}, s{S_T0}, {PS_W}
    s_lshl_b32 s{S_T1}, s86, 10
    s_add_u32 s{S_T1}, s{S_T1}, s{S_T0}
    s_lshl_b32 s{S_T2}, s85, 9
    s_add_u32 s{S_T1}, s{S_T1}, s{S_T2}
    v_lshrrev_b32 v27, 3, v{L15}
    v_lshlrev_b32 v27, 8, v27
    v_lshl_add_u32 v27, v26, 5, v27
    v_and_b32 v28, 1, v{L15}
    v_lshl_add_u32 v27, v28, 4, v27
    v_bfe_u32 v29, v{L15}, 1, 2
    v_lshl_add_u32 v27, v29, 2, v27
    v_add_u32 v27, s{S_T1}, v27
    s_add_u32 s{S_T1}, s{S_T0}, 2048
    s_lshl_b32 s{S_T2}, s86, 9
    s_add_u32 s{S_T1}, s{S_T1}, s{S_T2}
    s_lshl_b32 s{S_T2}, s85, 2
    s_add_u32 s{S_T1}, s{S_T1}, s{S_T2}
    v_bfe_u32 v29, v{L15}, 2, 1
    v_lshlrev_b32 v29, 8, v29
    v_lshl_add_u32 v29, v26, 5, v29
    v_lshl_add_u32 v29, v28, 4, v29
    v_bfe_u32 v30, v{L15}, 1, 1
    v_lshl_add_u32 v29, v30, 3, v29
    v_add_u32 v29, s{S_T1}, v29
    v_mov_b32 v30, {OOB}
    v_cmp_gt_u32 vcc, 32, v{LN}
    v_cndmask_b32 v{V_PA0}, v30, v27, vcc
    v_cndmask_b32 v29, v30, v29, vcc
    v_cmp_gt_u32 vcc, 8, v{L15}
    v_cndmask_b32 v{V_PA1}, v30, v29, vcc
    v_mov_b32 v30, 0xf149f2ca
    v_cndmask_b32 v{V_MASK}, v30, 0, vcc
    s_lshl_b32 s{S_XO}, s{S_WAVE}, 13
    s_add_u32 s{S_XO}, s{S_XO}, {XK_OFF}
    s_mov_b32 s{S_SLP}, 0
    """)
    stamp_setup(a, diag)

    def xloads():
        for sg in range(2):
            for f in range(4):
                a(f"buffer_load_dwordx4 {vr(XK+16*sg+4*f,4)}, v{V_XA0}, {WS}, s{S_XO} offen offset:{f*1024}")
            a(f"s_add_u32 s{S_XO}, s{S_XO}, {4096 if sg == 0 else XK_STEP-4096}")

    def zero():
        for r in range(28):
            a(f"v_mov_b32 v{ACC+r}, 0")
        for r in range(12):
            a(f"v_mov_b32 v{SA+r}, " + (f"v{V_MASK}" if r in (8, 10) else "0"))

    xloads()
    zero()
    a("s_waitcnt vmcnt(0) lgkmcnt(0)")
    chain_mode(a, 20, 21)
    evt(a, 2, diag, 20, 21)
    a("s_barrier")

    acc = lambda j: ACC + 4 * j
    a.label("L_T_step")
    poll(a, mem_polls(), range(MF, MF + 8))
    stamp(a, 0, diag)
    a(f"ds_write_b128 v{V_FA}, {vr(MF,4)}")
    a(smf(acc(0), MF, W(0, 0)))
    a(f"s_mov_b32 s{S_SL2}, s{S_CNT}")
    a(f"ds_write_b128 v{V_FA+1}, {vr(MF+4,4)}")
    for j in range(1, 7):
        a(smf(acc(j), MF, W(j, 0)))
    a("s_waitcnt lgkmcnt(0)")
    a("s_barrier")
    for u in range(2, 7):
        a(f"ds_read_b128 {vr(MF+4*u,4)}, v{V_FA+u}")
    for j in range(7):
        a(smf(acc(j), MF + 4, W(j, 1)))

    MK0, MK1 = MF, acc(2)
    TB0, TB1 = acc(0), acc(1)

    def mkreads(dst, addr):
        return [f"ds_read2_b32 {vr(dst+4*b+2*d,2)}, v{addr} offset0:{64*b+d} offset1:{64*b+d+4}" for b in range(2) for d in range(2)]

    def add2(A_):
        return [f"v_add_f32 v{A_}, v{A_}, v{A_+1}", f"v_add_f32 v{A_+2}, v{A_+2}, v{A_+3}"]

    def cvt(p):
        A_, B_ = acc(2 * p), acc(2 * p + 1)
        return [f"v_cvt_pk_bf16_f32 v{B_+3}, v{A_+2}, v{B_+2}", f"v_cvt_pk_bf16_f32 v{B_+2}, v{A_}, v{B_}"]

    def trans(p, wreg, dst):
        return [f"ds_write_b64 v{V_TW}, {vr(wreg,2)} offset:{512*p}", f"ds_read_b64_tr_b16 {vr(dst,2)}, v{V_TRD} offset:{512*p}"]

    def sstep(sg, tb, mk):
        B = [vr(XK + 16 * sg, 8), vr(XK + 16 * sg + 8, 8), vr(mk, 8)]
        return [smf(SA + 4 * t, tb, B[t]) for t in range(3)]

    pre = {n: [] for n in range(35)}
    side = {n: [] for n in range(35)}
    for u in range(5):
        pre[u].append(f"s_waitcnt lgkmcnt({4-u})")
    mk = mkreads(MK0, V_MK0)
    side[5] += ["s_waitcnt vmcnt(0)", mk[0]]
    side[6] += [mk[1]]; side[7] += [mk[2]]; side[10] += [mk[3]]
    for p in range(3):
        n0 = 10 * p
        x = add2(acc(2 * p)); side[n0 + 8].append(x[0]); side[n0 + 9].append(x[1])
        x = add2(acc(2 * p + 1)); side[n0 + 13].append(x[0]); side[n0 + 14].append(x[1])
        if p < 2:
            x = cvt(p); side[n0 + 15].append(x[0]); side[n0 + 16].append(x[1])
            x = trans(p, acc(2 * p + 1) + 2, TB0 + 2 * p); side[n0 + 17].append(x[0]); side[n0 + 18].append(x[1])
    mk = mkreads(MK1, V_MK1)
    for k in range(4):
        side[30 + k].append(mk[k])
    n = 0
    for jj in range(7):
        for u in range(2, 7):
            for s_ in pre[n]:
                a(s_)
            a(smf(acc(jj), MF + 4 * u, W(jj, u)))
            for s_ in side[n]:
                a(s_)
            n += 1
    for s_ in cvt(2) + trans(2, acc(5) + 2, TB1):
        a(s_)
    s0 = sstep(0, TB0, MK0)
    L = acc(6)
    a("s_waitcnt lgkmcnt(6)")
    a(s0[0])
    a(s0[1])
    for s_ in add2(L):
        a(s_)
    a(s0[2])
    a(f"v_cvt_pk_bf16_f32 v{L+3}, v{L+2}, 0")
    a(f"v_cvt_pk_bf16_f32 v{L+2}, v{L}, 0")
    for s_ in trans(3, L + 2, TB1 + 2):
        a(s_)
    a("s_waitcnt lgkmcnt(0)")
    for s_ in sstep(1, TB1, MK1):
        a(s_)
    stamp(a, 1, diag)
    Q0, Q1 = acc(4), acc(5)
    for t in range(3):
        a(f"v_add_f32 v{Q0+t}, v{SA+4*t}, v{SA+4*t+1}")
        a(f"v_add_f32 v{Q1+t}, v{SA+4*t+2}, v{SA+4*t+3}")
    a(f"ds_write_b96 v{V_PW}, {vr(Q0,3)}")
    a(f"ds_write_b96 v{V_PW}, {vr(Q1,3)} offset:256")
    a("s_waitcnt lgkmcnt(0)")
    a("s_barrier")
    R = ACC
    for w in range(4):
        a(f"ds_read_b128 {vr(R+4*w,4)}, v{V_PR} offset:{2048*w}")
    a(f"""
    s_waitcnt lgkmcnt(2)
    v_pk_add_f32 {vr(R,2)}, {vr(R,2)}, {vr(R+4,2)}
    v_add_f32 v{R+2}, v{R+2}, v{R+6}
    s_waitcnt lgkmcnt(0)
    v_pk_add_f32 {vr(R+8,2)}, {vr(R+8,2)}, {vr(R+12,2)}
    v_add_f32 v{R+10}, v{R+10}, v{R+14}
    v_pk_add_f32 {vr(R,2)}, {vr(R,2)}, {vr(R+8,2)}
    v_add_f32 v{R+2}, v{R+2}, v{R+10}
    v_max3_f32 v{R+4}, v{R}, v{R+1}, v{R+2}
    """)
    for d in DPPS:
        a(f"v_max_f32_dpp v{R+4}, v{R+4}, v{R+4} {d} row_mask:0xf bank_mask:0xf")
    for r in range(3):
        a(f"v_sub_f32 v{R+r}, v{R+r}, v{R+4}")
    for r in range(3):
        a(f"v_exp_f32 v{R+r}, v{R+r}")
    a(f"v_add_f32 v{R+5}, v{R}, v{R+1}")
    a(f"v_add_f32 v{R+5}, v{R+5}, v{R+2}")
    for d in DPPS:
        a(f"v_add_f32_dpp v{R+5}, v{R+5}, v{R+5} {d} row_mask:0xf bank_mask:0xf")
    a(f"v_rcp_f32 v{R+5}, v{R+5}")
    a(f"""
    v_mul_f32 v{R}, v{R}, v{R+5}
    v_mul_f32 v{R+1}, v{R+1}, v{R+5}
    v_cvt_pk_bf16_f32 v{R+6}, v{R}, v{R+1}
    buffer_store_dword v{R+6}, v{V_PA0}, {WS}, s{S_PSOFF} offen
    v_mul_f32 v{R+2}, v{R+2}, v{R+5}
    v_cvt_pk_bf16_f32 v{R+7}, v{R+2}, v{R+2}
    buffer_store_dword v{R+7}, v{V_PA1}, {WS}, s{S_PSOFF} offen
    s_cmp_eq_u32 s{S_FB}, 0
    s_cbranch_scc1 L_T_nofb
    buffer_store_dword v{R+6}, v{V_PA0}, {WS}, s{S_PSOFF} offen sc1
    buffer_store_dword v{R+7}, v{V_PA1}, {WS}, s{S_PSOFF} offen sc1
    L_T_nofb:
    """)
    stamp(a, 2, diag)
    if OPT["lat"]:
        a("s_waitcnt vmcnt(0) lgkmcnt(0)")
        stamp(a, 3, diag)
    if not OPT["nox"]:
        xloads()
    if OPT["lat"]:
        a("s_waitcnt vmcnt(0)")
        stamp(a, 4, diag)
    stamp_store(a, 5, diag, R + 8, R + 9)
    zero()
    if OPT["sleepT"]:
        a(f"s_sleep {OPT['sleepT']}")
    if OPT["adapt"]:
        adapt(a, S_SLP, S_SL2)
        backoff(a, S_SLP)
    a(f"""
    s_add_u32 s{S_MEMOFF}, s{S_MEMOFF}, {MEMS_STEP}
    s_add_u32 s{S_PSOFF}, s{S_PSOFF}, {PS_STEP}
    s_add_u32 s{S_STEP}, s{S_STEP}, 1
    s_cmp_lt_u32 s{S_STEP}, 63
    s_cbranch_scc1 L_T_step
    s_waitcnt vmcnt(0)
    """)
    evt(a, 3, diag, 20, 21)
    a("s_endpgm")


def gen_V(a, diag=False):
    VXB, VPB, PF, WLB = 80, 112, 128, 140
    YA = ACC
    V_L16, V_PQ, V_PW, V_PR, V_MS, V_MN, V_WLA, V_FL = range(9, 17)
    NREG = 56 - NWL

    def order(un, u):
        return (u * 8 + un) if u < 2 else 16 + un * 5 + (u - 2)

    def ldsk(o):
        n = o - 16
        return n // 3 if (n >= 0 and n % 3 == 2 and n // 3 < NWL) else None

    def Wreg(o):
        r = o - sum(1 for q in range(o) if ldsk(q) is not None)
        assert r < NREG
        return ar(8 * r, 8) if r < 32 else vr(160 + 8 * (r - 32), 8)

    a.label("L_role_V")
    a.c("V role: column slice c = S_ROLE-16; unit un = 2*hl + t")
    evt(a, 1, diag, 20, 21)
    common_setup(a)
    S_C = 80
    a(f"""
    s_sub_u32 s{S_C}, s{S_ROLE}, 16
    v_lshlrev_b32 v{V_L16}, 4, v{LN}
    s_mul_i32 s{S_XB}, s{S_WAVE}, {NWL*2048}
    s_add_u32 s{S_XB}, s{S_XB}, {V_WL}
    v_add_u32 v{V_WLA}, s{S_XB}, v{V_L16}
    s_lshl_b32 s{S_T3}, s{S_WAVE}, 2
    s_mul_i32 s{S_T3}, s{S_T3}, {28*14*FR}
    s_mul_i32 s{S_T0}, s{S_C}, {2*14*FR}
    s_add_u32 s{S_T3}, s{S_T3}, s{S_T0}
    s_add_u32 s{S_T3}, s{S_T3}, {WB_OFF}
    """)
    for un in range(8):
        hl, t = un >> 1, un & 1
        a(f"s_add_u32 s{S_T0}, s{S_T3}, {(hl*28+t)*14*FR}")
        for u in range(7):
            o = order(un, u)
            a(f"s_lshl_b32 s{S_T1}, s{S_K+u}, 11")
            a(f"s_add_u32 s{S_T1}, s{S_T1}, s{S_T0}")
            if ldsk(o) is None:
                w = Wreg(o)
                k, base = w[0], int(w[2:].split(":")[0])
                a(f"buffer_load_dwordx4 {k}[{base}:{base+3}], v{V_L16}, {WS}, s{S_T1} offen")
                a(f"buffer_load_dwordx4 {k}[{base+4}:{base+7}], v{V_L16}, {WS}, s{S_T1} offen offset:1024")
            else:
                a(f"s_add_u32 m0, s{S_XB}, {ldsk(o)*2048}")
                a(f"buffer_load_dwordx4 v{V_L16}, {WS}, s{S_T1} offen lds")
                a(f"buffer_load_dwordx4 v{V_L16}, {WS}, s{S_T1} offen offset:1024 lds")
    a(f"""
    s_mul_i32 s{S_T0}, s{S_WAVE}, {PS_W}
    v_add_u32 v{V_PQ}, s{S_T0}, v{V_L16}
    s_lshl_b32 s{S_T0}, s{S_WAVE}, 10
    s_add_u32 s{S_T0}, s{S_T0}, {V_PART}
    v_add_u32 v{V_PW}, s{S_T0}, v{V_L16}
    v_and_b32 v20, 1, v{G4}
    v_lshlrev_b32 v21, 4, v{L15}
    v_lshl_add_u32 v21, v20, 3, v21
    s_lshl_b32 s{S_T0}, s{S_WAVE}, 8
    s_add_u32 s{S_T0}, s{S_T0}, {V_PART}
    v_add_u32 v{V_PR}, s{S_T0}, v21
    s_lshl_b32 s{S_T0}, s{S_WAVE}, 1
    v_add_u32 v22, s{S_T0}, v20
    v_lshrrev_b32 v23, 3, v{L15}
    v_lshlrev_b32 v23, 8, v23
    v_lshl_add_u32 v23, v22, 5, v23
    v_and_b32 v24, 1, v{L15}
    v_lshl_add_u32 v23, v24, 4, v23
    v_bfe_u32 v24, v{L15}, 1, 2
    v_lshl_add_u32 v23, v24, 2, v23
    s_lshl_b32 s{S_T0}, s{S_C}, 9
    v_add_u32 v23, s{S_T0}, v23
    v_mul_u32_u24 v24, 896, v22
    v_lshl_add_u32 v24, v{L15}, 2, v24
    s_lshl_b32 s{S_T0}, s{S_C}, 6
    v_add_u32 v24, s{S_T0}, v24
    v_mov_b32 v25, {OOB}
    v_cmp_gt_u32 vcc, 32, v{LN}
    v_cndmask_b32 v{V_MS}, v25, v23, vcc
    v_cndmask_b32 v{V_MN}, v25, v24, vcc
    v_and_b32 v24, 3, v{LN}
    s_lshl_b32 s{S_T0}, s{S_WAVE}, 2
    v_add_u32 v24, s{S_T0}, v24
    v_mul_u32_u24 v24, 14, v24
    v_add_u32 v24, s{S_C}, v24
    v_lshlrev_b32 v24, 6, v24
    v_add_u32 v{V_FL}, {PROG_OFF}, v24
    s_mov_b32 s{S_RDY}, 0
    s_mov_b32 s{S_SLP}, 0
    s_mov_b32 s{S_MN}, {0}
    s_lshl_b32 s{S_T0}, s{S_WAVE}, 2
    s_mul_i32 s{S_T0}, s{S_T0}, {28*FR}
    s_lshl_b32 s{S_T1}, s{S_C}, 11
    s_add_u32 s{S_T0}, s{S_T0}, s{S_T1}
    s_add_u32 s{S_XO}, s{S_T0}, {VX_OFF}
    """)
    stamp_setup(a, diag)
    for r in range(32):
        a(f"v_mov_b32 v{ACC+r}, 0")
    a("s_waitcnt vmcnt(0) lgkmcnt(0)")
    chain_mode(a, 20, 21)
    evt(a, 2, diag, 20, 21)
    a("s_barrier")

    acc = lambda un: ACC + 4 * un
    a.label("L_V_step")
    poll(a, mem_polls(), range(MF, MF + 8), depth2=False, sleep=OPT["sleepVm"])
    stamp(a, 0, diag)
    a(f"ds_write_b128 v{V_FA}, {vr(MF,4)}")
    a(smf(acc(0), MF, Wreg(order(0, 0))))
    a(f"ds_write_b128 v{V_FA+1}, {vr(MF+4,4)}")
    a(f"""
    s_cmp_lt_u32 s{S_STEP}, s{S_RDY}
    s_cbranch_scc1 L_V_vxok
    s_mov_b32 s{S_CNT}, s{S_LIM}
    L_V_vxpoll:
    buffer_load_dwordx4 {vr(PF,4)}, v{V_FL}, {WS}, 0 offen sc1
    s_waitcnt vmcnt(0)
    v_min3_u32 v{V_TMP}, v{PF}, v{PF+1}, v{PF+2}
    v_min_u32 v{V_TMP}, v{V_TMP}, v{PF+3}
    v_readlane_b32 s{S_T0}, v{V_TMP}, 0
    v_readlane_b32 s{S_T1}, v{V_TMP}, 1
    v_readlane_b32 s{S_T2}, v{V_TMP}, 2
    v_readlane_b32 s{S_T3}, v{V_TMP}, 3
    s_min_u32 s{S_T0}, s{S_T0}, s{S_T1}
    s_min_u32 s{S_T2}, s{S_T2}, s{S_T3}
    s_min_u32 s{S_RDY}, s{S_T0}, s{S_T2}
    s_lshl_b32 s{S_RDY}, s{S_RDY}, 2
    s_cmp_lt_u32 s{S_STEP}, s{S_RDY}
    s_cbranch_scc1 L_V_vxok
    s_sleep 4
    s_sub_u32 s{S_CNT}, s{S_CNT}, 1
    s_cmp_lg_u32 s{S_CNT}, 0
    s_cbranch_scc1 L_V_vxpoll
    s_mov_b32 s{S_LIM}, 1
    L_V_vxok:
    """)
    if OPT["lat"]:
        a("s_waitcnt vmcnt(0) lgkmcnt(0)")
        stamp(a, 4, diag)
    vx = []
    for hl in range(0 if OPT["novx"] else 4):
        vx.append([f"s_add_u32 s{S_T0}, s{S_XO}, {hl*28*FR}",
                   f"buffer_load_dwordx4 {vr(VXB+4*hl,4)}, v{V_L16}, {WS}, s{S_T0} offen sc1",
                   f"buffer_load_dwordx4 {vr(VXB+16+4*hl,4)}, v{V_L16}, {WS}, s{S_T0} offen offset:1024 sc1"])
    for un in range(1, 8):
        a(smf(acc(un), MF, Wreg(order(un, 0))))
        if un - 1 < len(vx):
            for s_ in vx[un - 1]:
                a(s_)
    a(f"s_add_u32 s{S_XO}, s{S_XO}, {VX_STEP}")
    if OPT["lat"]:
        a("s_waitcnt vmcnt(0)")
        stamp(a, 5, diag)
    a("s_waitcnt lgkmcnt(0)")
    a("s_barrier")
    for u in range(2, 7):
        a(f"ds_read_b128 {vr(MF+4*u,4)}, v{V_FA+u}")

    def wlread(k):
        b = WLB + 8 * (k & 1)
        return [f"ds_read_b128 {vr(b,4)}, v{V_WLA} offset:{k*2048}", f"ds_read_b128 {vr(b+4,4)}, v{V_WLA} offset:{k*2048+1024}"]
    for s_ in wlread(0) + wlread(1):
        a(s_)
    for un in range(8):
        a(smf(acc(un), MF + 4, Wreg(order(un, 1))))
    a("s_waitcnt lgkmcnt(4)")

    def cvt(un):
        hl, t = un >> 1, un & 1
        A_ = acc(un)
        return [f"v_cvt_pk_bf16_f32 v{VPB+8*t+2*hl}, v{A_}, v{A_+1}", f"v_cvt_pk_bf16_f32 v{VPB+8*t+2*hl+1}, v{A_+2}, v{A_+3}"]

    side = {n: [] for n in range(40)}
    for un in range(7):
        x = cvt(un)
        side[5 * un + 8].append(x[0]); side[5 * un + 9].append(x[1])
    for r in range(8):
        side[20 + r].append(f"v_mov_b32 v{YA+r}, 0")
    n = 0
    for un in range(8):
        for u in range(2, 7):
            o = order(un, u)
            if ldsk(o) is None:
                a(smf(acc(un), MF + 4 * u, Wreg(o)))
            else:
                k = ldsk(o)
                a(f"s_waitcnt lgkmcnt({2 if k + 1 < NWL else 0})")
                a(smf(acc(un), MF + 4 * u, vr(WLB + 8 * (k & 1), 8)))
                if k + 2 < NWL:
                    for s_ in wlread(k + 2):
                        a(s_)
            for s_ in side[n]:
                a(s_)
            n += 1
    for s_ in cvt(7):
        a(s_)
    stamp(a, 1, diag)
    if OPT["sleepV"]:
        a(f"s_sleep {OPT['sleepV']}")
    if OPT["adapt"]:
        backoff(a, S_SLP)
    poll(a, [f"buffer_load_dwordx4 {vr(PF+4*q,4)}, v{V_PQ}, {WS}, s{S_PSOFF} offen offset:{1024*q} sc1" for q in range(3)],
         range(PF, PF + 12))
    for q in range(2):
        for t in range(2):
            a(smf(YA + 4 * t, PF + 4 * q, vr(VXB + 16 * t + 8 * q, 8)))
    for t in range(2):
        a(smf(YA + 4 * t, PF + 8, vr(VPB + 8 * t, 8)))
    stamp(a, 2, diag)
    Y = ACC + 8
    a(f"""
    s_add_u32 s{S_MEMOFF}, s{S_MEMOFF}, {MEMS_STEP}
    v_add_f32 v{Y}, v{YA}, v{YA+1}
    v_add_f32 v{Y+2}, v{YA+2}, v{YA+3}
    v_add_f32 v{Y+1}, v{YA+4}, v{YA+5}
    v_add_f32 v{Y+3}, v{YA+6}, v{YA+7}
    ds_write_b128 v{V_PW}, {vr(Y,4)}
    s_waitcnt lgkmcnt(0)
    s_barrier
    """)
    R = ACC + 12
    for w in range(4):
        a(f"ds_read_b64 {vr(R+2*w,2)}, v{V_PR} offset:{1024*w}")
    a(f"""
    s_waitcnt lgkmcnt(2)
    v_pk_add_f32 {vr(R,2)}, {vr(R,2)}, {vr(R+2,2)}
    s_waitcnt lgkmcnt(0)
    v_pk_add_f32 {vr(R+4,2)}, {vr(R+4,2)}, {vr(R+6,2)}
    v_pk_add_f32 {vr(R,2)}, {vr(R,2)}, {vr(R+4,2)}
    v_cvt_pk_bf16_f32 v{R+2}, v{R}, v{R+1}
    buffer_store_dword v{R+2}, v{V_MS}, {WS}, s{S_MEMOFF} offen
    {"" if OPT["nomn"] else f"buffer_store_dword v{R+2}, v{V_MN}, {WS}, s{S_MN} offen sc1"}
    s_cmp_eq_u32 s{S_FB}, 0
    s_cbranch_scc1 L_V_nofb
    buffer_store_dword v{R+2}, v{V_MS}, {WS}, s{S_MEMOFF} offen sc1
    L_V_nofb:
    """)
    stamp(a, 3, diag)
    if OPT["adapt"]:
        adapt(a, S_SLP, S_CNT)
    if OPT["vdelay"]:
        a(f"s_sleep {OPT['vdelay']}")
    stamp_store(a, 6, diag, R + 4, R + 5)
    for r in range(32):
        if ACC + r != R + 2:
            a(f"v_mov_b32 v{ACC+r}, 0")
    a(f"v_mov_b32 v{R+2}, 0")
    a(f"""
    s_add_u32 s{S_MN}, s{S_MN}, 0
    s_add_u32 s{S_PSOFF}, s{S_PSOFF}, {PS_STEP}
    s_add_u32 s{S_STEP}, s{S_STEP}, 1
    s_cmp_lt_u32 s{S_STEP}, 63
    s_cbranch_scc1 L_V_step
    s_waitcnt vmcnt(0)
    """)
    evt(a, 3, diag, 20, 21)
    a("s_endpgm")


def gen_warm(a):
    LEAD = OPT["lead"]
    NVX = OPT["nvx"]
    a.label("L_role_W")
    a(f"""
    v_and_b32 v{LN}, 63, v0
    s_mov_b32 s{S_LIM}, {SPIN_LIMIT}
    s_mov_b32 s{S_MEMOFF}, {MEMS_OFF+MEMS_STEP}
    s_cmp_eq_u32 s{S_ROLE}, 31
    s_cbranch_scc1 L_W_warm
    s_lshl_b32 s{S_T0}, s{S_WAVE}, 11
    s_min_u32 s{S_T0}, s{S_T0}, 5120
    v_lshl_add_u32 v6, v{LN}, 4, s{S_T0}
    s_mov_b32 s{S_STEP}, 1
    L_R_step:
    s_mov_b32 s{S_CNT}, s{S_LIM}
    L_R_poll:
    buffer_load_dwordx4 v[20:23], v6, {WS}, s{S_MEMOFF} offen sc1
    buffer_load_dwordx4 v[24:27], v6, {WS}, s{S_MEMOFF} offen offset:1024 sc1
    s_waitcnt vmcnt(0)
    v_max3_u32 v5, v20, v21, v22
    v_max3_u32 v5, v5, v23, v24
    v_max3_u32 v5, v5, v25, v26
    v_max_u32 v5, v5, v27
    v_cmp_eq_u32 vcc, -1, v5
    s_cbranch_vccz L_R_go
    s_sleep 2
    s_sub_u32 s{S_CNT}, s{S_CNT}, 1
    s_cmp_lg_u32 s{S_CNT}, 0
    s_cbranch_scc1 L_R_poll
    s_mov_b32 s{S_LIM}, 1
    L_R_go:
    s_add_u32 s{S_T0}, s{S_MEMOFF}, {MEMR_OFF-MEMS_OFF}
    buffer_store_dwordx4 v[20:23], v6, {WS}, s{S_T0} offen sc1
    buffer_store_dwordx4 v[24:27], v6, {WS}, s{S_T0} offen offset:1024 sc1
    s_add_u32 s{S_MEMOFF}, s{S_MEMOFF}, {MEMS_STEP}
    s_sleep {OPT["rsleep"]}
    s_add_u32 s{S_STEP}, s{S_STEP}, 1
    s_cmp_lt_u32 s{S_STEP}, 64
    s_cbranch_scc1 L_R_step
    s_waitcnt vmcnt(0)
    s_endpgm
    L_W_warm:
    """)
    if OPT["nowarm"]:
        a("s_endpgm")
        return
    a(f"""
    v_lshlrev_b32 v2, 7, v{LN}
    v_mov_b32 v9, 0
    s_mul_i32 s{S_T0}, s{S_WAVE}, 56
    v_min_u32 v3, 55, v{LN}
    v_add_u32 v3, s{S_T0}, v3
    v_lshlrev_b32 v3, 6, v3
    v_add_u32 v3, {PROG_OFF}, v3
    v_mov_b32 v4, 0
    s_mul_i32 s{S_XO}, s{S_WAVE}, {112*FR}
    s_add_u32 s{S_XO}, s{S_XO}, {VX_OFF}
    s_lshl_b32 s80, s{S_WAVE}, 13
    s_add_u32 s80, s80, {XK_OFF}
    s_sub_u32 s{S_T0}, s{S_WAVE}, 1
    s_mul_i32 s81, s{S_T0}, 6144
    s_add_u32 s81, s81, {PS_OFF}
    s_mov_b32 s82, {PS_STEP}
    s_cmp_eq_u32 s{S_WAVE}, 0
    s_cselect_b32 s81, {MEMS_OFF}, s81
    s_cselect_b32 s82, {MEMS_STEP}, s82
    s_cmp_eq_u32 s{S_WAVE}, 3
    s_cselect_b32 s81, {OOB}, s81
    s_cselect_b32 s82, 0, s82
    s_mov_b32 s{S_STEP}, 0
    L_W_step:
    s_cmp_lt_u32 s{S_STEP}, {LEAD+1}
    s_cbranch_scc1 L_W_paced
    s_mov_b32 s{S_CNT}, s{S_LIM}
    L_W_pace:
    buffer_load_dword v5, v9, {WS}, s{S_MEMOFF} offen sc1
    s_waitcnt vmcnt(0)
    v_cmp_eq_u32 vcc, -1, v5
    s_cbranch_vccz L_W_paced2
    s_sleep 4
    s_sub_u32 s{S_CNT}, s{S_CNT}, 1
    s_cmp_lg_u32 s{S_CNT}, 0
    s_cbranch_scc1 L_W_pace
    s_mov_b32 s{S_LIM}, 1
    L_W_paced2:
    s_add_u32 s{S_MEMOFF}, s{S_MEMOFF}, {MEMS_STEP}
    L_W_paced:
    buffer_load_dword v8, v2, {WS}, s80 offen
    buffer_load_dword v10, v2, {WS}, s81 offen sc1
    s_add_u32 s80, s80, {XK_STEP}
    s_add_u32 s81, s81, s82
    """)
    if NVX:
        a(f"""
        s_mov_b32 s{S_CNT}, s{S_LIM}
        v_mov_b32 v7, s{S_STEP}
        L_W_flag:
        v_cmp_lt_u32 vcc, v7, v4
        s_cmp_eq_u64 vcc, -1
        s_cbranch_scc1 L_W_go
        buffer_load_dwordx4 v[24:27], v3, {WS}, 0 offen sc1
        s_waitcnt vmcnt(0)
        v_min3_u32 v4, v24, v25, v26
        v_min_u32 v4, v4, v27
        v_lshlrev_b32 v4, 2, v4
        v_cmp_lt_u32 vcc, v7, v4
        s_cmp_eq_u64 vcc, -1
        s_cbranch_scc1 L_W_go
        s_sleep 8
        s_sub_u32 s{S_CNT}, s{S_CNT}, 1
        s_cmp_lg_u32 s{S_CNT}, 0
        s_cbranch_scc1 L_W_flag
        s_mov_b32 s{S_LIM}, 1
        L_W_go:
        """)
        for k in range(NVX):
            a(f"s_add_u32 s{S_T0}, s{S_XO}, {k*8192}")
            a(f"buffer_load_dword v{12+k}, v2, {WS}, s{S_T0} offen sc1")
        a(f"s_add_u32 s{S_XO}, s{S_XO}, {VX_STEP}")
    a(f"""
    s_add_u32 s{S_STEP}, s{S_STEP}, 1
    s_cmp_lt_u32 s{S_STEP}, 64
    s_cbranch_scc1 L_W_step
    s_waitcnt vmcnt(0)
    s_endpgm
    """)


CNT_OFF = PROG_OFF + 224 * 64


def wait_all(a):
    top, done = a.newlabel("wa"), a.newlabel("wad")
    a(f"""
    v_and_b32 v4, 15, v0
    v_lshlrev_b32 v4, 7, v4
    s_mov_b32 s{S_CNT}, {SPIN_LIMIT}
    s_mov_b32 s{S_T1}, {CNT_OFF}
    {top}:
    buffer_load_dword v5, v4, {WS}, s{S_T1} offen sc1
    s_waitcnt vmcnt(0)
    s_mov_b32 s{S_T0}, 0
    """)
    for x in range(16):
        a(f"v_readlane_b32 s{S_CNTS+x}, v5, {x}")
    for x in range(16):
        a(f"s_add_u32 s{S_T0}, s{S_T0}, s{S_CNTS+x}")
    a(f"""
    s_cmp_ge_u32 s{S_T0}, 256
    s_cbranch_scc1 {done}
    s_sleep 2
    s_sub_u32 s{S_CNT}, s{S_CNT}, 1
    s_cmp_lg_u32 s{S_CNT}, 0
    s_cbranch_scc1 {top}
    {done}:
    """)


def chain_mode(a, t0, t1):
    top, done = a.newlabel("cm"), a.newlabel("cmd")
    a(f"""
    v_and_b32 v{t0}, 15, v{LN}
    v_lshlrev_b32 v{t0}, 7, v{t0}
    s_mov_b32 s{S_CNT}, {SPIN_LIMIT}
    s_mov_b32 s{S_T1}, {CNT_OFF}
    {top}:
    buffer_load_dword v{t1}, v{t0}, {WS}, s{S_T1} offen sc1
    s_waitcnt vmcnt(0)
    v_readlane_b32 s{S_T0}, v{t1}, 0
    s_mov_b32 s{S_FB}, 0
    s_cmp_ge_u32 s{S_T0}, {32 if NSLOT == 32 else 9999}
    s_cbranch_scc1 {done}
    s_mov_b32 s{S_FB}, 1
    """)
    for x in range(1, 16):
        a(f"v_readlane_b32 s{S_T2}, v{t1}, {x}")
        a(f"s_add_u32 s{S_T0}, s{S_T0}, s{S_T2}")
    a(f"""
    s_cmp_ge_u32 s{S_T0}, 256
    s_cbranch_scc1 {done}
    s_sleep 2
    s_sub_u32 s{S_CNT}, s{S_CNT}, 1
    s_cmp_lg_u32 s{S_CNT}, 0
    s_cbranch_scc1 {top}
    {done}:
    """)


NSLOT = 32


def gen_main_prologue(a, force_fb=False, diag=False):
    global NSLOT
    NSLOT = 13 if force_fb else 32
    a(f"""
    s_cmp_ge_u32 s2, 256
    s_cbranch_scc1 L_exit
    s_memrealtime s[90:91]
    s_load_dwordx2 s[{S_X}:{S_X+1}], s[0:1], 0
    s_load_dwordx4 s[{S_OUT}:{S_OUT+3}], s[0:1], 104
    s_load_dwordx2 s[{S_WS}:{S_WS+1}], s[0:1], 120
    v_lshrrev_b32 v1, 6, v0
    s_getreg_b32 s{S_T3}, hwreg(HW_REG_XCC_ID)
    v_readfirstlane_b32 s{S_WAVE}, v1
    s_and_b32 s{S_T3}, s{S_T3}, 15
    s_waitcnt lgkmcnt(0)
    s_mov_b32 s{SRD_WS}, s{S_WS}
    s_mov_b32 s{SRD_WS+1}, s{S_WS+1}
    s_mov_b32 s{SRD_WS+2}, 0x10000000
    s_mov_b32 s{SRD_WS+3}, 0x20000
    s_mov_b32 s{SRD_X}, s{S_X}
    s_mov_b32 s{SRD_X+1}, s{S_X+1}
    s_mov_b32 s{SRD_X+2}, {2048*896}
    s_mov_b32 s{SRD_X+3}, 0x20000
    s_mov_b32 s{SRD_DBG}, s{S_DBG}
    s_mov_b32 s{SRD_DBG+1}, s{S_DBG+1}
    s_mov_b32 s{SRD_DBG+2}, 256
    s_mov_b32 s{SRD_DBG+3}, 0x20000
    s_cmp_lg_u32 s{S_WAVE}, 0
    s_cbranch_scc1 L_elect_wait
    s_lshl_b32 s{S_T0}, s{S_T3}, 7
    v_mov_b32 v2, s{S_T0}
    v_mov_b32 v3, 1
    s_mov_b32 s{S_T1}, {CNT_OFF}
    s_mov_b64 exec, 1
    buffer_atomic_add v3, v2, {WS}, s{S_T1} offen sc0 sc1
    s_mov_b64 exec, -1
    s_waitcnt vmcnt(0)
    v_readfirstlane_b32 s{S_T2}, v3
    s_lshl_b32 s{S_ROLE}, s{S_T3}, 5
    s_add_u32 s{S_ROLE}, s{S_ROLE}, s{S_T2}
    s_cmp_lt_u32 s{S_T2}, {NSLOT}
    s_cselect_b32 s{S_T0}, s{S_T3}, 99
    s_cmp_lt_u32 s{S_T0}, 8
    s_cbranch_scc1 L_elect_done
    """)
    wait_all(a)
    a(f"""
    s_sub_u32 s{S_T1}, s{S_T2}, {NSLOT}
    s_cmp_lt_u32 s{S_T3}, 8
    s_cselect_b32 s{S_T1}, s{S_T1}, s{S_T2}
    """)
    for x in range(16):
        if x < 8:
            a(f"s_sub_u32 s{S_T0}, s{S_CNTS+x}, {NSLOT}")
            a(f"s_max_i32 s{S_T0}, s{S_T0}, 0")
        else:
            a(f"s_mov_b32 s{S_T0}, s{S_CNTS+x}")
        a(f"s_cmp_lt_u32 {x}, s{S_T3}")
        a(f"s_cselect_b32 s{S_T0}, s{S_T0}, 0")
        a(f"s_add_u32 s{S_T1}, s{S_T1}, s{S_T0}")
    a(f"s_mov_b32 s{S_ROLE}, 0xfff")
    for x in range(8):
        a(f"""
        s_min_u32 s{S_T0}, s{S_CNTS+x}, {NSLOT}
        s_sub_u32 s{S_T2}, 32, s{S_T0}
        s_add_u32 s{S_T0}, s{S_T0}, s{S_T1}
        s_add_u32 s{S_T0}, s{S_T0}, {32*x}
        s_cmp_lt_u32 s{S_T1}, s{S_T2}
        s_cselect_b32 s{S_ROLE}, s{S_T0}, s{S_ROLE}
        s_sub_u32 s{S_T1}, s{S_T1}, s{S_T2}
        """)
    a(f"""
    L_elect_done:
    s_mov_b32 s{S_FB}, 0
    s_lshl_b32 s{S_T0}, s{S_FB}, 16
    s_or_b32 s{S_T0}, s{S_T0}, s{S_ROLE}
    v_mov_b32 v2, 0
    v_mov_b32 v3, s{S_T0}
    ds_write_b32 v2, v3
    s_waitcnt lgkmcnt(0)
    L_elect_wait:
    s_barrier
    v_mov_b32 v2, 0
    ds_read_b32 v3, v2
    s_waitcnt lgkmcnt(0)
    v_readfirstlane_b32 s{S_T0}, v3
    s_and_b32 s{S_ROLE}, s{S_T0}, 0xffff
    s_lshr_b32 s{S_FB}, s{S_T0}, 16
    s_barrier
    """)
    if diag:
        a(f"""
        s_lshl_b32 s98, s{S_ROLE}, 2
        s_add_u32 s98, s98, s{S_WAVE}
        s_lshl_b32 s98, s98, 5
        s_add_u32 s98, s98, {EVT_OFF}
        v_mov_b32 v2, s90
        v_mov_b32 v3, 0
        s_mov_b64 exec, 1
        buffer_store_dword v2, v3, {WS}, s98 offen
        s_mov_b64 exec, -1
        """)
    a(f"""
    s_cmp_lt_u32 s{S_ROLE}, 16
    s_cbranch_scc1 L_role_T
    s_cmp_lt_u32 s{S_ROLE}, 30
    s_cbranch_scc1 L_role_V
    s_cmp_lt_u32 s{S_ROLE}, 32
    s_cbranch_scc1 L_role_W
    s_cmp_ge_u32 s{S_ROLE}, 256
    s_cbranch_scc1 L_exit
    """)
```

```python
from asmlib import *
from layout import *
import gen_chain as gc
from gen_chain import (SRD_WS, SRD_X, S_WAVE, S_ROLE, S_LIM, S_CNT, S_STEP, S_T0, S_T1, S_T2, S_T3, S_OUT, WS, XS,
                       SPIN_LIMIT, OOB)
from gen_prep import f32hex, srd, LOG2E

S_H, S_C, S_RANK, S_FLG = 34, 35, 36, 37
LN, G, L15, L16, IDX, TMP = 1, 2, 3, 4, 5, 6
NEG = "0xf149f2ca"


def WBr(t, ks, n=4):
    return ar(56 * t + 4 * ks, n)


def WAr(t, ks):
    return ar(112 + 56 * t + 4 * ks, 4)


def flagwait(a, vaddr, vthr, vval, sleep=8):
    top, go = a.newlabel("fw"), a.newlabel("fgo")
    a(f"""
    s_mov_b32 s{S_CNT}, s{S_LIM}
    {top}:
    buffer_load_dword v{vval}, v{vaddr}, {WS}, 0 offen sc1
    s_waitcnt vmcnt(0)
    v_cmp_lt_u32 vcc, v{vthr}, v{vval}
    s_cmp_eq_u64 vcc, -1
    s_cbranch_scc1 {go}
    s_sleep {sleep}
    s_sub_u32 s{S_CNT}, s{S_CNT}, 1
    s_cmp_lg_u32 s{S_CNT}, 0
    s_cbranch_scc1 {top}
    s_mov_b32 s{S_LIM}, 1
    {go}:
    """)


def mempoll(a, dst, soff, sleep=4):
    top, done = a.newlabel("mp"), a.newlabel("mpd")
    a(f"s_mov_b32 s{S_CNT}, s{S_LIM}")
    a(f"s_add_u32 s{S_T3}, s{soff}, 4096")
    a.label(top)
    for u in range(7):
        so = soff if u < 4 else S_T3
        a(f"buffer_load_dwordx4 {vr(dst+4*u,4)}, v{L16}, {WS}, s{so} offen offset:{(u&3)*1024} sc1")
    a("s_waitcnt vmcnt(0)")
    r = list(range(dst, dst + 28))
    a(f"v_max3_u32 v{TMP}, v{r[0]}, v{r[1]}, v{r[2]}")
    r = r[3:]
    while len(r) >= 2:
        a(f"v_max3_u32 v{TMP}, v{TMP}, v{r[0]}, v{r[1]}"); r = r[2:]
    a(f"v_max_u32 v{TMP}, v{TMP}, v{r[0]}")
    a(f"""
    v_cmp_eq_u32 vcc, -1, v{TMP}
    s_cbranch_vccz {done}
    s_sleep {sleep}
    s_sub_u32 s{S_CNT}, s{S_CNT}, 1
    s_cmp_lg_u32 s{S_CNT}, 0
    s_cbranch_scc1 {top}
    s_mov_b32 s{S_LIM}, 1
    {done}:
    """)


def xg_reduce(a, op, v, t):
    a(f"v_mov_b32 v{t}, v{v}")
    a(f"v_permlane16_swap_b32 v{v}, v{t}")
    a(f"{op} v{v}, v{v}, v{t}")
    a(f"v_mov_b32 v{t}, v{v}")
    a(f"v_permlane32_swap_b32 v{v}, v{t}")
    a(f"{op} v{v}, v{v}, v{t}")


def full_reduce(a, op, v, t):
    for d in gc.DPPS:
        a(f"{op}_dpp v{v}, v{v}, v{v} {d} row_mask:0xf bank_mask:0xf")
    xg_reduce(a, op, v, t)


def rbf(a, v):
    a(f"v_cvt_pk_bf16_f32 v{v}, v{v}, v{v}")
    a(f"v_and_b32 v{v}, 0xffff0000, v{v}")


def gen_helper(a, diag=False):
    global DIAG
    DIAG = diag
    a.c("helper: rank = role-32")
    gc.evt(a, 1, diag, 8, 9)
    a(f"""
    s_sub_u32 s{S_RANK}, s{S_ROLE}, 32
    s_mul_i32 s{S_H}, s{S_RANK}, 4682
    s_lshr_b32 s{S_H}, s{S_H}, 16
    s_mul_i32 s{S_T0}, s{S_H}, 14
    s_sub_u32 s{S_C}, s{S_RANK}, s{S_T0}
    s_lshl_b32 s{S_FLG}, s{S_RANK}, 6
    s_add_u32 s{S_FLG}, s{S_FLG}, {PROG_OFF}
    s_mov_b32 s{S_LIM}, {SPIN_LIMIT}
    v_and_b32 v{LN}, 63, v0
    v_lshrrev_b32 v{G}, 4, v{LN}
    v_and_b32 v{L15}, 15, v{LN}
    v_lshlrev_b32 v{L16}, 4, v{LN}
    v_and_b32 v8, 1, v0
    v_cmp_eq_u32 vcc, 0, v8
    v_mov_b32 v8, 0xEEEE
    v_mov_b32 v9, 0x4444
    v_cndmask_b32 v{IDX}, v8, v9, vcc
    s_mul_i32 s{S_T0}, s{S_H}, 28
    s_lshl_b32 s{S_T1}, s{S_C}, 1
    s_add_u32 s{S_T0}, s{S_T0}, s{S_T1}
    s_mul_i32 s{S_T0}, s{S_T0}, {14*FR}
    s_add_u32 s{S_T1}, s{S_T0}, {WB_OFF}
    """)
    XB, AV, AT, OV = 32, 144, 160, 16
    S_XA, S_XB2, S_VO, S_TO = 45, 46, 47, 48
    a(f"""
    s_mul_i32 s{S_XA}, s{S_WAVE}, {28*FR}
    s_add_u32 s{S_XA}, s{S_XA}, {XF_OFF}
    """)

    def xload(ks, mt):
        f = mt * 14 + ks
        return [f"s_add_u32 s{S_T2}, s{S_XA}, {(f & ~3) * FR}",
                f"buffer_load_dwordx4 {vr(XB+8*ks+4*mt,4)}, v{L16}, {WS}, s{S_T2} offen offset:{(f&3)*FR}"]
    for f in range(28):
        a(f"buffer_load_dwordx4 {ar(4*f,4)}, v{L16}, {WS}, s{S_T1} offen offset:{(f&3)*FR}")
        if f & 3 == 3:
            a(f"s_add_u32 s{S_T1}, s{S_T1}, 4096")
    for ks in range(14):
        for mt in range(2):
            for s_ in xload(ks, mt):
                a(s_)
    for f in range(28):
        a(f"buffer_load_dwordx4 {ar(112+4*f,4)}, v{L16}, {WS}, s{S_T0} offen offset:{(f&3)*FR}")
        if f & 3 == 3:
            a(f"s_add_u32 s{S_T0}, s{S_T0}, 4096")
    a(f"""
    s_lshl_b32 s{S_T0}, s{S_WAVE}, 4
    s_add_u32 s{S_T0}, s{S_T0}, s{S_H}
    s_mul_i32 s{S_T0}, s{S_T0}, 14
    s_add_u32 s{S_T0}, s{S_T0}, s{S_C}
    s_lshl_b32 s{S_T0}, s{S_T0}, 11
    s_add_u32 s{S_VO}, s{S_T0}, {VX_OFF}
    s_add_u32 s{S_TO}, s{S_T0}, {TX_OFF}
    s_lshl_b32 s{S_T0}, s{S_WAVE}, 2
    v_mov_b32 v7, s{S_T0}
    s_mov_b32 s{S_STEP}, 0
    s_waitcnt vmcnt(0)
    """)
    gc.evt(a, 2, diag, 8, 9)
    a(f"""
    H_gemm:
    s_add_u32 s{S_XA}, s{S_XA}, {4*28*FR}
    s_cmp_eq_u32 s{S_STEP}, 15
    s_cselect_b32 s{S_XA}, {XF_OFF}, s{S_XA}
    v_mov_b32 v8, s{S_STEP}
    """)
    for ks in range(14):
        a(f"s_waitcnt vmcnt({30 if ks < 13 else 26})")
        z = ks == 0
        for mt in range(2):
            for t in range(2):
                d = AV + 8 * mt + 4 * t
                a(f"v_mfma_f32_16x16x32_bf16 {vr(d,4)}, {vr(XB+8*ks+4*mt,4)}, {WBr(t,ks)}, {'0' if z else vr(d,4)}")
            for t in range(2):
                d = AT + 8 * mt + 4 * t
                a(f"v_mfma_f32_16x16x32_bf16 {vr(d,4)}, {WAr(t,ks)}, {vr(XB+8*ks+4*mt,4)}, {'0' if z else vr(d,4)}")
            for s_ in xload(ks, mt):
                a(s_)
    a("s_mov_b64 exec, 1")
    a(f"buffer_store_dword v8, v7, {WS}, s{S_FLG} offen sc1")
    a("s_mov_b64 exec, -1")
    for t in range(2):
        o = OV + 4 * t
        for mt in range(2):
            d = AV + 8 * mt + 4 * t
            a(f"v_cvt_pk_bf16_f32 v{o+2*mt}, v{d}, v{d+1}")
            a(f"v_cvt_pk_bf16_f32 v{o+2*mt+1}, v{d+2}, v{d+3}")
        a(f"buffer_store_dwordx4 {vr(o,4)}, v{L16}, {WS}, s{S_VO} offen offset:{t*FR} sc1")
    for mt in range(2):
        o = OV + 8 + 4 * mt
        for t in range(2):
            d = AT + 8 * mt + 4 * t
            a(f"v_cvt_pk_bf16_f32 v{o+t}, v{d}, v{d+1}")
            a(f"v_cvt_pk_bf16_f32 v{o+2+t}, v{d+2}, v{d+3}")
        a(f"buffer_store_dwordx4 {vr(o,4)}, v{L16}, {WS}, s{S_TO} offen offset:{mt*FR} sc1")
    a(f"""
    s_add_u32 s{S_VO}, s{S_VO}, {4*VX_STEP}
    s_add_u32 s{S_TO}, s{S_TO}, {4*VX_STEP}
    s_add_u32 s{S_STEP}, s{S_STEP}, 1
    s_cmp_lt_u32 s{S_STEP}, 16
    s_cbranch_scc1 H_gemm
    v_mov_b32 v8, 16
    s_waitcnt vmcnt(0)
    s_mov_b64 exec, 1
    buffer_store_dword v8, v7, {WS}, s{S_FLG} offen sc1
    s_mov_b64 exec, -1
    """)
    gc.evt(a, 3, diag, 8, 9)
    a(f"""
    s_cmp_lt_u32 s{S_RANK}, 28
    s_cbranch_scc0 H_phase2
    """)
    gen_mod(a)
    a.label("H_phase2")
    gc.evt(a, 4, diag, 8, 9)
    a(f"""
    s_cmp_eq_u32 s{S_WAVE}, 0
    s_cbranch_scc1 H_vp
    s_cmp_eq_u32 s{S_WAVE}, 3
    s_cbranch_scc1 H_f2
    """)
    gen_f1(a)
    gen_vp(a)
    gen_f2(a)


def gen_mod(a):
    SG, SU, SD = 48, 52, 56
    S_IDX, S_RM = 60, 61
    a(f"""
    s_load_dwordx4 s[64:67], s[0:1], 72
    s_load_dwordx2 s[68:69], s[0:1], 88
    s_mov_b32 s{S_T0}, {RG_OFF}
    s_mov_b32 s{S_T1}, {RG_OFF+4096}
    """)
    R = 32
    for k in range(8):
        a(f"buffer_load_dwordx4 {vr(R+4*k,4)}, v{L16}, {WS}, s{S_T0 if k < 4 else S_T1} offen offset:{(k&3)*1024}")
    a("s_waitcnt lgkmcnt(0)")
    srd(a, SG, 64, 448 * 3584)
    srd(a, SU, 66, 448 * 3584)
    srd(a, SD, 68, 1792 * 896)
    a("s_waitcnt vmcnt(0)")
    a(f"v_max3_f32 v8, v{R}, v{R+1}, v{R+2}")
    for k in range(3, 31, 2):
        a(f"v_max3_f32 v8, v8, v{R+k}, v{R+k+1}")
    a(f"v_max_f32 v8, v8, v{R+31}")
    full_reduce(a, "v_max_f32", 8, 9)
    a(f"v_lshlrev_b32 v10, 2, v{LN}")
    a(f"v_mov_b32 v11, 0x7fffffff")
    for k in range(31, -1, -1):
        a(f"v_cmp_eq_f32 vcc, v8, v{R+k}")
        a(f"v_add_u32 v12, {256*(k>>2)+(k&3)}, v10")
        a(f"v_cndmask_b32 v11, v11, v12, vcc")
    full_reduce(a, "v_min_u32", 11, 9)
    a(f"""
    v_min_u32 v11, 2047, v11
    v_readfirstlane_b32 s{S_IDX}, v11
    v_readfirstlane_b32 s{S_RM}, v8
    v_lshrrev_b32 v12, 3, v{LN}
    v_and_b32 v13, 7, v{LN}
    v_lshlrev_b32 v14, 1, v12
    v_mul_u32_u24 v15, 3584, v12
    v_lshl_add_u32 v15, v13, 4, v15
    s_mul_i32 s{S_T0}, s{S_IDX}, 896
    s_mul_i32 s{S_T1}, s{S_WAVE}, 224
    s_add_u32 s{S_T0}, s{S_T0}, s{S_T1}
    s_mul_i32 s{S_T1}, s{S_WAVE}, {112*3584}
    s_lshl_b32 s{S_T2}, s{S_RANK}, 7
    s_add_u32 s{S_T1}, s{S_T1}, s{S_T2}
    """)
    XSEL, WG_, WU_, AC = 16, 32, 88, 144
    for i in range(14):
        a(f"buffer_load_ushort v{XSEL+i}, v14, {XS}, s{S_T0} offen offset:{16*i}")
    for i in range(14):
        a(f"buffer_load_dwordx4 {vr(WG_+4*i,4)}, v15, s[{SG}:{SG+3}], s{S_T1} offen")
        a(f"buffer_load_dwordx4 {vr(WU_+4*i,4)}, v15, s[{SU}:{SU+3}], s{S_T1} offen")
        a(f"s_add_u32 s{S_T1}, s{S_T1}, {8*3584}")
    for r in range(16):
        a(f"v_mov_b32 v{AC+r}, 0")
    for i in range(14):
        a(f"s_waitcnt vmcnt({26-2*i})")
        a(f"v_lshlrev_b32 v{XSEL+i}, 16, v{XSEL+i}")
        for m, base in enumerate((WG_, WU_)):
            for q in range(4):
                w = base + 4 * i + q
                a(f"v_lshlrev_b32 v8, 16, v{w}")
                a(f"v_and_b32 v9, 0xffff0000, v{w}")
                a(f"v_fmac_f32 v{AC+8*m+2*q}, v8, v{XSEL+i}")
                a(f"v_fmac_f32 v{AC+8*m+2*q+1}, v9, v{XSEL+i}")
    a(f"""
    s_lshl_b32 s{S_T0}, s{S_WAVE}, 12
    v_lshlrev_b32 v8, 9, v12
    v_lshl_add_u32 v8, v13, 5, v8
    v_add_u32 v8, s{S_T0}, v8
    ds_write_b128 v8, {vr(AC,4)}
    ds_write_b128 v8, {vr(AC+4,4)} offset:16
    ds_write_b128 v8, {vr(AC+8,4)} offset:256
    ds_write_b128 v8, {vr(AC+12,4)} offset:272
    s_lshl_b32 s{S_T0}, s{S_RANK}, 6
    s_lshl_b32 s{S_T1}, s{S_WAVE}, 4
    s_add_u32 s{S_T0}, s{S_T0}, s{S_T1}
    s_mul_i32 s{S_T0}, s{S_T0}, 896
    v_mov_b32 v9, {OOB}
    v_cmp_gt_u32 vcc, 56, v{LN}
    v_cndmask_b32 v9, v9, v{L16}, vcc
    """)
    WD = 32
    for i in range(16):
        a(f"buffer_load_dwordx4 {vr(WD+4*i,4)}, v9, s[{SD}:{SD+3}], s{S_T0} offen")
        a(f"s_add_u32 s{S_T0}, s{S_T0}, 896")
    a(f"""
    s_waitcnt lgkmcnt(0)
    s_barrier
    v_lshlrev_b32 v10, 2, v{LN}
    v_mov_b32 v12, 0
    v_mov_b32 v13, 0
    """)
    P = 100
    for half in range(4):
        for p in range(8):
            a(f"ds_read2_b32 {vr(P+2*p,2)}, v10 offset0:0 offset1:64")
            a(f"v_add_u32 v10, 512, v10")
        a("s_waitcnt lgkmcnt(0)")
        for p in range(8):
            a(f"v_add_f32 v12, v12, v{P+2*p}")
            a(f"v_add_f32 v13, v13, v{P+2*p+1}")
    rbf(a, 12)
    rbf(a, 13)
    a(f"""
    v_mul_f32 v14, {f32hex(-LOG2E)}, v12
    v_exp_f32 v14, v14
    v_add_f32 v14, 1.0, v14
    v_rcp_f32 v14, v14
    v_mul_f32 v12, v12, v14
    """)
    rbf(a, 12)
    a("v_mul_f32 v12, v12, v13")
    rbf(a, 12)
    a(f"s_lshl_b32 s{S_T1}, s{S_WAVE}, 4")
    for r in range(8):
        a(f"v_mov_b32 v{AC+r}, 0")
    for i in range(16):
        a(f"s_add_u32 s{S_T2}, s{S_T1}, {i}")
        a(f"v_readlane_b32 s{S_T0}, v12, s{S_T2}")
        a(f"s_waitcnt vmcnt({15-i})")
        for q in range(4):
            w = WD + 4 * i + q
            a(f"v_lshlrev_b32 v8, 16, v{w}")
            a(f"v_and_b32 v9, 0xffff0000, v{w}")
            a(f"v_fmac_f32 v{AC+2*q}, s{S_T0}, v8")
            a(f"v_fmac_f32 v{AC+2*q+1}, s{S_T0}, v9")
    a(f"""
    s_barrier
    s_lshl_b32 s{S_T0}, s{S_WAVE}, 11
    v_lshlrev_b32 v8, 5, v{LN}
    v_add_u32 v9, s{S_T0}, v8
    ds_write_b128 v9, {vr(AC,4)}
    ds_write_b128 v9, {vr(AC+4,4)} offset:16
    s_waitcnt lgkmcnt(0)
    s_barrier
    s_cmp_lg_u32 s{S_WAVE}, 0
    s_cbranch_scc1 H_mod_done
    """)
    for w in range(1, 4):
        a(f"ds_read_b128 {vr(P+8*w,4)}, v8 offset:{2048*w}")
        a(f"ds_read_b128 {vr(P+8*w+4,4)}, v8 offset:{2048*w+16}")
    a("s_waitcnt lgkmcnt(0)")
    for w in range(1, 4):
        for r in range(8):
            a(f"v_add_f32 v{AC+r}, v{AC+r}, v{P+8*w+r}")
    a(f"""
    v_mov_b32 v9, {OOB}
    v_cmp_gt_u32 vcc, 56, v{LN}
    v_cndmask_b32 v9, v9, v8, vcc
    s_mul_i32 s{S_T0}, s{S_RANK}, 1792
    s_add_u32 s{S_T0}, s{S_T0}, {YM_OFF}
    buffer_store_dwordx4 {vr(AC,4)}, v9, {WS}, s{S_T0} offen sc1
    buffer_store_dwordx4 {vr(AC+4,4)}, v9, {WS}, s{S_T0} offen offset:16 sc1
    v_mov_b32 v10, s{S_IDX}
    v_mov_b32 v11, s{S_RM}
    v_mov_b32 v12, 32
    v_mov_b32 v13, 28
    v_mov_b32 v14, 1
    s_mov_b64 exec, 1
    buffer_store_dwordx2 v[10:11], v12, {WS}, s{S_FLG} offen sc1
    s_waitcnt vmcnt(0)
    buffer_store_dword v14, v13, {WS}, s{S_FLG} offen sc1
    s_mov_b64 exec, -1
    H_mod_done:
    s_barrier
    """)


def gen_vp(a):
    MFm, AC, O = 32, 64, 72
    S_MO, S_VPO, S_PEND, S_MO2 = 45, 46, 47, 48
    a.label("H_vp")
    a(f"""
    s_mov_b32 s{S_STEP}, 0
    s_mov_b32 s{S_PEND}, 0
    s_mov_b32 s{S_MO}, {MEMR_OFF}
    s_mov_b32 s{S_MO2}, {MEMR_OFF+4096}
    s_lshl_b32 s{S_VPO}, s{S_RANK}, 10
    s_add_u32 s{S_VPO}, s{S_VPO}, {VP_OFF}
    v_mov_b32 v7, 16
    H_vp_step:
    s_mov_b32 s{S_CNT}, s{S_LIM}
    H_vp_poll:
    """)
    for u in range(7):
        a(f"buffer_load_dwordx4 {vr(MFm+4*u,4)}, v{L16}, {WS}, s{S_MO if u < 4 else S_MO2} offen offset:{(u&3)*1024} sc1")
    for r in range(8):
        a(f"v_mov_b32 v{AC+r}, 0")
    a(f"""
    v_mov_b32 v8, s{S_STEP}
    s_waitcnt vmcnt(0)
    s_cmp_eq_u32 s{S_PEND}, 0
    s_cbranch_scc1 H_vp_nofl
    s_mov_b64 exec, 1
    buffer_store_dword v8, v7, {WS}, s{S_FLG} offen sc1
    s_mov_b64 exec, -1
    s_mov_b32 s{S_PEND}, 0
    H_vp_nofl:
    s_cmp_ge_u32 s{S_STEP}, 64
    s_cbranch_scc1 H_vp_end
    """)
    r = list(range(MFm, MFm + 28))
    a(f"v_max3_u32 v{TMP}, v{r[0]}, v{r[1]}, v{r[2]}")
    r = r[3:]
    while len(r) >= 2:
        a(f"v_max3_u32 v{TMP}, v{TMP}, v{r[0]}, v{r[1]}"); r = r[2:]
    a(f"v_max_u32 v{TMP}, v{TMP}, v{r[0]}")
    a(f"""
    v_cmp_eq_u32 vcc, -1, v{TMP}
    s_cbranch_vccz H_vp_go
    s_sleep 4
    s_sub_u32 s{S_CNT}, s{S_CNT}, 1
    s_cmp_lg_u32 s{S_CNT}, 0
    s_cbranch_scc1 H_vp_poll
    s_mov_b32 s{S_LIM}, 1
    H_vp_go:
    """)
    for u in range(7):
        for t in range(2):
            a(f"v_smfmac_f32_16x16x64_bf16 {vr(AC+4*t,4)}, {vr(MFm+4*u,4)}, {WBr(t,2*u,8)}, v{IDX}")
    a(f"s_add_u32 s{S_STEP}, s{S_STEP}, 1")
    a(f"s_mov_b32 s{S_PEND}, 1")
    for t in range(2):
        a(f"v_cvt_pk_bf16_f32 v{O+2*t}, v{AC+4*t}, v{AC+4*t+1}")
        a(f"v_cvt_pk_bf16_f32 v{O+2*t+1}, v{AC+4*t+2}, v{AC+4*t+3}")
    a(f"""
    buffer_store_dwordx4 {vr(O,4)}, v{L16}, {WS}, s{S_VPO} offen sc1
    s_cmp_lt_u32 s{S_STEP}, 64
    s_cselect_b32 s{S_T0}, {MEMS_STEP}, 0
    s_add_u32 s{S_MO}, s{S_MO}, s{S_T0}
    s_add_u32 s{S_MO2}, s{S_MO2}, s{S_T0}
    s_add_u32 s{S_VPO}, s{S_VPO}, {224*FR}
    s_branch H_vp_step
    H_vp_end:
    s_waitcnt vmcnt(0)
    """)
    gc.evt(a, 5, DIAG, 8, 9)
    a("s_endpgm")


def gen_f1(a):
    TXr, KX, MKr, D, MSK = 16, 72, 184, 240, 8
    MFm = KX
    V_FA, V_LB, V_MA, V_PM, V_FLG = 252, 253, 254, 255, 7
    S_S, S_N, S_QT, S_MO = 45, 46, 47, 48
    a(f"""
    s_sub_u32 s{S_QT}, s{S_WAVE}, 1
    s_mov_b32 s{S_S}, s{S_C}
    s_mov_b32 s{S_N}, 0
    s_lshl_b32 s{S_T0}, s{S_QT}, 4
    v_add_u32 v16, s{S_T0}, v{L15}
    v_lshlrev_b32 v17, 2, v{G}
    v_mov_b32 v18, {NEG}
    """)
    for kt in range(2):
        for r in range(4):
            a(f"v_add_u32 v19, {16*kt+r}, v17")
            a(f"v_cmp_le_u32 vcc, v19, v16")
            a(f"v_cndmask_b32 v{MSK+4*kt+r}, v18, 0, vcc")
    a(f"""
    s_lshl_b32 s{S_T0}, s{S_WAVE}, 13
    v_add_u32 v{V_LB}, s{S_T0}, v{L16}
    v_lshrrev_b32 v16, 1, v{G}
    v_lshlrev_b32 v16, 8, v16
    v_lshrrev_b32 v17, 1, v{L15}
    v_lshl_add_u32 v16, v17, 5, v16
    v_and_b32 v17, 1, v{G}
    v_lshl_add_u32 v16, v17, 3, v16
    v_add_u32 v{V_MA}, s{S_T0}, v16
    s_and_b32 s{S_T0}, s{S_H}, 1
    s_lshl_b32 s{S_T0}, s{S_T0}, 3
    v_add_u32 v{V_PM}, s{S_T0}, v{L16}
    v_min_u32 v16, 13, v{LN}
    s_mul_i32 s{S_T0}, s{S_H}, 14
    v_add_u32 v16, s{S_T0}, v16
    v_lshlrev_b32 v16, 6, v16
    v_add_u32 v{V_FA}, {PROG_OFF}, v16
    s_lshl_b32 s{S_T0}, s{S_QT}, 2
    s_add_u32 s{S_T0}, s{S_T0}, 20
    v_mov_b32 v{V_FLG}, s{S_T0}
    H_f1_step:
    s_and_b32 s{S_T0}, s{S_S}, 3
    s_lshl_b32 s{S_T0}, s{S_T0}, 2
    v_add_u32 v{D}, s{S_T0}, v{V_FA}
    s_lshr_b32 s{S_T0}, s{S_S}, 2
    v_mov_b32 v{D+1}, s{S_T0}
    """)
    flagwait(a, D, D + 1, D + 2)
    a(f"""
    s_lshl_b32 s{S_T0}, s{S_S}, 4
    s_add_u32 s{S_T0}, s{S_T0}, s{S_H}
    s_mul_i32 s{S_T0}, s{S_T0}, {28*FR}
    s_lshl_b32 s{S_T1}, s{S_QT}, 10
    s_add_u32 s{S_T0}, s{S_T0}, s{S_T1}
    s_add_u32 s{S_T0}, s{S_T0}, {TX_OFF}
    s_mul_i32 s{S_T1}, s{S_S}, {28*FR}
    s_add_u32 s{S_T1}, s{S_T1}, {XF_OFF}
    s_add_u32 s{S_T2}, s{S_T1}, {14*FR}
    """)
    for ks in range(14):
        a(f"buffer_load_dwordx4 {vr(TXr+4*ks,4)}, v{L16}, {WS}, s{S_T0} offen offset:{(ks&1)*2048} sc1")
        a(f"buffer_load_dwordx4 {vr(KX+8*ks,4)}, v{L16}, {WS}, s{S_T1} offen offset:{(ks&3)*1024}")
        a(f"buffer_load_dwordx4 {vr(KX+8*ks+4,4)}, v{L16}, {WS}, s{S_T2} offen offset:{(ks&3)*1024}")
        if ks & 1:
            a(f"s_add_u32 s{S_T0}, s{S_T0}, 4096")
        if ks & 3 == 3:
            a(f"s_add_u32 s{S_T1}, s{S_T1}, 4096\ns_add_u32 s{S_T2}, s{S_T2}, 4096")
    for ks in range(14):
        a(f"s_waitcnt vmcnt({39-3*ks})")
        for kt in range(2):
            c_ = vr(MSK + 4 * kt, 4) if ks == 0 else vr(D + 4 * kt, 4)
            a(f"v_mfma_f32_16x16x32_bf16 {vr(D+4*kt,4)}, {vr(KX+8*ks+4*kt,4)}, {vr(TXr+4*ks,4)}, {c_}")
    a(f"s_mul_i32 s{S_MO}, s{S_S}, {MEMS_STEP}")
    a(f"s_add_u32 s{S_MO}, s{S_MO}, {MEMR_OFF}")
    a("s_nop 7")
    mempoll(a, MFm, S_MO, sleep=2)
    for u in range(7):
        a(f"ds_write_b128 v{V_LB}, {vr(MFm+4*u,4)} offset:{u*1024}")
    a(f"v_mov_b32 v{TMP}, v{V_MA}")
    for ks in range(14):
        o = 128 * (ks & 1)
        a(f"ds_read2_b32 {vr(MKr+4*ks,2)}, v{TMP} offset0:{o} offset1:{o+4}")
        a(f"ds_read2_b32 {vr(MKr+4*ks+2,2)}, v{TMP} offset0:{o+1} offset1:{o+5}")
        if ks & 1:
            a(f"v_add_u32 v{TMP}, 1024, v{TMP}")
        if ks == 6:
            a("s_waitcnt lgkmcnt(0)")
    for ks in range(14):
        if ks >= 7:
            a(f"s_waitcnt lgkmcnt({2*(13-ks)})")
        c_ = "0" if ks == 0 else vr(D + 8, 4)
        a(f"v_mfma_f32_16x16x32_bf16 {vr(D+8,4)}, {vr(MKr+4*ks,4)}, {vr(TXr+4*ks,4)}, {c_}")
    Mx, T2 = KX, KX + 1
    a(f"""
    s_lshl_b32 s{S_T0}, s{S_S}, 1
    s_add_u32 s{S_T0}, s{S_T0}, s{S_QT}
    s_mul_i32 s{S_T0}, s{S_T0}, {24*FR}
    s_add_u32 s{S_T0}, s{S_T0}, {PX_OFF}
    s_lshl_b32 s{S_T1}, s{S_H}, 10
    s_add_u32 s{S_T1}, s{S_T1}, s{S_T0}
    s_lshr_b32 s{S_T2}, s{S_H}, 1
    s_lshl_b32 s{S_T2}, s{S_T2}, 10
    s_add_u32 s{S_T2}, s{S_T2}, s{S_T0}
    s_add_u32 s{S_T2}, s{S_T2}, {16*FR}
    v_max3_f32 v{Mx}, v{D}, v{D+1}, v{D+2}
    v_max3_f32 v{Mx}, v{Mx}, v{D+3}, v{D+4}
    v_max3_f32 v{Mx}, v{Mx}, v{D+5}, v{D+6}
    v_max3_f32 v{Mx}, v{Mx}, v{D+7}, v{D+8}
    v_max_f32 v{Mx}, v{Mx}, v{D+10}
    """)
    xg_reduce(a, "v_max_f32", Mx, T2)
    vals = list(range(D, D + 8)) + [D + 8, D + 10]
    for v in vals:
        a(f"v_sub_f32 v{v}, v{v}, v{Mx}")
    for v in vals:
        a(f"v_exp_f32 v{v}, v{v}")
    a(f"v_add_f32 v{Mx}, v{vals[0]}, v{vals[1]}")
    for v in vals[2:]:
        a(f"v_add_f32 v{Mx}, v{Mx}, v{v}")
    xg_reduce(a, "v_add_f32", Mx, T2)
    a(f"v_rcp_f32 v{Mx}, v{Mx}")
    for v in vals:
        a(f"v_mul_f32 v{v}, v{v}, v{Mx}")
    O = KX + 4
    for q in range(4):
        a(f"v_cvt_pk_bf16_f32 v{O+q}, v{D+2*q}, v{D+2*q+1}")
    a(f"""
    v_cvt_pk_bf16_f32 v{O+4}, v{D+8}, v{D+8}
    v_cvt_pk_bf16_f32 v{O+5}, v{D+10}, v{D+10}
    buffer_store_dwordx4 {vr(O,4)}, v{L16}, {WS}, s{S_T1} offen sc1
    buffer_store_dwordx2 {vr(O+4,2)}, v{V_PM}, {WS}, s{S_T2} offen sc1
    s_add_u32 s{S_N}, s{S_N}, 1
    v_mov_b32 v{TMP}, s{S_N}
    s_waitcnt vmcnt(0)
    s_mov_b64 exec, 1
    buffer_store_dword v{TMP}, v{V_FLG}, {WS}, s{S_FLG} offen sc1
    s_mov_b64 exec, -1
    s_add_u32 s{S_S}, s{S_S}, 14
    s_cmp_lt_u32 s{S_S}, 64
    s_cbranch_scc1 H_f1_step
    s_waitcnt vmcnt(0)
    """)
    gc.evt(a, 5, DIAG, 8, 9)
    a("s_endpgm")


def gen_f2(a):
    PXX, PXM, VPr, D, XV, GV = 16, 80, 112, 176, 184, 188
    V_F0, V_F1, V_THR, V_VAL, V_OA = 8, 9, 10, 11, 12
    S_U, S_S, S_QT, S_MT, S_IDX, S_RS = 45, 46, 47, 48, 49, 50
    SO = 52
    a.label("H_f2")
    srd(a, SO, S_OUT, 2048 * 896)
    a(f"""
    v_mov_b32 v{V_F0}, {PROG_OFF+28}
    v_mov_b32 v{V_THR}, 0
    """)
    flagwait(a, V_F0, V_THR, V_VAL)
    a(f"""
    v_mov_b32 v{V_F0}, {PROG_OFF+32}
    buffer_load_dwordx2 v[14:15], v{V_F0}, {WS}, 0 offen sc1
    s_and_b32 s{S_QT}, s{S_H}, 1
    s_lshr_b32 s{S_S}, s{S_H}, 1
    s_mov_b32 s{S_U}, 0
    v_mul_u32_u24 v{V_F0}, {14*64}, v{L15}
    v_add_u32 v{V_F0}, {PROG_OFF}, v{V_F0}
    v_mul_u32_u24 v{V_OA}, 896, v{L15}
    v_lshl_add_u32 v{V_OA}, v{G}, 4, v{V_OA}
    s_waitcnt vmcnt(0)
    v_readfirstlane_b32 s{S_IDX}, v14
    v_cvt_pk_bf16_f32 v15, v15, v15
    v_and_b32 v15, 0xffff0000, v15
    v_mul_f32 v15, {f32hex(-LOG2E)}, v15
    v_exp_f32 v15, v15
    v_add_f32 v15, 1.0, v15
    v_rcp_f32 v15, v15
    v_cvt_pk_bf16_f32 v15, v15, v15
    v_and_b32 v15, 0xffff0000, v15
    v_readfirstlane_b32 s{S_RS}, v15
    H_f2_step:
    s_lshl_b32 s{S_MT}, s{S_S}, 1
    s_add_u32 s{S_MT}, s{S_MT}, s{S_QT}
    s_lshl_b32 s{S_T0}, s{S_C}, 6
    s_and_b32 s{S_T1}, s{S_S}, 3
    s_lshl_b32 s{S_T1}, s{S_T1}, 2
    s_add_u32 s{S_T1}, s{S_T1}, s{S_T0}
    v_add_u32 v{V_F1}, s{S_T1}, v{V_F0}
    s_lshr_b32 s{S_T1}, s{S_S}, 2
    v_mov_b32 v{V_THR}, s{S_T1}
    """)
    flagwait(a, V_F1, V_THR, V_VAL)
    a(f"""
    s_mul_i32 s{S_T0}, s{S_S}, {VX_STEP}
    s_lshl_b32 s{S_T1}, s{S_C}, 11
    s_add_u32 s{S_T0}, s{S_T0}, s{S_T1}
    s_add_u32 s{S_T0}, s{S_T0}, {VX_OFF}
    """)
    for h in range(16):
        for t in range(2):
            a(f"buffer_load_dwordx4 {ar(8*h+4*t,4)}, v{L16}, {WS}, s{S_T0} offen offset:{t*FR} sc1")
        a(f"s_add_u32 s{S_T0}, s{S_T0}, {28*FR}")
    a(f"""
    s_mul_i32 s{S_T0}, s{S_MT}, 14
    s_add_u32 s{S_T0}, s{S_T0}, s{S_C}
    s_lshl_b32 s{S_T0}, s{S_T0}, 10
    s_add_u32 s{S_T0}, s{S_T0}, {XF_OFF}
    buffer_load_dwordx4 {vr(XV,4)}, v{L16}, {WS}, s{S_T0} offen
    s_lshl_b32 s{S_T0}, s{S_MT}, 6
    s_add_u32 s{S_T0}, s{S_T0}, {RG_OFF+8192}
    v_lshlrev_b32 v13, 2, v{L15}
    buffer_load_dword v{GV}, v13, {WS}, s{S_T0} offen
    ; lanes 0..15: V' flag (h', c) word 4 > s ; lanes 16..: F1 flag (h', s%14) word 5+qt > s/14
    s_mul_i32 s{S_T1}, s{S_S}, 4682
    s_lshr_b32 s{S_T1}, s{S_T1}, 16
    s_mul_i32 s{S_T2}, s{S_T1}, 14
    s_sub_u32 s{S_T2}, s{S_S}, s{S_T2}
    s_lshl_b32 s{S_T2}, s{S_T2}, 6
    s_lshl_b32 s{S_T3}, s{S_QT}, 2
    s_add_u32 s{S_T2}, s{S_T2}, s{S_T3}
    s_add_u32 s{S_T2}, s{S_T2}, 20
    s_lshl_b32 s{S_T0}, s{S_C}, 6
    s_add_u32 s{S_T0}, s{S_T0}, 16
    v_mov_b32 v13, s{S_T0}
    v_mov_b32 v14, s{S_T2}
    v_mov_b32 v15, s{S_S}
    v_mov_b32 v{V_THR}, s{S_T1}
    v_cmp_gt_u32 vcc, 16, v{LN}
    v_cndmask_b32 v13, v14, v13, vcc
    v_cndmask_b32 v{V_THR}, v{V_THR}, v15, vcc
    v_add_u32 v{V_F1}, v13, v{V_F0}
    """)
    flagwait(a, V_F1, V_THR, V_VAL, sleep=2)
    a(f"""
    s_mul_i32 s{S_T0}, s{S_MT}, {24*FR}
    s_add_u32 s{S_T0}, s{S_T0}, {PX_OFF}
    s_mul_i32 s{S_T1}, s{S_S}, {224*FR}
    s_lshl_b32 s{S_T2}, s{S_C}, 10
    s_add_u32 s{S_T1}, s{S_T1}, s{S_T2}
    s_add_u32 s{S_T1}, s{S_T1}, {VP_OFF}
    """)
    for f in range(24):
        dst = PXX + 4 * f
        a(f"buffer_load_dwordx4 {vr(dst,4)}, v{L16}, {WS}, s{S_T0} offen offset:{(f&3)*FR} sc1")
        if f & 3 == 3:
            a(f"s_add_u32 s{S_T0}, s{S_T0}, 4096")
    for h in range(16):
        a(f"buffer_load_dwordx4 {vr(VPr+4*h,4)}, v{L16}, {WS}, s{S_T1} offen sc1")
        a(f"s_add_u32 s{S_T1}, s{S_T1}, {14*FR}")
    for h in range(16):
        a(f"s_waitcnt vmcnt({39-h})")
        for t in range(2):
            c_ = "0" if h == 0 else vr(D + 4 * t, 4)
            a(f"v_mfma_f32_16x16x32_bf16 {vr(D+4*t,4)}, {ar(8*h+4*t,4)}, {vr(PXX+4*h,4)}, {c_}")
    for hp in range(8):
        b = VPr + 8 * hp
        a(f"s_waitcnt vmcnt({14-2*hp})")
        a(f"v_swap_b32 v{b+2}, v{b+4}")
        a(f"v_swap_b32 v{b+3}, v{b+5}")
        for t in range(2):
            a(f"v_mfma_f32_16x16x32_bf16 {vr(D+4*t,4)}, {vr(b+4*t,4)}, {vr(PXM+4*hp,4)}, {vr(D+4*t,4)}")
    B = PXX
    for r in range(4):
        a(f"v_lshlrev_b32 v{B+2*r}, 16, v{XV+r}")
        a(f"v_and_b32 v{B+2*r+1}, 0xffff0000, v{XV+r}")
    a(f"""
    s_lshr_b32 s{S_T0}, s{S_IDX}, 4
    s_cmp_lg_u32 s{S_T0}, s{S_MT}
    s_cbranch_scc1 H_f2_nomod
    v_min_u32 v13, 27, v{LN}
    v_lshlrev_b32 v13, 6, v13
    v_add_u32 v13, {PROG_OFF+28}, v13
    v_mov_b32 v{V_THR}, 0
    """)
    flagwait(a, 13, V_THR, V_VAL)
    Y, YL = PXM, PXM + 8
    a(f"""
    v_lshlrev_b32 v13, 5, v{G}
    s_lshl_b32 s{S_T0}, s{S_C}, 7
    s_add_u32 s{S_T0}, s{S_T0}, {YM_OFF}
    s_mov_b32 s{S_T1}, 28
    """)
    for r in range(8):
        a(f"v_mov_b32 v{Y+r}, 0")
    a(f"""
    H_f2_ysum:
    buffer_load_dwordx4 {vr(YL,4)}, v13, {WS}, s{S_T0} offen sc1
    buffer_load_dwordx4 {vr(YL+4,4)}, v13, {WS}, s{S_T0} offen offset:16 sc1
    s_add_u32 s{S_T0}, s{S_T0}, 1792
    s_waitcnt vmcnt(0)
    """)
    for r in range(8):
        a(f"v_add_f32 v{Y+r}, v{Y+r}, v{YL+r}")
    a(f"""
    s_sub_u32 s{S_T1}, s{S_T1}, 1
    s_cmp_lg_u32 s{S_T1}, 0
    s_cbranch_scc1 H_f2_ysum
    s_and_b32 s{S_T0}, s{S_IDX}, 15
    v_cmp_eq_u32 vcc, s{S_T0}, v{L15}
    """)
    for r in range(8):
        rbf(a, Y + r)
        a(f"v_mul_f32 v{Y+r}, s{S_RS}, v{Y+r}")
        rbf(a, Y + r)
        a(f"v_add_f32 v{Y+r}, v{Y+r}, v{B+r}")
        rbf(a, Y + r)
        a(f"v_cndmask_b32 v{B+r}, v{B+r}, v{Y+r}, vcc")
    a.label("H_f2_nomod")
    OM = PXM + 16
    a(f"v_sub_f32 v{OM}, 1.0, v{GV}")
    rbf(a, OM)
    O = PXM + 20
    for r in range(4):
        lo, hi = D + r, D + 4 + r
        T = PXM + 24
        a(f"v_cvt_pk_bf16_f32 v{T}, v{lo}, v{hi}")
        a(f"v_lshlrev_b32 v{lo}, 16, v{T}")
        a(f"v_and_b32 v{hi}, 0xffff0000, v{T}")
        a(f"v_mul_f32 v{lo}, v{lo}, v{GV}")
        a(f"v_mul_f32 v{hi}, v{hi}, v{GV}")
        a(f"v_cvt_pk_bf16_f32 v{T}, v{lo}, v{hi}")
        a(f"v_lshlrev_b32 v{lo}, 16, v{T}")
        a(f"v_and_b32 v{hi}, 0xffff0000, v{T}")
        a(f"v_mul_f32 v{B+2*r}, v{B+2*r}, v{OM}")
        a(f"v_mul_f32 v{B+2*r+1}, v{B+2*r+1}, v{OM}")
        a(f"v_cvt_pk_bf16_f32 v{T}, v{B+2*r}, v{B+2*r+1}")
        a(f"v_lshlrev_b32 v{B+2*r}, 16, v{T}")
        a(f"v_and_b32 v{B+2*r+1}, 0xffff0000, v{T}")
        a(f"v_add_f32 v{lo}, v{lo}, v{B+2*r}")
        a(f"v_add_f32 v{hi}, v{hi}, v{B+2*r+1}")
        a(f"v_cvt_pk_bf16_f32 v{O+r}, v{lo}, v{hi}")
    a(f"""
    s_mul_i32 s{S_T0}, s{S_MT}, {16*896}
    s_lshl_b32 s{S_T1}, s{S_C}, 6
    s_add_u32 s{S_T0}, s{S_T0}, s{S_T1}
    buffer_store_dwordx4 {vr(O,4)}, v{V_OA}, s[{SO}:{SO+3}], s{S_T0} offen
    s_add_u32 s{S_S}, s{S_S}, 8
    s_add_u32 s{S_U}, s{S_U}, 1
    s_cmp_lt_u32 s{S_U}, 8
    s_cbranch_scc1 H_f2_step
    s_waitcnt vmcnt(0)
    """)
    gc.evt(a, 5, DIAG, 8, 9)
    a("s_endpgm")
```

```python
from asmlib import *
from layout import *
import gen_pre as gpre

S_X, S_OUT, S_DBG, S_WS = 4, 8, 10, 12
SRD_WS, SRD_X, SRD_DBG = 16, 20, 24
S_WAVE, S_ROLE, S_FB, S_LIM, S_CNT, S_STEP = 28, 29, 30, 31, 32, 33
S_K = 34
S_T0, S_T1, S_T2, S_T3 = 41, 42, 43, 44
S_MEMOFF, S_PSOFF = 45, 46
S_XO = 47
S_SLP, S_SL2 = 48, 49
S_RDY, S_MN = 56, 57
S_XB = 58
S_STP = 60
S_CNTS = 64
S_STB = 87
SPIN_LIMIT = 200000
OPT = dict(sleepT=0, sleepV=0, nox=0, sleepVm=0, memtime=0, novx=0, lat=0, nowarm=0, lead=3, wide=0, adapt=0, nomn=1, vdelay=0, lo=1, hi=2, nvx=0, rsleep=16, nb=10, w64=1, wfirst=0, wgap=2, evtonly=0, lightT=0, lightV=0, tstride=7, g_nold=0, g_plain=0, clk=0, csl=8, tlb=0, xfwarm=1)
WS = f"s[{SRD_WS}:{SRD_WS+3}]"
XS = f"s[{SRD_X}:{SRD_X+3}]"
DBG = f"s[{SRD_DBG}:{SRD_DBG+3}]"
OOB = 0x7FFFFFF0

T_TR, T_PART = 8192, 20480
V_PART, V_WL = 8192, 16384
NWL = 12

V_IDX, V_FA, V_TMP = 1, 2, 19
MF, ACC = 20, 48
LN, G4, L15 = 40, 41, 42


def common_setup(a):
    a(f"""
    v_and_b32 v{LN}, 63, v0
    v_lshrrev_b32 v{G4}, 4, v{LN}
    v_and_b32 v{L15}, 15, v{LN}
    v_and_b32 v20, 1, v0
    v_cmp_eq_u32 vcc, 0, v20
    v_mov_b32 v20, 0xEEEE
    v_mov_b32 v21, 0x4444
    v_cndmask_b32 v{V_IDX}, v20, v21, vcc
    s_lshl_b32 s{S_T0}, s{S_WAVE}, 1
    """)
    for u in range(7):
        a(f"""
        s_add_u32 s{S_T1}, s{S_T0}, {u}
        s_sub_u32 s{S_T2}, s{S_T1}, 7
        s_cmp_ge_u32 s{S_T1}, 7
        s_cselect_b32 s{S_K+u}, s{S_T2}, s{S_T1}
        s_lshl_b32 s{S_T1}, s{S_K+u}, 10
        v_lshl_add_u32 v{V_FA+u}, v{LN}, 4, s{S_T1}
        """)
    a(f"s_mov_b32 s{S_LIM}, {SPIN_LIMIT}")
    a(f"s_mov_b32 s{S_STEP}, 0")
    a(f"s_mov_b32 s{S_MEMOFF}, {MEMS_OFF}")
    a(f"s_mov_b32 s{S_PSOFF}, {PS_OFF}")


def poll(a, loads, regs, depth2=True, sleep=0):
    n = len(loads)
    top, done = a.newlabel("poll"), a.newlabel("polled")
    a(f"s_mov_b32 s{S_CNT}, s{S_LIM}")
    if depth2:
        for l in loads:
            a(l)
    a.label(top)
    for l in loads:
        a(l)
    a(f"s_waitcnt vmcnt({n if depth2 else 0})")
    r = list(regs)
    a(f"v_max3_u32 v{V_TMP}, v{r[0]}, v{r[1]}, v{r[2]}")
    r = r[3:]
    while len(r) >= 2:
        a(f"v_max3_u32 v{V_TMP}, v{V_TMP}, v{r[0]}, v{r[1]}"); r = r[2:]
    if r:
        a(f"v_max_u32 v{V_TMP}, v{V_TMP}, v{r[0]}")
    a(f"v_cmp_eq_u32 vcc, -1, v{V_TMP}")
    a(f"s_cbranch_vccz {done}")
    if sleep:
        a(f"s_sleep {sleep}")
    a(f"""
    s_sub_u32 s{S_CNT}, s{S_CNT}, 1
    s_cmp_lg_u32 s{S_CNT}, 0
    s_cbranch_scc1 {top}
    s_mov_b32 s{S_LIM}, 1
    """)
    a.label(done)


def chk4(a, r, ok):
    a(f"v_max3_u32 v{V_TMP}, v{r}, v{r+1}, v{r+2}")
    a(f"v_max_u32 v{V_TMP}, v{V_TMP}, v{r+3}")
    a(f"v_cmp_eq_u32 vcc, -1, v{V_TMP}")
    a(f"s_cbranch_vccz {ok}")


def light(a, load, reg, name):
    a(f"s_mov_b32 s{S_CNT}, s{S_LIM}")
    a(load)
    a.label(name)
    a(load)
    a("s_waitcnt vmcnt(1)")
    a(f"v_cmp_ne_u32 vcc, -1, v{reg}")
    a(f"s_cbranch_vccnz {name}_go")
    retry(a, name)
    a.label(name + "_go")


def retry(a, top):
    a(f"""
    s_sub_u32 s{S_CNT}, s{S_CNT}, 1
    s_cmp_lg_u32 s{S_CNT}, 0
    s_cbranch_scc1 {top}
    s_mov_b32 s{S_LIM}, 1
    """)


def backoff(a, sreg):
    top, done = a.newlabel("bo"), a.newlabel("bod")
    a(f"""
    s_mov_b32 s{S_T0}, s{sreg}
    {top}:
    s_cmp_eq_u32 s{S_T0}, 0
    s_cbranch_scc1 {done}
    s_sleep 1
    s_sub_u32 s{S_T0}, s{S_T0}, 1
    s_branch {top}
    {done}:
    """)


def adapt(a, sreg, saved):
    lo, hi = OPT["lo"], OPT["hi"]
    a(f"""
    s_sub_u32 s{S_T0}, s{S_LIM}, s{saved}
    s_sub_u32 s{S_T1}, s{sreg}, 1
    s_max_i32 s{S_T1}, s{S_T1}, 0
    s_cmp_lt_u32 s{S_T0}, {lo}
    s_cselect_b32 s{sreg}, s{S_T1}, s{sreg}
    s_sub_u32 s{S_T1}, s{S_T0}, {hi}
    s_add_u32 s{S_T1}, s{S_T1}, s{sreg}
    s_min_u32 s{S_T1}, s{S_T1}, 48
    s_cmp_gt_u32 s{S_T0}, {hi}
    s_cselect_b32 s{sreg}, s{S_T1}, s{sreg}
    """)


def stamp(a, k, diag):
    if diag and not OPT["evtonly"]:
        a(f"{'s_memtime' if OPT['memtime'] else 's_memrealtime'} s[{S_STP+2*k}:{S_STP+2*k+1}]")


def stamp_setup(a, diag):
    if diag:
        a(f"s_lshl_b32 s{S_STB}, s{S_ROLE}, 2\ns_add_u32 s{S_STB}, s{S_STB}, s{S_WAVE}\ns_lshl_b32 s{S_STB}, s{S_STB}, 11\ns_add_u32 s{S_STB}, s{S_STB}, {STAMP_OFF}")


def stamp_store(a, n, diag, t0, t1):
    if not diag or OPT["evtonly"]:
        return
    a("s_waitcnt lgkmcnt(0)")
    a(f"s_lshl_b32 s{S_T0}, s{S_STEP}, 5")
    a(f"s_add_u32 s{S_T0}, s{S_T0}, s{S_STB}")
    a("s_mov_b64 exec, 1")
    for k in range(n):
        a(f"v_mov_b32 v{t0}, s{S_STP+2*k}")
        a(f"v_mov_b32 v{t1}, {4*k}")
        a(f"buffer_store_dword v{t0}, v{t1}, {WS}, s{S_T0} offen")
    a("s_mov_b64 exec, -1")


EVT_OFF = STAMP_OFF + (1 << 19)


def evt(a, k, diag, t0, t1, role=None):
    if not diag:
        return
    a(f"""
    s_memrealtime s[96:97]
    s_lshl_b32 s98, s{S_ROLE if role is None else role}, 2
    s_add_u32 s98, s98, s{S_WAVE}
    s_lshl_b32 s98, s98, 5
    s_add_u32 s98, s98, {EVT_OFF + 4*k}
    s_waitcnt lgkmcnt(0)
    v_mov_b32 v{t0}, s96
    v_mov_b32 v{t1}, 0
    s_mov_b64 exec, 1
    buffer_store_dword v{t0}, v{t1}, {WS}, s98 offen
    s_mov_b64 exec, -1
    s_waitcnt vmcnt(0)
    """)


def smf(acc, A, B):
    return f"v_smfmac_f32_16x16x64_bf16 {vr(acc,4)}, {vr(A,4)}, {B}, v{V_IDX}"


DPPS = ["quad_perm:[1,0,3,2]", "quad_perm:[2,3,0,1]", "row_half_mirror", "row_mirror"]


def mem_polls():
    return [f"buffer_load_dwordx4 {vr(MF+4*u,4)}, v{V_FA+u}, {WS}, s{S_MEMOFF} offen sc1" for u in range(2)]


def gen_T(a, diag=False):
    SA, XK = 76, 88
    (V_M0, V_M1, V_MK0, V_MK1, V_TW, V_TRD, V_PW, V_PR, V_PA0, V_PA1) = range(9, 19)
    V_MASK = 0

    def W(jj, u):
        o = (u * 7 + jj) if u < 2 else 14 + jj * 5 + (u - 2)
        return ar(8 * o, 8) if o < 32 else vr(120 + 8 * (o - 32), 8)

    a.label("L_role_T")
    a.c("T role: head = S_ROLE")
    evt(a, 1, diag, 20, 21)
    common_setup(a)
    h = S_ROLE
    S_ODD, S_TAU0, S_TAUL, S_CC0, S_CCL = 80, 81, 82, 83, 84
    a(f"""
    s_and_b32 s{S_ODD}, s{S_WAVE}, 1
    s_mul_i32 s{S_T0}, s{S_WAVE}, 7
    s_add_u32 s{S_TAU0}, s{S_T0}, s{S_ODD}
    s_lshr_b32 s{S_CC0}, s{S_TAU0}, 1
    s_add_u32 s{S_T1}, s{S_T0}, 6
    s_cmp_eq_u32 s{S_ODD}, 1
    s_cselect_b32 s{S_TAUL}, s{S_T0}, s{S_T1}
    s_lshr_b32 s{S_CCL}, s{S_TAUL}, 1
    v_lshlrev_b32 v43, 4, v{LN}
    v_sub_u32 v43, 0, v43
    s_mul_i32 s{S_T3}, s{h}, {28*14*FR}
    """)
    cw_a_off(a, S_T1, h)
    cwait(a, [(f"s{S_T1}", 7), (4 * gpre.CW_M, 32)], 20, OPT["csl"])
    chain_mode(a, 20, 21)
    fb_fixup(a, 20)
    evt(a, 4, diag, 20, 21)
    a.c("weights -> registers")
    for u in range(7):
        a(f"v_lshl_add_u32 v{ACC+u}, v{V_FA+u}, 1, v43")
    a(f"s_mul_i32 s{S_T0}, s{S_TAU0}, {14*FR}")
    a(f"s_add_u32 s{S_T0}, s{S_T0}, s{S_T3}")
    a(f"s_mov_b32 s{S_T1}, {14*FR}")
    for jj in range(7):
        if jj == 6:
            a(f"s_mul_i32 s{S_T0}, s{S_TAUL}, {14*FR}")
            a(f"s_add_u32 s{S_T0}, s{S_T0}, s{S_T3}")
        for u in range(7):
            w = W(jj, u)
            k, base = w[0], int(w[2:].split(":")[0])
            a(f"buffer_load_dwordx4 {k}[{base}:{base+3}], v{ACC+u}, {WS}, s{S_T0} offen")
            a(f"buffer_load_dwordx4 {k}[{base+4}:{base+7}], v{ACC+u}, {WS}, s{S_T0} offen offset:1024")
        if jj < 5:
            a(f"s_add_u32 s{S_T0}, s{S_T0}, s{S_T1}")
    a.c("address registers")
    a(f"""
    v_and_b32 v20, 1, v{G4}
    v_lshrrev_b32 v21, 1, v{G4}
    v_cmp_eq_u32 vcc, 1, v20
    v_add_u32 v22, s{S_CC0}, v20
    s_add_u32 s{S_T0}, s{S_CC0}, 2
    v_mov_b32 v23, s{S_T0}
    v_mov_b32 v24, s{S_CCL}
    v_cndmask_b32 v23, v23, v24, vcc
    s_sub_u32 s{S_T0}, s{S_ODD}, 1
    s_not_b32 s{S_T1}, s{S_T0}
    v_mov_b32 v24, s{S_T0}
    v_cndmask_b32 v{V_M0}, -1, v24, vcc
    v_mov_b32 v24, s{S_T1}
    v_cndmask_b32 v{V_M1}, -1, v24, vcc
    v_and_b32 v25, 7, v{L15}
    v_lshlrev_b32 v25, 5, v25
    v_lshl_add_u32 v25, v21, 3, v25
    v_lshl_add_u32 v{V_MK0}, v22, 9, v25
    v_lshl_add_u32 v{V_MK1}, v23, 9, v25
    s_mul_i32 s{S_T2}, s{S_WAVE}, 2560
    s_add_u32 s{S_T2}, s{S_T2}, {T_TR}
    v_lshlrev_b32 v25, 3, v{LN}
    v_lshl_add_u32 v25, v21, 6, v25
    v_add_u32 v{V_TW}, s{S_T2}, v25
    v_and_b32 v25, 3, v{L15}
    v_lshrrev_b32 v26, 1, v25
    v_lshlrev_b32 v25, 7, v25
    v_lshl_add_u32 v25, v26, 6, v25
    v_lshrrev_b32 v26, 2, v{LN}
    v_lshl_add_u32 v25, v26, 3, v25
    v_add_u32 v{V_TRD}, s{S_T2}, v25
    s_lshl_b32 s{S_T2}, s{S_WAVE}, 11
    s_add_u32 s{S_T2}, s{S_T2}, {T_PART}
    v_lshlrev_b32 v25, 9, v{G4}
    v_lshl_add_u32 v25, v{L15}, 4, v25
    v_add_u32 v{V_PW}, s{S_T2}, v25
    s_lshl_b32 s{S_T2}, s{S_WAVE}, 9
    s_add_u32 s{S_T2}, s{S_T2}, {T_PART}
    v_and_b32 v25, 31, v{LN}
    v_lshl_add_u32 v{V_PR}, v25, 4, s{S_T2}
    s_lshl_b32 s{S_T0}, s{S_WAVE}, 1
    v_add_u32 v26, s{S_T0}, v20
    s_and_b32 s85, s{h}, 1
    s_bfe_u32 s86, s{h}, 0x10001
    s_lshr_b32 s{S_T0}, s{h}, 2
    s_mul_i32 s{S_T0}, s{S_T0}, {PS_W}
    s_lshl_b32 s{S_T1}, s86, 10
    s_add_u32 s{S_T1}, s{S_T1}, s{S_T0}
    s_lshl_b32 s{S_T2}, s85, 9
    s_add_u32 s{S_T1}, s{S_T1}, s{S_T2}
    v_lshrrev_b32 v27, 3, v{L15}
    v_lshlrev_b32 v27, 8, v27
    v_lshl_add_u32 v27, v26, 5, v27
    v_and_b32 v28, 1, v{L15}
    v_lshl_add_u32 v27, v28, 4, v27
    v_bfe_u32 v29, v{L15}, 1, 2
    v_lshl_add_u32 v27, v29, 2, v27
    v_add_u32 v27, s{S_T1}, v27
    s_add_u32 s{S_T1}, s{S_T0}, 2048
    s_lshl_b32 s{S_T2}, s86, 9
    s_add_u32 s{S_T1}, s{S_T1}, s{S_T2}
    s_lshl_b32 s{S_T2}, s85, 2
    s_add_u32 s{S_T1}, s{S_T1}, s{S_T2}
    v_bfe_u32 v29, v{L15}, 2, 1
    v_lshlrev_b32 v29, 8, v29
    v_lshl_add_u32 v29, v26, 5, v29
    v_lshl_add_u32 v29, v28, 4, v29
    v_bfe_u32 v30, v{L15}, 1, 1
    v_lshl_add_u32 v29, v30, 3, v29
    v_add_u32 v29, s{S_T1}, v29
    v_mov_b32 v30, {OOB}
    v_cmp_gt_u32 vcc, 32, v{LN}
    v_cndmask_b32 v{V_PA0}, v30, v27, vcc
    v_cndmask_b32 v29, v30, v29, vcc
    v_cmp_gt_u32 vcc, 8, v{L15}
    v_cndmask_b32 v{V_PA1}, v30, v29, vcc
    v_mov_b32 v30, 0xf149f2ca
    v_cndmask_b32 v{V_MASK}, v30, 0, vcc
    s_lshl_b32 s{S_XO}, s{S_WAVE}, 13
    s_add_u32 s{S_XO}, s{S_XO}, {XK_OFF}
    s_lshl_b32 s{S_T0}, s{S_K}, 10
    s_sub_u32 s{S_XO}, s{S_XO}, s{S_T0}
    s_mov_b32 s{S_SLP}, 0
    """)
    stamp_setup(a, diag)

    def xloads():
        for sg in range(2):
            for f in range(4):
                a(f"buffer_load_dwordx4 {vr(XK+16*sg+4*f,4)}, v{V_FA}, {WS}, s{S_XO} offen offset:{f*1024}")
            a(f"s_add_u32 s{S_XO}, s{S_XO}, {4096 if sg == 0 else XK_STEP-4096}")

    def zero():
        for r in range(28):
            a(f"v_mov_b32 v{ACC+r}, 0")
        for r in range(12):
            a(f"v_mov_b32 v{SA+r}, " + (f"v{V_MASK}" if r in (8, 10) else "0"))

    xloads()
    zero()
    a("s_waitcnt vmcnt(0) lgkmcnt(0)")
    evt(a, 2, diag, 20, 21)
    a("s_barrier")

    acc = lambda j: ACC + 4 * j
    a.label("L_T_step")
    NB = OPT["nb"]
    own = [smf(acc(j), MF + 4 * u, W(j, u)) for u in range(2) for j in range(7)]
    rd = [f"ds_read_b128 {vr(MF+4*u,4)}, v{V_FA+u}" for u in range(2, 7)]
    wr = [f"ds_write_b64 v{V_FA+u}, {vr(MF+4*u+2*k,2)} offset:{8*k}" for u in range(2) for k in range(2)]
    L0, L1 = mem_polls()
    if OPT["lightT"]:
        light(a, L0, MF, "L_T_light")
    a(f"s_mov_b32 s{S_CNT}, s{S_LIM}")
    a(L0); a(L1)
    a.label("L_T_pollA")
    a(L0); a(L1)
    a("s_waitcnt vmcnt(3)")
    chk4(a, MF, "polled_T")
    retry(a, "L_T_pollA")
    a.label("polled_T")
    stamp(a, 0, diag)
    a(own[0]); a(wr[0]); a(own[1]); a(wr[1])
    a("s_waitcnt vmcnt(2)")
    a(own[2])
    chk4(a, MF + 4, "L_T_f1ok")
    a(f"s_mov_b32 s{S_CNT}, s{S_LIM}")
    a.label("L_T_pollB")
    a(L1)
    a("s_waitcnt vmcnt(1)")
    chk4(a, MF + 4, "L_T_f1ok")
    retry(a, "L_T_pollB")
    a.label("L_T_f1ok")
    wr = wr[2:]
    for k in range(3, 14):
        if k == NB:
            a("s_waitcnt lgkmcnt(0)")
            a("s_barrier")
            a(rd.pop(0))
        a(own[k])
        if wr:
            a(wr.pop(0))
        if k >= NB and rd:
            a(rd.pop(0))
    for s_ in rd:
        a(s_)

    MK0, MK1 = MF, acc(2)
    TB0, TB1 = acc(0), acc(1)

    def mkreads(dst, addr):
        return [f"ds_read_b64 {vr(dst+4*b+2*d,2)}, v{addr} offset:{256*b+16*d}" for b in range(2) for d in range(2)]

    def add2(A_):
        return [f"v_add_f32 v{A_}, v{A_}, v{A_+1}", f"v_add_f32 v{A_+2}, v{A_+2}, v{A_+3}"]

    def cvt(p):
        A_, B_ = acc(2 * p), acc(2 * p + 1)
        return [f"v_cvt_pk_bf16_f32 v{B_+3}, v{A_+2}, v{B_+2}", f"v_cvt_pk_bf16_f32 v{B_+2}, v{A_}, v{B_}"]

    def trans(p, wreg, dst):
        return [f"ds_write_b64 v{V_TW}, {vr(wreg,2)} offset:{640*p}", f"ds_read_b64_tr_b16 {vr(dst,2)}, v{V_TRD} offset:{640*p}"]

    def sstep(sg, tb, mk):
        B = [vr(XK + 16 * sg, 8), vr(XK + 16 * sg + 8, 8), vr(mk, 8)]
        return [smf(SA + 4 * t, tb, B[t]) for t in range(3)]

    pre = {n: [] for n in range(35)}
    side = {n: [] for n in range(35)}
    for u in range(5):
        pre[u].append(f"s_waitcnt lgkmcnt({4-u})")
    mk = mkreads(MK0, V_MK0)
    side[5] += ["s_waitcnt vmcnt(0)", mk[0]]
    side[6] += [mk[1]]; side[7] += [mk[2]]; side[10] += [mk[3]]
    for p in range(3):
        n0 = 10 * p
        x = add2(acc(2 * p)); side[n0 + 8].append(x[0]); side[n0 + 9].append(x[1])
        x = add2(acc(2 * p + 1)); side[n0 + 13].append(x[0]); side[n0 + 14].append(x[1])
        if p < 2:
            x = cvt(p); side[n0 + 15].append(x[0]); side[n0 + 16].append(x[1])
            x = trans(p, acc(2 * p + 1) + 2, TB0 + 2 * p); side[n0 + 17].append(x[0]); side[n0 + 18].append(x[1])
    mk = mkreads(MK1, V_MK1)
    side[29] += mk[0:2]
    side[30] += mk[2:4]
    n = 0
    for jj in range(7):
        for u in range(2, 7):
            for s_ in pre[n]:
                a(s_)
            a(smf(acc(jj), MF + 4 * u, W(jj, u)))
            for s_ in side[n]:
                a(s_)
            n += 1
    for s_ in cvt(2) + trans(2, acc(5) + 2, TB1):
        a(s_)
    s0 = sstep(0, TB0, MK0)
    L = acc(6)
    for s_ in add2(L):
        a(s_)
    a(f"v_cvt_pk_bf16_f32 v{L+3}, v{L+2}, v{L+2}")
    a(f"v_cvt_pk_bf16_f32 v{L+2}, v{L}, v{L}")
    for s_ in trans(3, L + 2, TB1 + 2):
        a(s_)
    a("s_waitcnt lgkmcnt(4)")
    for k, s_ in enumerate(s0):
        a(s_)
        for r in range(3 * k, min(3 * k + 3, 8)):
            a(f"v_and_b32 v{MK1+r}, v{MK1+r}, v{V_M0+(r&1)}")
    a("s_waitcnt lgkmcnt(0)")
    for s_ in sstep(1, TB1, MK1):
        a(s_)
    stamp(a, 1, diag)
    Q0, Q1 = acc(4), acc(5)
    for t in range(3):
        a(f"v_add_f32 v{Q0+t}, v{SA+4*t}, v{SA+4*t+1}")
        a(f"v_add_f32 v{Q1+t}, v{SA+4*t+2}, v{SA+4*t+3}")
    a(f"ds_write_b96 v{V_PW}, {vr(Q0,3)}")
    a(f"ds_write_b96 v{V_PW}, {vr(Q1,3)} offset:256")
    a("s_waitcnt lgkmcnt(0)")
    a("s_barrier")
    R = ACC
    for w in range(4):
        a(f"ds_read_b128 {vr(R+4*w,4)}, v{V_PR} offset:{2048*w}")
    a(f"""
    s_waitcnt lgkmcnt(2)
    v_pk_add_f32 {vr(R,2)}, {vr(R,2)}, {vr(R+4,2)}
    v_add_f32 v{R+2}, v{R+2}, v{R+6}
    s_waitcnt lgkmcnt(0)
    v_pk_add_f32 {vr(R+8,2)}, {vr(R+8,2)}, {vr(R+12,2)}
    v_add_f32 v{R+10}, v{R+10}, v{R+14}
    v_pk_add_f32 {vr(R,2)}, {vr(R,2)}, {vr(R+8,2)}
    v_add_f32 v{R+2}, v{R+2}, v{R+10}
    v_max3_f32 v{R+4}, v{R}, v{R+1}, v{R+2}
    """)
    for d in DPPS:
        a(f"v_max_f32_dpp v{R+4}, v{R+4}, v{R+4} {d} row_mask:0xf bank_mask:0xf")
    for r in range(3):
        a(f"v_sub_f32 v{R+r}, v{R+r}, v{R+4}")
    for r in range(3):
        a(f"v_exp_f32 v{R+r}, v{R+r}")
    a(f"v_add_f32 v{R+5}, v{R}, v{R+1}")
    a(f"v_add_f32 v{R+5}, v{R+5}, v{R+2}")
    for d in DPPS:
        a(f"v_add_f32_dpp v{R+5}, v{R+5}, v{R+5} {d} row_mask:0xf bank_mask:0xf")
    a(f"v_rcp_f32 v{R+5}, v{R+5}")
    a(f"""
    v_mul_f32 v{R}, v{R}, v{R+5}
    v_mul_f32 v{R+1}, v{R+1}, v{R+5}
    v_cvt_pk_bf16_f32 v{R+6}, v{R}, v{R+1}
    buffer_store_dword v{R+6}, v{V_PA0}, {WS}, s{S_PSOFF} offen
    v_mul_f32 v{R+2}, v{R+2}, v{R+5}
    v_cvt_pk_bf16_f32 v{R+7}, v{R+2}, v{R+2}
    buffer_store_dword v{R+7}, v{V_PA1}, {WS}, s{S_PSOFF} offen
    s_cmp_eq_u32 s{S_FB}, 0
    s_cbranch_scc1 L_T_nofb
    buffer_store_dword v{R+6}, v{V_PA0}, {WS}, s{S_PSOFF} offen sc1
    buffer_store_dword v{R+7}, v{V_PA1}, {WS}, s{S_PSOFF} offen sc1
    L_T_nofb:
    """)
    stamp(a, 2, diag)
    if OPT["lat"]:
        a("s_waitcnt vmcnt(0) lgkmcnt(0)")
        stamp(a, 3, diag)
    if OPT["clk"] and diag:
        a(f"s_memtime s[{S_STP+6}:{S_STP+7}]")
        a(f"s_memrealtime s[{S_STP+8}:{S_STP+9}]")
    if not OPT["nox"]:
        xloads()
    if OPT["lat"]:
        a("s_waitcnt vmcnt(0)")
        stamp(a, 4, diag)
    stamp_store(a, 5, diag, R + 8, R + 9)
    zero()
    if OPT["sleepT"]:
        a(f"s_sleep {OPT['sleepT']}")
    if OPT["adapt"]:
        adapt(a, S_SLP, S_SL2)
        backoff(a, S_SLP)
    a(f"""
    s_add_u32 s{S_MEMOFF}, s{S_MEMOFF}, {MEMS_STEP}
    s_add_u32 s{S_PSOFF}, s{S_PSOFF}, {PS_STEP}
    s_add_u32 s{S_STEP}, s{S_STEP}, 1
    s_cmp_lt_u32 s{S_STEP}, 63
    s_cbranch_scc1 L_T_step
    s_waitcnt vmcnt(0)
    """)
    evt(a, 3, diag, 20, 21)
    a("s_endpgm")


def gen_V(a, diag=False):
    VXB, VPB, PF, WLB = 80, 112, 128, 140
    YA = ACC
    V_L16, V_PQ, V_PW, V_PR, V_MS, V_MN, V_WLA, V_FL = range(9, 17)
    NREG = 56 - NWL

    def order(un, u):
        return (u * 8 + un) if u < 2 else 16 + un * 5 + (u - 2)

    def ldsk(o):
        n = o - 16
        return n // 3 - 1 if (n >= 5 and n % 3 == 2) else None

    def Wreg(o):
        r = o - sum(1 for q in range(o) if ldsk(q) is not None)
        assert r < NREG
        return ar(8 * r, 8) if r < 32 else vr(160 + 8 * (r - 32), 8)

    a.label("L_role_V")
    a.c("V role: column slice c = S_ROLE-16; unit un = 2*hl + t")
    evt(a, 1, diag, 20, 21)
    common_setup(a)
    S_C = 80
    a(f"""
    s_sub_u32 s{S_C}, s{S_ROLE}, 16
    v_lshlrev_b32 v{V_L16}, 4, v{LN}
    s_mul_i32 s{S_XB}, s{S_WAVE}, {NWL*2048}
    s_add_u32 s{S_XB}, s{S_XB}, {V_WL}
    v_add_u32 v{V_WLA}, s{S_XB}, v{V_L16}
    s_lshl_b32 s{S_T3}, s{S_WAVE}, 2
    s_mul_i32 s{S_T3}, s{S_T3}, {28*14*FR}
    s_mul_i32 s{S_T0}, s{S_C}, {2*14*FR}
    s_add_u32 s{S_T3}, s{S_T3}, s{S_T0}
    s_add_u32 s{S_T3}, s{S_T3}, {WB_OFF}
    """)
    cw_b_off(a, S_T1, S_C)
    cwait(a, [(f"s{S_T1}", 16), (4 * gpre.CW_M, 32)], 20, OPT["csl"])
    chain_mode(a, 20, 21)
    fb_fixup(a, 20)
    evt(a, 4, diag, 20, 21)
    a(f"v_sub_u32 v43, 0, v{V_L16}")
    for u in range(7):
        a(f"v_lshl_add_u32 v{ACC+u}, v{V_FA+u}, 1, v43")
    a(f"s_mov_b32 m0, s{S_XB}")
    for un in range(8):
        hl, t = un >> 1, un & 1
        a(f"s_add_u32 s{S_T0}, s{S_T3}, {(hl*28+t)*14*FR}")
        for u in range(7):
            o = order(un, u)
            if ldsk(o) is None:
                w = Wreg(o)
                k, base = w[0], int(w[2:].split(":")[0])
                a(f"buffer_load_dwordx4 {k}[{base}:{base+3}], v{ACC+u}, {WS}, s{S_T0} offen")
                a(f"buffer_load_dwordx4 {k}[{base+4}:{base+7}], v{ACC+u}, {WS}, s{S_T0} offen offset:1024")
            else:
                a(f"buffer_load_dwordx4 v{ACC+u}, {WS}, s{S_T0} offen lds")
                a(f"buffer_load_dwordx4 v{ACC+u}, {WS}, s{S_T0} offen offset:1024 lds")
                a(f"s_add_u32 m0, m0, 2048")
    a(f"""
    s_mul_i32 s{S_T0}, s{S_WAVE}, {PS_W}
    v_add_u32 v{V_PQ}, s{S_T0}, v{V_L16}
    s_lshl_b32 s{S_T0}, s{S_WAVE}, 10
    s_add_u32 s{S_T0}, s{S_T0}, {V_PART}
    v_add_u32 v{V_PW}, s{S_T0}, v{V_L16}
    v_and_b32 v20, 1, v{G4}
    v_lshlrev_b32 v21, 4, v{L15}
    v_lshl_add_u32 v21, v20, 3, v21
    s_lshl_b32 s{S_T0}, s{S_WAVE}, 8
    s_add_u32 s{S_T0}, s{S_T0}, {V_PART}
    v_add_u32 v{V_PR}, s{S_T0}, v21
    s_lshl_b32 s{S_T0}, s{S_WAVE}, 1
    v_add_u32 v22, s{S_T0}, v20
    v_lshrrev_b32 v23, 3, v{L15}
    v_lshlrev_b32 v23, 8, v23
    v_lshl_add_u32 v23, v22, 5, v23
    v_and_b32 v24, 1, v{L15}
    v_lshl_add_u32 v23, v24, 4, v23
    v_bfe_u32 v24, v{L15}, 1, 2
    v_lshl_add_u32 v23, v24, 2, v23
    s_lshl_b32 s{S_T0}, s{S_C}, 9
    v_add_u32 v23, s{S_T0}, v23
    v_mul_u32_u24 v24, 896, v22
    v_lshl_add_u32 v24, v{L15}, 2, v24
    s_lshl_b32 s{S_T0}, s{S_C}, 6
    v_add_u32 v24, s{S_T0}, v24
    v_mov_b32 v25, {OOB}
    v_cmp_gt_u32 vcc, 32, v{LN}
    v_cndmask_b32 v{V_MS}, v25, v23, vcc
    v_cndmask_b32 v{V_MN}, v25, v24, vcc
    v_and_b32 v24, 3, v{LN}
    s_lshl_b32 s{S_T0}, s{S_WAVE}, 2
    v_add_u32 v24, s{S_T0}, v24
    v_mul_u32_u24 v24, 14, v24
    v_add_u32 v24, s{S_C}, v24
    v_lshlrev_b32 v24, 6, v24
    v_add_u32 v{V_FL}, {PROG_OFF}, v24
    s_mov_b32 s{S_RDY}, 0
    s_mov_b32 s{S_SLP}, 0
    s_mov_b32 s{S_MN}, {0}
    s_lshl_b32 s{S_T0}, s{S_WAVE}, 2
    s_mul_i32 s{S_T0}, s{S_T0}, {28*FR}
    s_lshl_b32 s{S_T1}, s{S_C}, 11
    s_add_u32 s{S_T0}, s{S_T0}, s{S_T1}
    s_add_u32 s{S_XO}, s{S_T0}, {VX_OFF}
    """)
    stamp_setup(a, diag)
    for r in range(32):
        a(f"v_mov_b32 v{ACC+r}, 0")
    a("s_waitcnt vmcnt(0) lgkmcnt(0)")
    evt(a, 2, diag, 20, 21)
    a("s_barrier")

    acc = lambda un: ACC + 4 * un
    a.label("L_V_step")
    poll(a, mem_polls(), range(MF, MF + 8), depth2=False, sleep=OPT["sleepVm"])
    stamp(a, 0, diag)
    a(f"""
    s_cmp_lt_u32 s{S_STEP}, s{S_RDY}
    s_cbranch_scc1 L_V_vxok
    s_mov_b32 s{S_CNT}, s{S_LIM}
    L_V_vxpoll:
    buffer_load_dwordx4 {vr(PF,4)}, v{V_FL}, {WS}, 0 offen sc1
    s_waitcnt vmcnt(0)
    v_min3_u32 v{V_TMP}, v{PF}, v{PF+1}, v{PF+2}
    v_min_u32 v{V_TMP}, v{V_TMP}, v{PF+3}
    v_readlane_b32 s{S_T0}, v{V_TMP}, 0
    v_readlane_b32 s{S_T1}, v{V_TMP}, 1
    v_readlane_b32 s{S_T2}, v{V_TMP}, 2
    v_readlane_b32 s{S_T3}, v{V_TMP}, 3
    s_min_u32 s{S_T0}, s{S_T0}, s{S_T1}
    s_min_u32 s{S_T2}, s{S_T2}, s{S_T3}
    s_min_u32 s{S_RDY}, s{S_T0}, s{S_T2}
    s_lshl_b32 s{S_RDY}, s{S_RDY}, 2
    s_cmp_lt_u32 s{S_STEP}, s{S_RDY}
    s_cbranch_scc1 L_V_vxok
    s_sleep 4
    s_sub_u32 s{S_CNT}, s{S_CNT}, 1
    s_cmp_lg_u32 s{S_CNT}, 0
    s_cbranch_scc1 L_V_vxpoll
    s_mov_b32 s{S_LIM}, 1
    L_V_vxok:
    """)
    vx = []
    for hl in range(4):
        vx.append([f"s_add_u32 s{S_T0}, s{S_XO}, {hl*28*FR}",
                   f"buffer_load_dwordx4 {vr(VXB+4*hl,4)}, v{V_L16}, {WS}, s{S_T0} offen sc1"])
        vx.append([f"buffer_load_dwordx4 {vr(VXB+16+4*hl,4)}, v{V_L16}, {WS}, s{S_T0} offen offset:1024 sc1"])
    if OPT["novx"]:
        vx = [["s_nop 0"] for _ in vx]
    own = [smf(acc(un), MF + 4 * u, Wreg(order(un, u))) for u in range(2) for un in range(8)]
    rd = [f"ds_read_b128 {vr(MF+4*u,4)}, v{V_FA+u}" for u in range(2, 7)]
    wr = [f"ds_write_b64 v{V_FA+u}, {vr(MF+4*u+2*k,2)} offset:{8*k}" for u in range(2) for k in range(2)]
    for k in range(16):
        if k == 10:
            a("s_waitcnt lgkmcnt(0)")
            a("s_barrier")
            a(rd.pop(0))
        a(own[k])
        if k < 4:
            a(wr[k])
        elif k < 10:
            for s_ in vx.pop(0):
                a(s_)
        elif rd:
            a(rd.pop(0))
        else:
            for s_ in vx.pop(0):
                a(s_)
    a(f"s_add_u32 s{S_XO}, s{S_XO}, {VX_STEP}")

    def wlread(k):
        b = WLB + 8 * (k & 1)
        return [f"ds_read_b128 {vr(b,4)}, v{V_WLA} offset:{k*2048}", f"ds_read_b128 {vr(b+4,4)}, v{V_WLA} offset:{k*2048+1024}"]

    def cvt(un):
        hl, t = un >> 1, un & 1
        A_ = acc(un)
        return [f"v_cvt_pk_bf16_f32 v{VPB+8*t+2*hl}, v{A_}, v{A_+1}", f"v_cvt_pk_bf16_f32 v{VPB+8*t+2*hl+1}, v{A_+2}, v{A_+3}"]

    side = {n: [] for n in range(41)}
    pre = {n: [] for n in range(40)}
    x = wlread(0) + wlread(1)
    for k in range(4):
        side[k].append(x[k])
    for u in range(5):
        pre[u].append(f"s_waitcnt lgkmcnt({4 if u < 4 else 4})" if u >= 1 else "s_waitcnt lgkmcnt(4)")
    for un in range(7):
        x = cvt(un)
        side[5 * un + 9].append(x[0]); side[5 * un + 10].append(x[1])
    for r in range(8):
        side[21 + 2 * r].append(f"v_mov_b32 v{YA+r}, 0")
    n = 0
    for un in range(8):
        for u in range(2, 7):
            o = order(un, u)
            for s_ in pre[n]:
                a(s_)
            if ldsk(o) is None:
                a(smf(acc(un), MF + 4 * u, Wreg(o)))
            else:
                k = ldsk(o)
                a(f"s_waitcnt lgkmcnt({2 if k + 1 < NWL else 0})")
                a(smf(acc(un), MF + 4 * u, vr(WLB + 8 * (k & 1), 8)))
                if k + 2 < NWL:
                    x = wlread(k + 2)
                    side[n].insert(0, x[0]); side[n + 1].insert(0, x[1])
            for s_ in side[n]:
                a(s_)
            n += 1
    for s_ in side[40] + cvt(7):
        a(s_)
    stamp(a, 1, diag)
    if OPT["sleepV"]:
        a(f"s_sleep {OPT['sleepV']}")
    if OPT["adapt"]:
        backoff(a, S_SLP)
    P = [f"buffer_load_dwordx4 {vr(PF+4*q,4)}, v{V_PQ}, {WS}, s{S_PSOFF} offen offset:{1024*q} sc1" for q in range(3)]
    ys = [[smf(YA + 4 * t, PF + 4 * q, vr(VXB + 16 * t + 8 * q, 8) if q < 2 else vr(VPB + 8 * t, 8)) for t in range(2)] for q in range(3)]
    if OPT["lightV"]:
        light(a, P[2], PF + 8, "L_V_light")
    a(f"s_mov_b32 s{S_CNT}, s{S_LIM}")
    for l in P:
        a(l)
    a.label("L_V_pollA")
    for l in P:
        a(l)
    a("s_waitcnt vmcnt(5)")
    chk4(a, PF, "polled_V")
    retry(a, "L_V_pollA")
    a.label("polled_V")
    a(ys[0][0]); a(ys[0][1])
    a("s_waitcnt vmcnt(4)")
    chk4(a, PF + 4, "L_V_c0")
    a(f"s_mov_b32 s{S_CNT}, s{S_LIM}")
    a.label("L_V_pollB")
    a(P[1]); a(P[2])
    a("s_waitcnt vmcnt(3)")
    chk4(a, PF + 4, "L_V_cb")
    retry(a, "L_V_pollB")
    a.label("L_V_cb")
    a(ys[1][0]); a(ys[1][1])
    a("s_waitcnt vmcnt(2)")
    a("s_branch L_V_cchk")
    a.label("L_V_c0")
    a(ys[1][0]); a(ys[1][1])
    a("s_waitcnt vmcnt(3)")
    a.label("L_V_cchk")
    chk4(a, PF + 8, "L_V_pok")
    a(f"s_mov_b32 s{S_CNT}, s{S_LIM}")
    a.label("L_V_pollC")
    a(P[2])
    a("s_waitcnt vmcnt(1)")
    chk4(a, PF + 8, "L_V_pok")
    retry(a, "L_V_pollC")
    a.label("L_V_pok")
    a(ys[2][0]); a(ys[2][1])
    stamp(a, 2, diag)
    Y = ACC + 8
    a(f"""
    s_add_u32 s{S_MEMOFF}, s{S_MEMOFF}, {MEMS_STEP}
    v_add_f32 v{Y}, v{YA}, v{YA+1}
    v_add_f32 v{Y+2}, v{YA+2}, v{YA+3}
    v_add_f32 v{Y+1}, v{YA+4}, v{YA+5}
    v_add_f32 v{Y+3}, v{YA+6}, v{YA+7}
    ds_write_b128 v{V_PW}, {vr(Y,4)}
    s_waitcnt lgkmcnt(0)
    s_barrier
    """)
    R = ACC + 12
    for w in range(4):
        a(f"ds_read_b64 {vr(R+2*w,2)}, v{V_PR} offset:{1024*w}")
    a(f"""
    s_waitcnt lgkmcnt(2)
    v_pk_add_f32 {vr(R,2)}, {vr(R,2)}, {vr(R+2,2)}
    s_waitcnt lgkmcnt(0)
    v_pk_add_f32 {vr(R+4,2)}, {vr(R+4,2)}, {vr(R+6,2)}
    v_pk_add_f32 {vr(R,2)}, {vr(R,2)}, {vr(R+4,2)}
    v_cvt_pk_bf16_f32 v{R+2}, v{R}, v{R+1}
    buffer_store_dword v{R+2}, v{V_MS}, {WS}, s{S_MEMOFF} offen
    {"" if OPT["nomn"] else f"buffer_store_dword v{R+2}, v{V_MN}, {WS}, s{S_MN} offen sc1"}
    s_cmp_eq_u32 s{S_FB}, 0
    s_cbranch_scc1 L_V_nofb
    buffer_store_dword v{R+2}, v{V_MS}, {WS}, s{S_MEMOFF} offen sc1
    L_V_nofb:
    """)
    stamp(a, 3, diag)
    if OPT["adapt"]:
        adapt(a, S_SLP, S_CNT)
    if OPT["vdelay"]:
        a(f"s_sleep {OPT['vdelay']}")
    stamp_store(a, 6, diag, R + 4, R + 5)
    for r in range(32):
        if ACC + r != R + 2:
            a(f"v_mov_b32 v{ACC+r}, 0")
    a(f"v_mov_b32 v{R+2}, 0")
    a(f"""
    s_add_u32 s{S_MN}, s{S_MN}, 0
    s_add_u32 s{S_PSOFF}, s{S_PSOFF}, {PS_STEP}
    s_add_u32 s{S_STEP}, s{S_STEP}, 1
    s_cmp_lt_u32 s{S_STEP}, 63
    s_cbranch_scc1 L_V_step
    s_waitcnt vmcnt(0)
    """)
    evt(a, 3, diag, 20, 21)
    a("s_endpgm")


def gen_warm(a):
    LEAD = OPT["lead"]
    a.label("L_role_W")
    cwait(a, [(4 * gpre.CW_M, 32)], 20)
    a(f"v_and_b32 v{LN}, 63, v0")
    chain_mode(a, 20, 21)
    fb_fixup(a, 20)
    a(f"""
    v_and_b32 v{LN}, 63, v0
    s_mov_b32 s{S_LIM}, {SPIN_LIMIT}
    s_mov_b32 s{S_MEMOFF}, {MEMS_OFF+MEMS_STEP}
    s_cmp_eq_u32 s{S_ROLE}, 31
    s_cbranch_scc1 L_W_warm
    s_lshl_b32 s{S_T0}, s{S_WAVE}, 11
    s_min_u32 s{S_T0}, s{S_T0}, 5120
    v_lshl_add_u32 v6, v{LN}, 4, s{S_T0}
    s_mov_b32 s{S_STEP}, 1
    L_R_step:
    s_mov_b32 s{S_CNT}, s{S_LIM}
    L_R_poll:
    buffer_load_dwordx4 v[20:23], v6, {WS}, s{S_MEMOFF} offen sc1
    buffer_load_dwordx4 v[24:27], v6, {WS}, s{S_MEMOFF} offen offset:1024 sc1
    s_waitcnt vmcnt(0)
    v_max3_u32 v5, v20, v21, v22
    v_max3_u32 v5, v5, v23, v24
    v_max3_u32 v5, v5, v25, v26
    v_max_u32 v5, v5, v27
    v_cmp_eq_u32 vcc, -1, v5
    s_cbranch_vccz L_R_go
    s_sleep 2
    s_sub_u32 s{S_CNT}, s{S_CNT}, 1
    s_cmp_lg_u32 s{S_CNT}, 0
    s_cbranch_scc1 L_R_poll
    s_mov_b32 s{S_LIM}, 1
    L_R_go:
    s_add_u32 s{S_T0}, s{S_MEMOFF}, {MEMR_OFF-MEMS_OFF}
    buffer_store_dwordx4 v[20:23], v6, {WS}, s{S_T0} offen sc1
    buffer_store_dwordx4 v[24:27], v6, {WS}, s{S_T0} offen offset:1024 sc1
    s_add_u32 s{S_MEMOFF}, s{S_MEMOFF}, {MEMS_STEP}
    s_sleep {OPT["rsleep"]}
    s_add_u32 s{S_STEP}, s{S_STEP}, 1
    s_cmp_lt_u32 s{S_STEP}, 64
    s_cbranch_scc1 L_R_step
    s_waitcnt vmcnt(0)
    s_endpgm
    L_W_warm:
    v_lshlrev_b32 v2, 7, v{LN}
    v_mov_b32 v9, 0
    s_lshl_b32 s80, s{S_WAVE}, 13
    s_add_u32 s80, s80, {XK_OFF}
    s_sub_u32 s{S_T0}, s{S_WAVE}, 1
    s_mul_i32 s81, s{S_T0}, 6144
    s_add_u32 s81, s81, {PS_OFF}
    s_mov_b32 s82, {PS_STEP}
    s_cmp_eq_u32 s{S_WAVE}, 0
    s_cselect_b32 s81, {MEMS_OFF}, s81
    s_cselect_b32 s82, {MEMS_STEP}, s82
    s_cmp_eq_u32 s{S_WAVE}, 3
    s_cselect_b32 s81, {OOB}, s81
    s_cselect_b32 s82, 0, s82
    s_mov_b32 s{S_STEP}, 0
    L_W_step:
    s_cmp_lt_u32 s{S_STEP}, {LEAD+1}
    s_cbranch_scc1 L_W_paced
    s_mov_b32 s{S_CNT}, s{S_LIM}
    L_W_pace:
    buffer_load_dword v5, v9, {WS}, s{S_MEMOFF} offen sc1
    s_waitcnt vmcnt(0)
    v_cmp_eq_u32 vcc, -1, v5
    s_cbranch_vccz L_W_paced2
    s_sleep 4
    s_sub_u32 s{S_CNT}, s{S_CNT}, 1
    s_cmp_lg_u32 s{S_CNT}, 0
    s_cbranch_scc1 L_W_pace
    s_mov_b32 s{S_LIM}, 1
    L_W_paced2:
    s_add_u32 s{S_MEMOFF}, s{S_MEMOFF}, {MEMS_STEP}
    L_W_paced:
    buffer_load_dword v8, v2, {WS}, s80 offen
    buffer_load_dword v10, v2, {WS}, s81 offen sc1
    s_add_u32 s80, s80, {XK_STEP}
    s_add_u32 s81, s81, s82
    s_add_u32 s{S_STEP}, s{S_STEP}, 1
    s_cmp_lt_u32 s{S_STEP}, 64
    s_cbranch_scc1 L_W_step
    s_waitcnt vmcnt(0)
    s_endpgm
    """)


def cnt_addr(a, v, ln):
    a(f"""
    v_and_b32 v{v}, 15, v{ln}
    v_cmp_eq_u32 vcc, 8, v{v}
    v_lshlrev_b32 v{v}, 5, v{v}
    v_min_u32 v{v}, 252, v{v}
    v_cndmask_b32 v{v}, v{v}, 28, vcc
    """)


def wait_all(a):
    top, done = a.newlabel("wa"), a.newlabel("wad")
    cnt_addr(a, 4, 0)
    a(f"""
    s_mov_b32 s{S_CNT}, {SPIN_LIMIT}
    {top}:
    buffer_load_dword v5, v4, {DBG}, 0 offen sc1
    s_waitcnt vmcnt(0)
    s_mov_b32 s{S_T0}, 0
    """)
    for x in range(9):
        a(f"v_readlane_b32 s{S_CNTS+x}, v5, {x}")
    for x in range(9):
        a(f"s_add_u32 s{S_T0}, s{S_T0}, s{S_CNTS+x}")
    a(f"""
    s_cmp_ge_u32 s{S_T0}, 256
    s_cbranch_scc1 {done}
    s_sleep 2
    s_sub_u32 s{S_CNT}, s{S_CNT}, 1
    s_cmp_lg_u32 s{S_CNT}, 0
    s_cbranch_scc1 {top}
    {done}:
    """)


def chain_mode(a, t0, t1):
    top, done = a.newlabel("cm"), a.newlabel("cmd")
    cnt_addr(a, t0, LN)
    a(f"""
    s_mov_b32 s{S_CNT}, {SPIN_LIMIT}
    {top}:
    buffer_load_dword v{t1}, v{t0}, {DBG}, 0 offen sc1
    s_waitcnt vmcnt(0)
    v_readlane_b32 s{S_T0}, v{t1}, 0
    s_mov_b32 s{S_FB}, 0
    s_cmp_ge_u32 s{S_T0}, {32 if NSLOT == 32 else 9999}
    s_cbranch_scc1 {done}
    s_mov_b32 s{S_FB}, 1
    """)
    for x in range(1, 9):
        a(f"v_readlane_b32 s{S_T2}, v{t1}, {x}")
        a(f"s_add_u32 s{S_T0}, s{S_T0}, s{S_T2}")
    a(f"""
    s_cmp_ge_u32 s{S_T0}, 256
    s_cbranch_scc1 {done}
    s_sleep 2
    s_sub_u32 s{S_CNT}, s{S_CNT}, 1
    s_cmp_lg_u32 s{S_CNT}, 0
    s_cbranch_scc1 {top}
    {done}:
    """)


def fb_fixup(a, t):
    lab = a.newlabel("nofix")
    a(f"""
    s_cmp_eq_u32 s{S_FB}, 0
    s_cbranch_scc1 {lab}
    buffer_wbl2 sc1
    s_waitcnt vmcnt(0)
    s_mov_b32 s89, {4*61}
    """)
    gpre.arrive(a, 89, t)
    cwait(a, [(4 * 61, 32)], t)
    a.label(lab)


def cwait(a, conds, t, sleep=16):
    top, done = a.newlabel("cw"), a.newlabel("cwd")
    off = lambda o: f"s{o[1:]}" if isinstance(o, str) else str(o)
    a(f"s_cmp_lg_u32 s{S_WAVE}, 0")
    a(f"s_cbranch_scc1 {done}")
    a(f"v_mov_b32 v{t}, {off(conds[0][0])}")
    a(f"v_mov_b32 v{t+1}, {conds[0][1]}")
    for k, (o, th) in enumerate(conds[1:], 1):
        if not isinstance(o, str):
            a(f"s_mov_b32 s{S_T0}, {o}")
            o = f"s{S_T0}"
        a(f"v_writelane_b32 v{t}, {o}, {k}")
        a(f"v_writelane_b32 v{t+1}, {th}, {k}")
    a(f"""
    s_mov_b32 s{S_CNT}, {SPIN_LIMIT}
    s_mov_b64 exec, 7
    {top}:
    buffer_load_dword v{t+2}, v{t}, {DBG}, 0 offen sc1
    s_waitcnt vmcnt(0)
    v_cmp_le_u32 vcc, v{t+1}, v{t+2}
    s_cmp_eq_u64 vcc, 7
    s_cbranch_scc1 {done}
    s_sleep {sleep}
    s_sub_u32 s{S_CNT}, s{S_CNT}, 1
    s_cmp_lg_u32 s{S_CNT}, 0
    s_cbranch_scc1 {top}
    {done}:
    s_mov_b64 exec, -1
    s_barrier
    """)


def cw_a_off(a, dst, sh):
    a(f"""
    s_lshr_b32 s{dst}, s{sh}, 1
    s_lshl_b32 s{dst}, s{dst}, 5
    s_and_b32 s{S_T0}, s{sh}, 1
    s_lshl_b32 s{S_T0}, s{S_T0}, 2
    s_add_u32 s{dst}, s{dst}, s{S_T0}
    s_add_u32 s{dst}, s{dst}, 4
    """)


def cw_b_off(a, dst, sc):
    a(f"""
    s_lshr_b32 s{dst}, s{sc}, 1
    s_lshl_b32 s{dst}, s{dst}, 5
    s_add_u32 s{dst}, s{dst}, 12
    """)


NSLOT = 32


def gen_main_prologue(a, force_fb=False, diag=False):
    global NSLOT
    NSLOT = 13 if force_fb else 32
    a(f"""
    s_cmp_ge_u32 s2, 256
    s_cbranch_scc1 L_exit
    s_load_dwordx2 s[{S_X}:{S_X+1}], s[0:1], 0
    s_load_dwordx4 s[{S_OUT}:{S_OUT+3}], s[0:1], 104
    s_load_dwordx2 s[{S_WS}:{S_WS+1}], s[0:1], 120
    s_load_dwordx16 s[60:75], s[0:1], 8
    s_load_dwordx2 s[76:77], s[0:1], 96
    {'s_memrealtime s[90:91]' if diag else ''}
    v_lshrrev_b32 v1, 6, v0
    s_getreg_b32 s{S_T3}, hwreg(HW_REG_XCC_ID)
    v_readfirstlane_b32 s{S_WAVE}, v1
    s_and_b32 s{S_T3}, s{S_T3}, 15
    s_min_u32 s{S_T3}, s{S_T3}, 8
    s_lshl_b32 s{S_T0}, s{S_T3}, 5
    s_cmp_eq_u32 s{S_T3}, 8
    s_cselect_b32 s{S_T0}, 28, s{S_T0}
    v_mov_b32 v2, s{S_T0}
    v_accvgpr_write_b32 a255, 1
    s_mov_b32 s{SRD_WS+2}, 0x10000000
    s_mov_b32 s{SRD_WS+3}, 0x20000
    s_mov_b32 s{SRD_X+2}, {2048*896}
    s_mov_b32 s{SRD_X+3}, 0x20000
    s_mov_b32 s{SRD_DBG+2}, 256
    s_mov_b32 s{SRD_DBG+3}, 0x20000
    s_and_b32 s{S_T0}, s2, 7
    s_lshr_b32 s{S_T1}, s2, 3
    s_waitcnt lgkmcnt(0)
    s_mov_b32 s{SRD_WS}, s{S_WS}
    s_mov_b32 s{SRD_WS+1}, s{S_WS+1}
    s_mov_b32 s{SRD_X}, s{S_X}
    s_mov_b32 s{SRD_X+1}, s{S_X+1}
    s_mov_b32 s{SRD_DBG}, s{S_DBG}
    s_mov_b32 s{SRD_DBG+1}, s{S_DBG+1}
    s_cmp_lg_u32 s{S_WAVE}, 0
    s_cbranch_scc1 L_noatom
    s_mov_b64 exec, 1
    buffer_atomic_add a255, v2, {DBG}, 0 offen sc0 sc1
    s_mov_b64 exec, -1
    L_noatom:
    s_cmp_eq_u32 s{S_T0}, 0
    s_cbranch_scc1 L_unit_misc
    s_sub_u32 s{S_T0}, s{S_T0}, 1
    s_lshl_b32 s{S_T0}, s{S_T0}, 5
    s_add_u32 s{S_T1}, s{S_T1}, s{S_T0}
    """)
    gpre.gen_ab(a, S_T1)
    a("s_branch L_unit_done")
    a.label("L_unit_misc")
    gpre.gen_misc(a, S_T1)
    a.label("L_unit_done")
    gpre.ev(a, 4)
    a("s_waitcnt vmcnt(0)")
    gpre.ev(a, 5)
    gpre.ev_flush(a)
    a(f"""
    s_barrier
    s_cmp_lg_u32 s{S_WAVE}, 0
    s_cbranch_scc1 L_elect_wait
    v_mov_b32 v2, s89
    v_mov_b32 v3, 1
    s_mov_b64 exec, 1
    buffer_atomic_add v3, v2, {DBG}, 0 offen sc1
    s_mov_b64 exec, -1
    v_accvgpr_read_b32 v3, a255
    v_readfirstlane_b32 s{S_T2}, v3
    s_lshl_b32 s{S_ROLE}, s{S_T3}, 5
    s_add_u32 s{S_ROLE}, s{S_ROLE}, s{S_T2}
    s_cmp_lt_u32 s{S_T2}, {NSLOT}
    s_cselect_b32 s{S_T0}, s{S_T3}, 99
    s_cmp_lt_u32 s{S_T0}, 8
    s_cbranch_scc0 L_overflow
    L_elect_done:
    v_mov_b32 v2, 0
    v_mov_b32 v3, s{S_ROLE}
    ds_write_b32 v2, v3
    s_waitcnt lgkmcnt(0)
    L_elect_wait:
    s_barrier
    v_mov_b32 v2, 0
    ds_read_b32 v3, v2
    s_waitcnt lgkmcnt(0)
    v_readfirstlane_b32 s{S_ROLE}, v3
    s_barrier
    """)
    if diag:
        a(f"""
        s_lshl_b32 s98, s{S_ROLE}, 2
        s_add_u32 s98, s98, s{S_WAVE}
        s_lshl_b32 s98, s98, 5
        s_add_u32 s98, s98, {EVT_OFF}
        v_mov_b32 v2, s90
        v_mov_b32 v3, 0
        s_mov_b64 exec, 1
        buffer_store_dword v2, v3, {WS}, s98 offen
        s_mov_b64 exec, -1
        """)
    a(f"""
    s_cmp_lt_u32 s{S_ROLE}, 16
    s_cbranch_scc1 L_role_T
    s_cmp_lt_u32 s{S_ROLE}, 30
    s_cbranch_scc1 L_role_V
    s_cmp_lt_u32 s{S_ROLE}, 32
    s_cbranch_scc1 L_role_W
    s_cmp_ge_u32 s{S_ROLE}, 256
    s_cbranch_scc1 L_exit
    """)


def gen_overflow(a):
    a.label("L_overflow")
    wait_all(a)
    a(f"""
    s_sub_u32 s{S_T1}, s{S_T2}, {NSLOT}
    s_cmp_lt_u32 s{S_T3}, 8
    s_cselect_b32 s{S_T1}, s{S_T1}, s{S_T2}
    """)
    for x in range(8):
        a(f"s_sub_u32 s{S_T0}, s{S_CNTS+x}, {NSLOT}")
        a(f"s_max_i32 s{S_T0}, s{S_T0}, 0")
        a(f"s_cmp_lt_u32 {x}, s{S_T3}")
        a(f"s_cselect_b32 s{S_T0}, s{S_T0}, 0")
        a(f"s_add_u32 s{S_T1}, s{S_T1}, s{S_T0}")
    a(f"s_mov_b32 s{S_ROLE}, 0xfff")
    for x in range(8):
        a(f"""
        s_min_u32 s{S_T0}, s{S_CNTS+x}, {NSLOT}
        s_sub_u32 s{S_T2}, 32, s{S_T0}
        s_add_u32 s{S_T0}, s{S_T0}, s{S_T1}
        s_add_u32 s{S_T0}, s{S_T0}, {32*x}
        s_cmp_lt_u32 s{S_T1}, s{S_T2}
        s_cselect_b32 s{S_ROLE}, s{S_T0}, s{S_ROLE}
        s_sub_u32 s{S_T1}, s{S_T1}, s{S_T2}
        """)
    a("s_branch L_elect_done")
```

```python
from asmlib import *
from layout import *
import math, struct

C1 = math.log2(math.e) / 16.0
LOG2E = math.log2(math.e)
SRD_WS, SRD_X, SRD_DBG, S_WAVE, S_XCC = 16, 20, 24, 28, 44
WSs, XSs, DBGs = "s[16:19]", "s[20:23]", "s[24:27]"


def f32hex(x):
    return "0x%08x" % struct.unpack("<I", struct.pack("<f", x))[0]


def srd(a, d, ptr, size):
    a(f"s_mov_b32 s{d}, s{ptr}\ns_mov_b32 s{d+1}, s{ptr+1}\ns_mov_b32 s{d+2}, {size}\ns_mov_b32 s{d+3}, 0x20000")


def CW_A(h): return 8 * (h >> 1) + 1 + (h & 1)
def CW_B(j): return 8 * j + 3
CW_M = 60


DIAG = False


def ev(a, k):
    import gen_chain as gc
    if DIAG:
        a("s_memrealtime s[96:97]\ns_waitcnt lgkmcnt(0)")
        a(f"s_mov_b32 s{90+k}, s96")


def ev_flush(a):
    import gen_chain as gc
    if not DIAG:
        return
    a(f"""
    s_lshl_b32 s98, s2, 2
    s_add_u32 s98, s98, s{S_WAVE}
    s_lshl_b32 s98, s98, 5
    s_add_u32 s98, s98, {gc.EVT_OFF + 32768}
    s_mov_b64 exec, 1
    """)
    for k in range(1, 6):
        a(f"v_mov_b32 v2, s{90+k}\nv_mov_b32 v3, {4*k}\nbuffer_store_dword v2, v3, {WSs}, s98 offen")
    a("s_mov_b64 exec, -1")


def arrive(a, sword, t=2):
    lab = a.newlabel("arr")
    if t == 2:
        ev(a, 4)
        a("s_waitcnt vmcnt(0)")
        ev(a, 5)
        ev_flush(a)
    a(f"""
    s_waitcnt vmcnt(0)
    s_barrier
    s_cmp_lg_u32 s{S_WAVE}, 0
    s_cbranch_scc1 {lab}
    v_mov_b32 v{t}, s{sword}
    v_mov_b32 v{t+1}, 1
    s_mov_b64 exec, 1
    buffer_atomic_add v{t+1}, v{t}, {DBGs}, 0 offen sc1
    s_mov_b64 exec, -1
    {lab}:
    """)


def gen_ab(a, sRANK):
    WSZ_B = 448 * 4096 * 2
    SA_, SB_ = 48, 52
    SAs, SBs = f"s[{SA_}:{SA_+3}]", f"s[{SB_}:{SB_+3}]"
    sW = S_WAVE
    sH, sP, sJ, t0, t1, t2, t3, sBUF, sOUT, sHO, sSC, sKS, sN, sI, sRET = 56, 57, 78, 79, 80, 81, 82, 83, 84, 85, 86, 87, 88, 45, 46
    LN, G, L15 = 1, 2, 3
    BR, ACC, AF = 128, 96, 32
    VB, VT, RA, L16 = 4, 5, 8, 6
    STG = 131072
    ev(a, 1)
    a(f"""
    v_and_b32 v{LN}, 63, v0
    v_lshrrev_b32 v{G}, 4, v{LN}
    v_and_b32 v{L15}, 15, v{LN}
    s_mul_i32 s{t2}, s{sRANK}, 9363
    s_lshr_b32 s{t2}, s{t2}, 16
    s_mul_i32 s{t3}, s{t2}, 7
    s_sub_u32 s{sJ}, s{sRANK}, s{t3}
    s_lshr_b32 s{sH}, s{t2}, 1
    s_and_b32 s{sP}, s{t2}, 1
    v_lshrrev_b32 v6, 5, v{LN}
    v_and_b32 v7, 31, v{LN}
    v_xor_b32 v7, v7, v6
    v_lshlrev_b32 v7, 4, v7
    v_lshl_add_u32 v{VB}, v6, 13, v7
    v_lshlrev_b32 v{L16}, 4, v{LN}
    s_lshl_b32 s{sBUF}, s{sW}, 14
    s_lshl_b32 s{sHO}, s{sH}, 9
    s_lshl_b32 s{sKS}, s{sJ}, 1
    s_add_u32 s{sKS}, s{sKS}, s{sW}
    s_mov_b32 s{SA_+2}, {WSZ_B}
    s_mov_b32 s{SA_+3}, 0x20000
    s_mov_b32 s{SB_+2}, {WSZ_B}
    s_mov_b32 s{SB_+3}, 0x20000
    s_cmp_eq_u32 s{sP}, 0
    s_cselect_b32 s{sSC}, {f32hex(C1)}, 1.0
    s_cselect_b32 s{SA_}, s62, s66
    s_cselect_b32 s{SA_+1}, s63, s67
    s_cselect_b32 s{SB_}, s64, s68
    s_cselect_b32 s{SB_+1}, s65, s69
    s_cbranch_scc0 P_ldWo
    s_lshl_b32 s{t0}, s{sJ}, 19
    s_lshl_b32 s{t1}, s{sW}, 17
    s_add_u32 s{t0}, s{t0}, s{t1}
    s_add_u32 s{t0}, s{t0}, s{sHO}
    s_lshl_b32 s{t1}, s{sW}, 13
    s_add_u32 m0, s{t1}, {STG}
    s_lshl_b32 s{sI}, s{sW}, 3
    s_add_u32 s{sN}, s{sI}, 8
    P_lk:
    s_and_b32 s{t1}, s{sI}, 12
    s_and_b32 s{t2}, s{sI}, 1
    s_lshl1_add_u32 s{t1}, s{t2}, s{t1}
    s_lshl_b32 s{t1}, s{t1}, 4
    v_xor_b32 v{VT}, s{t1}, v{VB}
    s_add_u32 s{sI}, s{sI}, 1
    buffer_load_dwordx4 v{VT}, {SBs}, s{t0} offen lds
    s_add_u32 s{t0}, s{t0}, 16384
    s_add_u32 m0, m0, 1024
    s_cmp_lt_u32 s{sI}, s{sN}
    s_cbranch_scc1 P_lk
    s_branch P_ldA
    P_ldWo:
    v_lshrrev_b32 v12, 3, v{LN}
    v_and_b32 v13, 7, v{LN}
    v_mul_u32_u24 v14, 896, v12
    v_lshl_add_u32 v14, v13, 4, v14
    s_lshl_b32 s{t0}, s{sH}, 8
    s_lshl_b32 s{t1}, s{sW}, 6
    s_add_u32 s{t0}, s{t0}, s{t1}
    s_mul_i32 s{t0}, s{t0}, 896
    s_lshl_b32 s{t2}, s{sJ}, 7
    s_add_u32 s{t0}, s{t0}, s{t2}
    s_mov_b32 s{t1}, {8*896}
    """)
    for i in range(8):
        a(f"buffer_load_dwordx4 {vr(AF+4*i,4)}, v14, {SBs}, s{t0} offen")
        if i < 7:
            a(f"s_add_u32 s{t0}, s{t0}, s{t1}")
    a.label("P_ldA")

    def blk_addr():
        a(f"""
        s_sub_u32 s{t0}, s{sKS}, 14
        s_min_u32 s{t0}, s{t0}, s{sKS}
        s_sub_u32 s{t1}, s{t0}, 14
        s_min_u32 s{t0}, s{t0}, s{t1}
        s_lshl_b32 s{t0}, s{t0}, 18
        s_add_u32 s{t0}, s{t0}, s{sHO}
        s_mov_b32 m0, s{sBUF}
        s_xor_b32 s{sBUF}, s{sBUF}, 65536
        s_add_u32 s{sKS}, s{sKS}, 4
        """)
    blk_addr()
    a(f"""
    s_mov_b32 s{sI}, 0
    P_la0:
    s_and_b32 s{t1}, s{sI}, 12
    s_and_b32 s{t2}, s{sI}, 1
    s_lshl1_add_u32 s{t1}, s{t2}, s{t1}
    s_lshl_b32 s{t1}, s{t1}, 4
    v_xor_b32 v{VT}, s{t1}, v{VB}
    s_add_u32 s{sI}, s{sI}, 1
    buffer_load_dwordx4 v{VT}, {SAs}, s{t0} offen lds
    s_add_u32 s{t0}, s{t0}, 16384
    s_add_u32 m0, m0, 1024
    s_cmp_lt_u32 s{sI}, 16
    s_cbranch_scc1 P_la0
    """)
    a(f"""
    v_lshrrev_b32 v16, 2, v{L15}
    v_lshlrev_b32 v16, 3, v16
    v_and_b32 v17, 3, v{L15}
    v_add_u32 v16, v16, v17
    v_lshlrev_b32 v16, 9, v16
    v_xor_b32 v17, v{G}, v{L15}
    v_lshl_add_u32 v7, v17, 4, v16
    s_cmp_eq_u32 s{sP}, 0
    s_cbranch_scc0 P_stageWo
    v_add_u32 v{RA}, {STG}, v7
    v_xor_b32 v{RA+1}, 64, v{RA}
    v_xor_b32 v{RA+2}, 0x80, v{RA}
    v_xor_b32 v{RA+3}, 0xc0, v{RA}
    s_waitcnt vmcnt(16)
    s_barrier
    """)
    for tl in range(4):
        for es in range(8):
            a(f"ds_read_b128 {vr(BR+32*tl+4*es,4)}, v{RA+(es&3)} offset:{(tl>>1)*16384+(tl&1)*2048+(es>>2)*256}")
    a("s_branch P_bdone")
    a.label("P_stageWo")
    a(f"""
    v_lshlrev_b32 v15, 7, v12
    v_and_b32 v16, 3, v13
    v_lshl_add_u32 v15, v16, 3, v15
    s_lshl_b32 s{t1}, s{sW}, 13
    s_add_u32 s{t1}, s{t1}, {STG}
    v_add_u32 v15, s{t1}, v15
    v_lshrrev_b32 v16, 2, v13
    v_lshlrev_b32 v16, 1, v16
    v_bfe_u32 v17, v12, 1, 1
    v_xor_b32 v16, v16, v17
    v_lshl_add_u32 v20, v16, 5, v15
    v_xor_b32 v21, 32, v20
    v_xor_b32 v22, 64, v20
    v_xor_b32 v23, 0x60, v20
    s_mov_b32 s{t2}, 0x05040100
    s_mov_b32 s{t3}, 0x07060302
    v_lshrrev_b32 v12, 2, v{L15}
    v_lshl_add_u32 v13, v{G}, 3, v12
    v_lshlrev_b32 v13, 7, v13
    v_and_b32 v14, 3, v{L15}
    v_lshl_add_u32 v13, v14, 3, v13
    v_add_u32 v13, {STG}, v13
    v_lshrrev_b32 v12, 1, v12
    v_and_b32 v14, 1, v{G}
    v_lshl_add_u32 v12, v14, 1, v12
    v_lshl_add_u32 v{RA}, v12, 5, v13
    v_xor_b32 v{RA+1}, 32, v{RA}
    v_xor_b32 v{RA+2}, 64, v{RA}
    v_xor_b32 v{RA+3}, 0x60, v{RA}
    s_waitcnt vmcnt(16)
    """)
    for i in range(8):
        d = AF + 4 * i
        a(f"v_perm_b32 v16, v{d+1}, v{d}, s{t2}")
        a(f"v_perm_b32 v17, v{d+3}, v{d+2}, s{t2}")
        a(f"v_perm_b32 v18, v{d+1}, v{d}, s{t3}")
        a(f"v_perm_b32 v19, v{d+3}, v{d+2}, s{t3}")
        a(f"ds_write_b64 v{20+2*(i&1)}, v[16:17] offset:{i*1024}")
        a(f"ds_write_b64 v{21+2*(i&1)}, v[18:19] offset:{i*1024}")
    a("s_waitcnt lgkmcnt(0)")
    a("s_barrier")
    for tl in range(4):
        for es in range(8):
            for hh in range(2):
                a(f"ds_read_b64_tr_b16 {vr(BR+32*tl+4*es+2*hh,2)}, v{RA+tl} offset:{es*4096+hh*512}")
    a.label("P_bdone")
    ev(a, 2)
    a(f"""
    s_lshl_b32 s{t0}, s{sW}, 14
    v_add_u32 v{RA}, s{t0}, v7
    v_xor_b32 v{RA+1}, 64, v{RA}
    v_xor_b32 v{RA+2}, 0x80, v{RA}
    v_xor_b32 v{RA+3}, 0xc0, v{RA}
    s_mul_i32 s{sOUT}, s{sH}, 28
    s_lshl2_add_u32 s{sOUT}, s{sJ}, s{sOUT}
    s_mul_i32 s{sOUT}, s{sOUT}, {14*FR}
    s_mul_i32 s{t0}, s{sP}, {WB_OFF}
    s_add_u32 s{sOUT}, s{sOUT}, s{t0}
    s_lshr_b32 s{sN}, s{sW}, 1
    s_sub_u32 s{sN}, 4, s{sN}
    s_mov_b32 s{sRET}, {14*FR}
    s_mov_b32 s{sI}, 16384
    v_mov_b32 v24, v{VB}
    v_xor_b32 v25, 32, v{VB}
    v_xor_b32 v26, 64, v{VB}
    v_xor_b32 v27, 64, v25
    v_xor_b32 v28, 0x80, v{VB}
    v_xor_b32 v29, 32, v28
    v_xor_b32 v30, 64, v28
    v_xor_b32 v31, 64, v29
    s_waitcnt vmcnt(0)
    P_blk:
    """)
    a(f"""
    s_sub_u32 s{t3}, s{sKS}, 4
    s_sub_u32 s{t0}, s{t3}, 14
    s_min_u32 s{t3}, s{t0}, s{t3}
    s_sub_u32 s{t0}, s{t3}, 14
    s_min_u32 s{t3}, s{t0}, s{t3}
    s_lshl_b32 s{t3}, s{t3}, 10
    s_add_u32 s{t3}, s{t3}, s{sOUT}
    """)
    blk_addr()
    a(f"s_movk_i32 s{t1}, 0x400")
    a("s_waitcnt vmcnt(4)")
    for es in range(8):
        for tt in range(2):
            a(f"ds_read_b128 {vr(AF+8*es+4*tt,4)}, v{RA+(es&3)} offset:{tt*2048+(es>>2)*256}")
    n = 0
    for es in range(8):
        a(f"s_waitcnt lgkmcnt({14-2*es})")
        for tt in range(2):
            for tl in range(4):
                d = ACC + 8 * tl + 4 * tt
                a(f"v_mfma_f32_16x16x32_bf16 {vr(d,4)}, {vr(AF+8*es+4*tt,4)}, {vr(BR+32*tl+4*es,4)}, {'0' if es == 0 else vr(d,4)}")
                if n < 32:
                    i = n >> 1
                    if n & 1 == 0:
                        a(f"buffer_load_dwordx4 v{24+(i>>2)*2+(i&1)}, {SAs}, s{t0} offen lds")
                    else:
                        a(f"s_add_u32 s{t0}, s{t0}, s{sI}")
                        a(f"s_add_u32 m0, m0, s{t1}")
                n += 1
    for e in range(4):
        a(f"v_xor_b32 v{RA+e}, 65536, v{RA+e}")
    a("s_nop 3")
    for tl in range(4):
        d = ACC + 8 * tl
        for r in range(8):
            a(f"v_mul_f32 v{d+r}, s{sSC}, v{d+r}")
        o = AF + 4 * tl
        for q in range(4):
            a(f"v_cvt_pk_bf16_f32 v{o+q}, v{d+2*q}, v{d+2*q+1}")
        a(f"buffer_store_dwordx4 {vr(o,4)}, v{L16}, {WSs}, s{t3} offen sc1")
        a(f"s_add_u32 s{t3}, s{t3}, s{sRET}")
    a(f"""
    s_sub_u32 s{sN}, s{sN}, 1
    s_cmp_lg_u32 s{sN}, 0
    s_cbranch_scc1 P_blk
    s_lshr_b32 s{t0}, s{sH}, 1
    s_lshl_b32 s{t0}, s{t0}, 5
    s_and_b32 s{t1}, s{sH}, 1
    s_lshl2_add_u32 s{t0}, s{t1}, s{t0}
    s_add_u32 s{t0}, s{t0}, 4
    s_lshl_b32 s{t1}, s{sJ}, 5
    s_add_u32 s{t1}, s{t1}, 12
    s_cmp_eq_u32 s{sP}, 0
    s_cselect_b32 s89, s{t0}, s{t1}
    """)


def gen_misc(a, sM):
    sW = S_WAVE
    t0, t1, t2, t3, sODD, sCC0, sCCL, sN, sXF = range(78, 87)
    LN, G, L15 = 1, 2, 3
    WL = 65536
    ev(a, 1)
    a(f"""
    v_and_b32 v{LN}, 63, v0
    v_lshrrev_b32 v{G}, 4, v{LN}
    v_and_b32 v{L15}, 15, v{LN}
    v_lshlrev_b32 v4, 4, v{LN}
    s_lshl2_add_u32 s{sXF}, s{sM}, s{sW}
    s_mul_i32 s{t0}, s{sXF}, {16*896}
    s_mul_i32 m0, s{sW}, {16*912}
    s_mov_b32 exec_hi, 0x00ffffff
    s_mov_b32 s{sN}, 16
    M_lx:
    buffer_load_dwordx4 v4, {XSs}, s{t0} offen lds
    s_add_u32 s{t0}, s{t0}, 896
    s_add_u32 m0, m0, 912
    s_sub_u32 s{sN}, s{sN}, 1
    s_cmp_lg_u32 s{sN}, 0
    s_cbranch_scc1 M_lx
    s_cmp_eq_u32 s{sW}, 0
    s_cselect_b32 s48, s74, s76
    s_cselect_b32 s49, s75, s77
    s_mov_b32 s50, 896
    s_mov_b32 s51, 0x20000
    s_cselect_b32 s{t0}, 0, 1024
    s_add_u32 m0, s{t0}, {WL}
    s_nop 0
    buffer_load_dwordx4 v4, s[48:51], 0 offen lds
    s_mov_b64 exec, -1
    v_mov_b32 v8, -1
    v_mov_b32 v9, -1
    v_mov_b32 v10, -1
    v_mov_b32 v11, -1
    """)
    a(f"""
    s_lshl_b32 s{t0}, s{sXF}, 10
    s_add_u32 s{t1}, s{t0}, {MEMS_OFF+MEMS_STEP}
    s_cmp_eq_u32 s{S_XCC}, 0
    s_cbranch_scc0 M_s1b
    M_s1:
    buffer_store_dwordx4 v[8:11], v4, {WSs}, s{t1} offen
    s_add_u32 s{t1}, s{t1}, {128*1024}
    s_cmp_lt_u32 s{t1}, {MEMR_OFF}
    s_cbranch_scc1 M_s1
    s_branch M_s1e
    M_s1b:
    buffer_store_dwordx4 v[8:11], v4, {WSs}, s{t1} offen sc1
    s_add_u32 s{t1}, s{t1}, {128*1024}
    s_cmp_lt_u32 s{t1}, {MEMR_OFF}
    s_cbranch_scc1 M_s1b
    M_s1e:
    s_add_u32 s{t1}, s{t0}, {MEMR_OFF+MEMS_STEP}
    M_s2:
    buffer_store_dwordx4 v[8:11], v4, {WSs}, s{t1} offen sc1
    s_add_u32 s{t1}, s{t1}, {128*1024}
    s_cmp_lt_u32 s{t1}, {SENT_END}
    s_cbranch_scc1 M_s2
    v_mov_b32 v12, 0
    v_lshlrev_b32 v13, 2, v{LN}
    s_lshl_b32 s{t2}, s{sXF}, 7
    s_add_u32 s{t2}, s{t2}, {PROG_OFF}
    s_mov_b32 exec_hi, 0
    buffer_store_dword v12, v13, {WSs}, s{t2} offen sc1
    s_mov_b64 exec, -1
    s_cmp_ge_u32 s{sM}, 7
    s_cbranch_scc1 P_nomem
    s_mov_b32 s52, s60
    s_mov_b32 s53, s61
    s_mov_b32 s54, 7168
    s_mov_b32 s55, 0x20000
    v_bfe_u32 v12, v{LN}, 1, 3
    v_mul_u32_u24 v12, 896, v12
    v_lshl_add_u32 v12, v{G}, 5, v12
    v_and_b32 v14, 1, v{LN}
    v_lshl_add_u32 v12, v14, 2, v12
    s_lshl_b32 s{t0}, s{sM}, 7
    s_lshl3_add_u32 s{t0}, s{sW}, s{t0}
    s_lshl_b32 s{t1}, s{sW}, 2
    v_add_u32 v14, s{t1}, v4
    buffer_load_dword v16, v12, s[52:55], s{t0} offen
    s_lshl_b32 s{t1}, s{sM}, 10
    s_add_u32 s{t1}, s{t1}, {MEMS_OFF}
    s_add_u32 s{t2}, s{t1}, {MEMR_OFF-MEMS_OFF}
    s_waitcnt vmcnt(0)
    buffer_store_dword v16, v14, {WSs}, s{t1} offen sc1
    buffer_store_dword v16, v14, {WSs}, s{t2} offen sc1
    P_nomem:
    s_lshl_b32 s{t0}, s{sW}, 4
    v_add_u32 v6, s{t0}, v{L15}
    v_mul_u32_u24 v6, 912, v6
    v_lshl_add_u32 v6, v{G}, 4, v6
    v_lshlrev_b32 v7, 4, v{G}
    v_add_u32 v7, {WL}, v7
    s_mul_i32 s{t0}, s{sXF}, {14*FR}
    s_add_u32 s{t0}, s{t0}, {XF_OFF}
    v_mov_b32 v8, 0
    v_mov_b32 v9, 0
    s_mov_b32 s{sN}, 14
    """)
    ev(a, 2)
    a("s_waitcnt vmcnt(13)")
    ev(a, 3)
    a(f"""
    s_barrier
    M_xf:
    ds_read_b128 v[16:19], v6
    ds_read_b128 v[20:23], v7
    ds_read_b128 v[24:27], v7 offset:1024
    v_add_u32 v6, 64, v6
    v_add_u32 v7, 64, v7
    s_waitcnt lgkmcnt(0)
    buffer_store_dwordx4 v[16:19], v4, {WSs}, s{t0} offen sc1
    """)
    for q in range(4):
        a(f"v_dot2_f32_bf16 v8, v{16+q}, v{20+q}, v8")
        a(f"v_dot2_f32_bf16 v9, v{16+q}, v{24+q}, v9")
    a(f"""
    s_add_u32 s{t0}, s{t0}, 1024
    s_sub_u32 s{sN}, s{sN}, 1
    s_cmp_lg_u32 s{sN}, 0
    s_cbranch_scc1 M_xf
    v_mov_b32 v10, v8
    v_mov_b32 v11, v9
    v_permlane16_swap_b32 v8, v10
    v_permlane16_swap_b32 v9, v11
    v_add_f32 v8, v8, v10
    v_add_f32 v9, v9, v11
    v_mov_b32 v10, v8
    v_mov_b32 v11, v9
    v_permlane32_swap_b32 v8, v10
    v_permlane32_swap_b32 v9, v11
    v_add_f32 v8, v8, v10
    v_add_f32 v9, v9, v11
    v_cvt_pk_bf16_f32 v9, v9, v9
    v_and_b32 v9, 0xffff0000, v9
    v_mul_f32 v9, {f32hex(-LOG2E)}, v9
    v_exp_f32 v9, v9
    v_add_f32 v9, 1.0, v9
    v_rcp_f32 v9, v9
    v_cvt_pk_bf16_f32 v9, v9, v9
    v_and_b32 v9, 0xffff0000, v9
    s_lshl_b32 s{t2}, s{sXF}, 6
    s_add_u32 s{t2}, s{t2}, {RG_OFF}
    s_mov_b64 exec, 0xffff
    buffer_store_dword v8, v13, {WSs}, s{t2} offen sc1
    s_add_u32 s{t2}, s{t2}, 8192
    buffer_store_dword v9, v13, {WSs}, s{t2} offen sc1
    s_mov_b64 exec, -1
    s_and_b32 s{sODD}, s{sW}, 1
    s_mul_i32 s{t0}, s{sW}, 7
    s_add_u32 s{sCC0}, s{t0}, s{sODD}
    s_lshr_b32 s{sCC0}, s{sCC0}, 1
    s_add_u32 s{t1}, s{t0}, 6
    s_cmp_eq_u32 s{sODD}, 1
    s_cselect_b32 s{sCCL}, s{t0}, s{t1}
    s_lshr_b32 s{sCCL}, s{sCCL}, 1
    v_and_b32 v20, 1, v{G}
    v_lshrrev_b32 v21, 1, v{G}
    v_cmp_eq_u32 vcc, 1, v20
    v_add_u32 v22, s{sCC0}, v20
    s_add_u32 s{t0}, s{sCC0}, 2
    v_mov_b32 v23, s{t0}
    v_mov_b32 v24, s{sCCL}
    v_cndmask_b32 v23, v23, v24, vcc
    s_sub_u32 s{t0}, s{sODD}, 1
    s_not_b32 s{t1}, s{t0}
    v_mov_b32 v24, s{t0}
    v_cndmask_b32 v30, -1, v24, vcc
    v_mov_b32 v24, s{t1}
    v_cndmask_b32 v31, -1, v24, vcc
    v_mov_b32 v28, -1
    v_mov_b32 v29, -1
    v_bfe_u32 v25, v{L15}, 1, 1
    v_lshlrev_b32 v25, 4, v25
    v_lshrrev_b32 v26, 2, v{L15}
    v_lshl_add_u32 v25, v26, 2, v25
    v_and_b32 v26, 1, v{L15}
    v_lshl_add_u32 v25, v26, 1, v25
    v_mul_u32_u24 v25, 912, v25
    v_lshl_add_u32 v25, v21, 4, v25
    v_lshl_add_u32 v6, v22, 6, v25
    v_lshl_add_u32 v7, v23, 6, v25
    s_mul_i32 s{t0}, s{sM}, {2*XK_STEP}
    s_lshl_b32 s{t1}, s{sW}, 13
    s_add_u32 s{t0}, s{t0}, s{t1}
    s_add_u32 s{t0}, s{t0}, {XK_OFF}
    s_mov_b32 s{t1}, 4096
    s_mov_b32 s{sN}, 4
    M_xk:
    """)
    base = 32
    for t in range(2):
        for b in range(2):
            o4 = (t * 912 + b * 32) // 4
            a(f"ds_read2_b32 {vr(base+8*t+4*b,2)}, v6 offset0:{o4} offset1:{o4+2}")
            a(f"ds_read2_b32 {vr(base+8*t+4*b+2,2)}, v6 offset0:{o4+1} offset1:{o4+3}")
    a(f"v_add_u32 v6, {32*912}, v6")
    a("v_swap_b32 v6, v7")
    a("s_waitcnt lgkmcnt(0)")
    for r in range(16):
        a(f"v_and_b32 v{base+r}, v{base+r}, v{28+(r&1)}")
    a("v_swap_b32 v28, v30")
    a("v_swap_b32 v29, v31")
    a(f"s_cmp_eq_u32 s{S_XCC}, 0\ns_cbranch_scc0 M_xkb")
    for f in range(4):
        a(f"buffer_store_dwordx4 {vr(base+4*f,4)}, v4, {WSs}, s{t0} offen offset:{f*1024}")
    a("s_branch M_xke\nM_xkb:")
    for f in range(4):
        a(f"buffer_store_dwordx4 {vr(base+4*f,4)}, v4, {WSs}, s{t0} offen offset:{f*1024} sc1")
    a.label("M_xke")
    a(f"""
    s_add_u32 s{t0}, s{t0}, s{t1}
    s_sub_u32 s{t1}, {XK_STEP}, s{t1}
    s_sub_u32 s{sN}, s{sN}, 1
    s_cmp_lg_u32 s{sN}, 0
    s_cbranch_scc1 M_xk
    s_mov_b32 s89, {4*CW_M}
    """)
```

```python
from asmlib import *
from layout import *
import math, struct

def f32hex(x):
    return "0x%08x" % struct.unpack("<I", struct.pack("<f", x))[0]

C1 = math.log2(math.e) / 16.0
LOG2E = math.log2(math.e)


def srd(a, d, ptr, size):
    a(f"s_mov_b32 s{d}, s{ptr}\ns_mov_b32 s{d+1}, s{ptr+1}\ns_mov_b32 s{d+2}, {size}\ns_mov_b32 s{d+3}, 0x20000")


def pevt(a, k, diag, sreg=None):
    if not diag:
        return
    from gen_chain import EVT_OFF
    if sreg is None:
        a("s_memrealtime s[96:97]\ns_waitcnt lgkmcnt(0)")
        sreg = 96
    a(f"""
    s_lshl_b32 s98, s2, 2
    s_add_u32 s98, s98, s36
    s_lshl_b32 s98, s98, 5
    s_add_u32 s98, s98, {EVT_OFF + 32768 + 4*k}
    v_mov_b32 v30, s{sreg}
    v_mov_b32 v31, 0
    s_mov_b64 exec, 1
    buffer_store_dword v30, v31, s[24:27], s98 offen
    s_mov_b64 exec, -1
    """)


def gen_prep(a, diag=False):
    WSZ_B = 448 * 4096 * 2
    WS_, SA_, SB_ = 24, 28, 32
    WSs, SAs, SBs = f"s[{WS_}:{WS_+3}]", f"s[{SA_}:{SA_+3}]", f"s[{SB_}:{SB_+3}]"
    sW, sH, sP, sJ, t0, t1, t2, t3 = 36, 37, 38, 39, 40, 41, 42, 43
    LN, G, L15 = 1, 2, 3
    a(f"""
    s_cmp_ge_u32 s2, 256
    s_cbranch_scc1 P_exit
    s_memrealtime s[90:91]
    s_load_dwordx4 s[4:7], s[0:1], 0
    s_load_dwordx8 s[8:15], s[0:1], 16
    s_load_dwordx2 s[16:17], s[0:1], 64
    s_load_dwordx2 s[18:19], s[0:1], 96
    s_load_dwordx2 s[20:21], s[0:1], 120
    v_lshrrev_b32 v1, 6, v0
    v_readfirstlane_b32 s{sW}, v1
    v_and_b32 v{LN}, 63, v0
    v_lshrrev_b32 v{G}, 4, v{LN}
    v_and_b32 v{L15}, 15, v{LN}
    s_and_b32 s{t0}, s2, 7
    s_lshr_b32 s{t1}, s2, 3
    s_waitcnt lgkmcnt(0)
    """)
    srd(a, WS_, 20, 0x10000000)
    pevt(a, 0, diag, 90)
    a(f"""
    s_cmp_ge_u32 s{t1}, 28
    s_cbranch_scc1 P_misc
    ; group q = xcd*4 + k/7, slice j = k%7
    s_mul_i32 s{t2}, s{t1}, 37
    s_lshr_b32 s{t2}, s{t2}, 8
    s_mul_i32 s{t3}, s{t2}, 7
    s_sub_u32 s{sJ}, s{t1}, s{t3}
    s_lshl_b32 s{t0}, s{t0}, 2
    s_add_u32 s{t0}, s{t0}, s{t2}
    s_lshr_b32 s{sH}, s{t0}, 1
    s_and_b32 s{sP}, s{t0}, 1
    s_cmp_eq_u32 s{sP}, 0
    s_cselect_b32 s{SA_}, s8, s12
    s_cselect_b32 s{SA_+1}, s9, s13
    s_mov_b32 s{SA_+2}, {WSZ_B}
    s_mov_b32 s{SA_+3}, 0x20000
    s_cselect_b32 s{SB_}, s10, s14
    s_cselect_b32 s{SB_+1}, s11, s15
    s_mov_b32 s{SB_+2}, {WSZ_B}
    s_mov_b32 s{SB_+3}, 0x20000
    """)
    BR, ACC, AF = 128, 96, 32
    VB, VT, RA = 4, 5, 8
    sBUF, sKS, sOUT = 44, 45, 46
    a(f"""
    v_lshrrev_b32 v6, 5, v{LN}
    v_and_b32 v7, 31, v{LN}
    v_xor_b32 v7, v7, v6
    v_lshlrev_b32 v7, 4, v7
    v_lshl_add_u32 v{VB}, v6, 13, v7
    s_lshl_b32 s{sBUF}, s{sW}, 14
    s_lshl_b32 s47, s{sH}, 9
    """)

    def dma_block(ks_sreg, bufoff):
        a(f"s_lshl_b32 s{t0}, s{ks_sreg}, 18")
        a(f"s_add_u32 s{t0}, s{t0}, s47")
        for i in range(16):
            k = ((i >> 2) << 2) | (2 * (i & 1))
            a(f"v_xor_b32 v{VT}, {k << 4}, v{VB}")
            a(f"s_add_u32 m0, s{sBUF}, {bufoff + i*1024}")
            a(f"buffer_load_dwordx4 v{VT}, {SAs}, s{t0} offen lds")
            if i < 15:
                a(f"s_add_u32 s{t0}, s{t0}, 16384")

    a(f"s_mov_b32 s{sKS}, s{sW}")
    dma_block(sKS, 0)
    a(f"""
    s_cmp_eq_u32 s{sP}, 0
    s_cbranch_scc0 P_stageWo
    """)
    a(f"""
    s_lshl_b32 s{t0}, s{sJ}, 19
    s_lshl_b32 s{t1}, s{sW}, 17
    s_add_u32 s{t0}, s{t0}, s{t1}
    s_add_u32 s{t0}, s{t0}, s47
    s_lshl_b32 s{t1}, s{sW}, 13
    s_add_u32 s{t1}, s{t1}, 65536
    s_and_b32 s{t2}, s{sW}, 1
    s_lshl_b32 s{t2}, s{t2}, 7
    v_xor_b32 v12, s{t2}, v{VB}
    """)
    for ii in range(8):
        k = ((ii >> 2) << 2) | (2 * (ii & 1))
        a(f"v_xor_b32 v{VT}, {k << 4}, v12")
        a(f"s_add_u32 m0, s{t1}, {ii*1024}")
        a(f"buffer_load_dwordx4 v{VT}, {SBs}, s{t0} offen lds")
        a(f"s_add_u32 s{t0}, s{t0}, 16384")
    a(f"""
    v_lshrrev_b32 v12, 2, v{L15}
    v_lshlrev_b32 v12, 3, v12
    v_and_b32 v13, 3, v{L15}
    v_add_u32 v12, v12, v13
    v_lshlrev_b32 v12, 9, v12
    v_add_u32 v12, 65536, v12
    """)
    for e in range(4):
        a(f"v_add_u32 v13, {4*e}, v{G}")
        a(f"v_xor_b32 v13, v13, v{L15}")
        a(f"v_lshl_add_u32 v{RA+e}, v13, 4, v12")
    a("s_waitcnt vmcnt(0)")
    a("s_barrier")
    for tl in range(4):
        for es in range(8):
            a(f"ds_read_b128 {vr(BR+32*tl+4*es,4)}, v{RA+(es&3)} offset:{(tl>>1)*16384+(tl&1)*2048+(es>>2)*256}")
            if es == 7 and tl in (1, 3):
                a("s_waitcnt lgkmcnt(0)")
    a("s_branch P_bdone")
    a.label("P_stageWo")
    a(f"""
    v_lshrrev_b32 v12, 3, v{LN}
    v_and_b32 v13, 7, v{LN}
    v_mul_u32_u24 v14, 896, v12
    v_lshl_add_u32 v14, v13, 4, v14
    s_lshl_b32 s{t0}, s{sH}, 8
    s_lshl_b32 s{t1}, s{sW}, 6
    s_add_u32 s{t0}, s{t0}, s{t1}
    s_mul_i32 s{t0}, s{t0}, 896
    s_lshl_b32 s{t2}, s{sJ}, 7
    s_add_u32 s{t0}, s{t0}, s{t2}
    """)
    for i in range(8):
        a(f"buffer_load_dwordx4 {vr(AF+4*i,4)}, v14, {SBs}, s{t0} offen")
        a(f"s_add_u32 s{t0}, s{t0}, {8*896}")
    a(f"""
    v_mul_u32_u24 v15, 192, v12
    v_lshrrev_b32 v16, 2, v13
    v_lshl_add_u32 v15, v16, 6, v15
    v_and_b32 v16, 3, v13
    v_lshl_add_u32 v15, v16, 3, v15
    s_mul_i32 s{t1}, s{t1}, 192
    s_add_u32 s{t1}, s{t1}, 65536
    v_add_u32 v15, s{t1}, v15
    s_mov_b32 s{t2}, 0x05040100
    s_mov_b32 s{t3}, 0x07060302
    """)
    for i in range(8):
        d = AF + 4 * i
        a(f"s_waitcnt vmcnt({7-i})")
        a(f"v_perm_b32 v16, v{d+1}, v{d}, s{t2}")
        a(f"v_perm_b32 v17, v{d+3}, v{d+2}, s{t2}")
        a(f"v_perm_b32 v18, v{d+1}, v{d}, s{t3}")
        a(f"v_perm_b32 v19, v{d+3}, v{d+2}, s{t3}")
        a(f"ds_write_b64 v15, v[16:17] offset:{i*1536+(i&1)*32}")
        a(f"ds_write_b64 v15, v[18:19] offset:{i*1536+(i&1)*32+32}")
    a(f"""
    v_lshrrev_b32 v12, 2, v{L15}
    v_lshl_add_u32 v12, v{G}, 3, v12
    v_mul_u32_u24 v12, 192, v12
    v_and_b32 v13, 1, v{G}
    v_lshl_add_u32 v12, v13, 5, v12
    v_and_b32 v13, 3, v{L15}
    v_lshl_add_u32 v12, v13, 3, v12
    v_add_u32 v12, 65536, v12
    s_waitcnt lgkmcnt(0)
    s_barrier
    """)
    for tl in range(4):
        for es in range(8):
            for hh in range(2):
                a(f"ds_read_b64_tr_b16 {vr(BR+32*tl+4*es+2*hh,2)}, v12 offset:{es*6144+hh*768+tl*32}")
            if es in (3, 7):
                a("s_waitcnt lgkmcnt(0)")
    a.label("P_bdone")
    pevt(a, 1, diag)
    a("s_barrier")
    a(f"""
    v_lshrrev_b32 v12, 2, v{L15}
    v_lshlrev_b32 v12, 3, v12
    v_and_b32 v13, 3, v{L15}
    v_add_u32 v12, v12, v13
    v_lshlrev_b32 v12, 9, v12
    v_add_u32 v12, s{sBUF}, v12
    """)
    for e in range(4):
        a(f"v_add_u32 v13, {4*e}, v{G}")
        a(f"v_xor_b32 v13, v13, v{L15}")
        a(f"v_lshl_add_u32 v{RA+e}, v13, 4, v12")
    a(f"""
    v_lshlrev_b32 v6, 4, v{LN}
    s_mul_i32 s{sOUT}, s{sH}, 28
    s_lshl_b32 s{t0}, s{sJ}, 2
    s_add_u32 s{sOUT}, s{sOUT}, s{t0}
    s_mul_i32 s{sOUT}, s{sOUT}, {14*FR}
    s_mul_i32 s{t0}, s{sP}, {WB_OFF}
    s_add_u32 s{sOUT}, s{sOUT}, s{t0}
    s_cmp_eq_u32 s{sP}, 0
    s_cselect_b32 s48, {f32hex(C1)}, 1.0
    """)
    for it in range(4):
        if it == 3:
            a(f"s_cmp_ge_u32 s{sW}, 2\ns_cbranch_scc1 P_done")
        nxt = it < 3
        if nxt:
            a(f"s_add_u32 s49, s{sKS}, 4")
            if it == 2:
                a(f"s_min_u32 s49, s49, 13")
            dma_block(49, 65536 if it % 2 == 0 else 0)
        pend = (16 if nxt else 0) + (4 if it > 0 else 0)
        a(f"s_waitcnt vmcnt({pend})")
        for es in range(8):
            for tt in range(2):
                a(f"ds_read_b128 {vr(AF+8*es+4*tt,4)}, v{RA+(es&3)} offset:{tt*2048+(es>>2)*256}")
        for es in range(8):
            a(f"s_waitcnt lgkmcnt({14-2*es})")
            for tt in range(2):
                for tl in range(4):
                    d = ACC + 8 * tl + 4 * tt
                    a(f"v_mfma_f32_16x16x32_bf16 {vr(d,4)}, {vr(AF+8*es+4*tt,4)}, {vr(BR+32*tl+4*es,4)}, {'0' if es == 0 else vr(d,4)}")
        for e in range(4):
            a(f"v_xor_b32 v{RA+e}, 65536, v{RA+e}")
        a(f"s_lshl_b32 s{t0}, s{sKS}, 10")
        a(f"s_add_u32 s{t0}, s{t0}, s{sOUT}")
        for tl in range(4):
            d = ACC + 8 * tl
            for r in range(8):
                a(f"v_mul_f32 v{d+r}, s48, v{d+r}")
            o = 12 + 4 * tl
            for q in range(4):
                a(f"v_cvt_pk_bf16_f32 v{o+q}, v{d+2*q}, v{d+2*q+1}")
            a(f"buffer_store_dwordx4 {vr(o,4)}, v6, {WSs}, s{t0} offen")
            a(f"s_add_u32 s{t0}, s{t0}, {14*FR}")
        a(f"s_add_u32 s{sKS}, s{sKS}, 4")
    a.label("P_done")
    pevt(a, 2, diag)
    a("s_waitcnt vmcnt(0)")
    pevt(a, 3, diag)
    a.label("P_exit")
    a("s_endpgm")

    a.label("P_misc")
    sM = 44
    XS_ = SA_
    a(f"""
    s_lshl_b32 s{t0}, s{t0}, 2
    s_sub_u32 s{t1}, s{t1}, 28
    s_add_u32 s{sM}, s{t0}, s{t1}
    """)
    srd(a, XS_, 4, 2048 * 896)
    a(f"""
    v_lshlrev_b32 v4, 4, v{LN}
    s_lshl_b32 s{t0}, s{sM}, 6
    s_lshl_b32 s{t1}, s{sW}, 4
    s_add_u32 s{t0}, s{t0}, s{t1}
    s_mul_i32 s{t0}, s{t0}, 896
    s_mul_i32 s{t1}, s{t1}, 912
    s_mov_b32 exec_lo, -1
    s_mov_b32 exec_hi, 0x00ffffff
    """)
    for r in range(16):
        a(f"s_add_u32 m0, s{t1}, {r*912}")
        a(f"buffer_load_dwordx4 v4, {SAs}, s{t0} offen lds")
        a(f"s_add_u32 s{t0}, s{t0}, 896")
    a("s_mov_b64 exec, -1")
    srd(a, SB_, 16, 896)
    a(f"v_lshlrev_b32 v5, 4, v{G}")
    for ks in range(14):
        a(f"buffer_load_dwordx4 {vr(128+4*ks,4)}, v5, {SBs}, 0 offen offset:{64*ks}")
    srd(a, 48, 18, 896)
    for ks in range(14):
        a(f"buffer_load_dwordx4 {vr(192+4*ks,4)}, v5, s[48:51], 0 offen offset:{64*ks}")
    NS = SENT_END - MEMS_OFF
    per = -(-NS // (128 * 1024))
    a(f"""
    v_mov_b32 v8, -1
    v_mov_b32 v9, -1
    v_mov_b32 v10, -1
    v_mov_b32 v11, -1
    s_lshl_b32 s{t0}, s{sM}, 2
    s_add_u32 s{t0}, s{t0}, s{sW}
    s_lshl_b32 s{t2}, s{t0}, 7
    s_mul_i32 s{t0}, s{t0}, {per*1024}
    s_add_u32 s{t0}, s{t0}, {MEMS_OFF}
    """)
    for k in range(per):
        a(f"""
        s_sub_u32 s{t1}, s{t0}, {MEMS_OFF}
        s_cmp_lt_u32 s{t1}, {MEMS_STEP}
        s_cselect_b32 s{t3}, 0x7ffffff0, s{t0}
        s_sub_u32 s{t1}, s{t0}, {MEMR_OFF}
        s_cmp_lt_u32 s{t1}, {MEMS_STEP}
        s_cselect_b32 s{t3}, 0x7ffffff0, s{t3}
        s_cmp_ge_u32 s{t0}, {SENT_END}
        s_cselect_b32 s{t3}, 0x7ffffff0, s{t3}
        buffer_store_dwordx4 v[8:11], v4, {WSs}, s{t3} offen
        s_add_u32 s{t0}, s{t0}, 1024
        """)
    a(f"""
    v_mov_b32 v12, 0
    v_lshlrev_b32 v13, 2, v{LN}
    s_add_u32 s{t2}, s{t2}, {PROG_OFF}
    s_mov_b32 exec_hi, 0
    buffer_store_dword v12, v13, {WSs}, s{t2} offen
    s_mov_b64 exec, -1
    s_cmp_lg_u32 s{sM}, 0
    s_cbranch_scc1 P_nomem
    """)
    srd(a, 52, 6, 7168)
    a(f"""
    v_bfe_u32 v12, v{LN}, 1, 3
    v_mul_u32_u24 v12, 896, v12
    v_lshl_add_u32 v12, v{G}, 5, v12
    v_and_b32 v13, 1, v{LN}
    v_lshl_add_u32 v12, v13, 2, v12
    s_lshl_b32 s{t0}, s{sW}, 3
    s_lshl_b32 s{t1}, s{sW}, 2
    v_add_u32 v13, s{t1}, v4
    """)
    for ks in range(7):
        a(f"buffer_load_dword v{16+ks}, v12, s[52:55], s{t0} offen offset:{128*ks}")
    a(f"s_mov_b32 s{t0}, {MEMS_OFF}\ns_mov_b32 s{t1}, {MEMR_OFF}")
    a("s_waitcnt vmcnt(0)")
    for ks in range(7):
        a(f"buffer_store_dword v{16+ks}, v13, {WSs}, s{t0} offen")
        a(f"buffer_store_dword v{16+ks}, v13, {WSs}, s{t1} offen")
        a(f"s_add_u32 s{t0}, s{t0}, 1024\ns_add_u32 s{t1}, s{t1}, 1024")
    a.label("P_nomem")
    a("s_waitcnt vmcnt(0)")
    pevt(a, 1, diag)
    a("s_barrier")
    a(f"""
    s_lshl_b32 s{t0}, s{sW}, 4
    v_add_u32 v6, s{t0}, v{L15}
    v_mul_u32_u24 v6, 912, v6
    v_lshl_add_u32 v6, v{G}, 4, v6
    s_lshl_b32 s{t0}, s{sM}, 2
    s_add_u32 s{t0}, s{t0}, s{sW}
    s_lshl_b32 s{t2}, s{t0}, 6
    s_mul_i32 s{t0}, s{t0}, {14*FR}
    s_add_u32 s{t0}, s{t0}, {XF_OFF}
    v_mov_b32 v8, 0
    v_mov_b32 v9, 0
    """)
    for ks in range(14):
        a(f"ds_read_b128 {vr(16+4*ks,4)}, v6 offset:{64*ks}")
    for ks in range(14):
        a(f"s_waitcnt lgkmcnt({13-ks})")
        a(f"buffer_store_dwordx4 {vr(16+4*ks,4)}, v4, {WSs}, s{t0} offen")
        a(f"s_add_u32 s{t0}, s{t0}, 1024")
        for q in range(4):
            a(f"v_dot2_f32_bf16 v8, v{16+4*ks+q}, v{128+4*ks+q}, v8")
            a(f"v_dot2_f32_bf16 v9, v{16+4*ks+q}, v{192+4*ks+q}, v9")
    a(f"""
    v_mov_b32 v10, v8
    v_mov_b32 v11, v9
    v_permlane16_swap_b32 v8, v10
    v_permlane16_swap_b32 v9, v11
    v_add_f32 v8, v8, v10
    v_add_f32 v9, v9, v11
    v_mov_b32 v10, v8
    v_mov_b32 v11, v9
    v_permlane32_swap_b32 v8, v10
    v_permlane32_swap_b32 v9, v11
    v_add_f32 v8, v8, v10
    v_add_f32 v9, v9, v11
    v_cvt_pk_bf16_f32 v9, v9, v9
    v_and_b32 v9, 0xffff0000, v9
    v_mul_f32 v9, {f32hex(-LOG2E)}, v9
    v_exp_f32 v9, v9
    v_add_f32 v9, 1.0, v9
    v_rcp_f32 v9, v9
    v_cvt_pk_bf16_f32 v9, v9, v9
    v_and_b32 v9, 0xffff0000, v9
    s_add_u32 s{t2}, s{t2}, {RG_OFF}
    v_lshlrev_b32 v13, 2, v{LN}
    s_mov_b64 exec, 0xffff
    buffer_store_dword v8, v13, {WSs}, s{t2} offen
    s_add_u32 s{t2}, s{t2}, 8192
    buffer_store_dword v9, v13, {WSs}, s{t2} offen
    s_mov_b64 exec, -1
    """)
    sODD, sCC0, sCCL = 45, 46, 47
    a(f"""
    s_and_b32 s{sODD}, s{sW}, 1
    s_mul_i32 s{t0}, s{sW}, 7
    s_add_u32 s{sCC0}, s{t0}, s{sODD}
    s_lshr_b32 s{sCC0}, s{sCC0}, 1
    s_add_u32 s{t1}, s{t0}, 6
    s_cmp_eq_u32 s{sODD}, 1
    s_cselect_b32 s{sCCL}, s{t0}, s{t1}
    s_lshr_b32 s{sCCL}, s{sCCL}, 1
    v_and_b32 v20, 1, v{G}
    v_lshrrev_b32 v21, 1, v{G}
    v_cmp_eq_u32 vcc, 1, v20
    v_add_u32 v22, s{sCC0}, v20
    s_add_u32 s{t0}, s{sCC0}, 2
    v_mov_b32 v23, s{t0}
    v_mov_b32 v24, s{sCCL}
    v_cndmask_b32 v23, v23, v24, vcc
    s_sub_u32 s{t0}, s{sODD}, 1
    s_not_b32 s{t1}, s{t0}
    v_mov_b32 v24, s{t0}
    v_cndmask_b32 v28, -1, v24, vcc
    v_mov_b32 v24, s{t1}
    v_cndmask_b32 v29, -1, v24, vcc
    v_bfe_u32 v25, v{L15}, 1, 1
    v_lshlrev_b32 v25, 4, v25
    v_lshrrev_b32 v26, 2, v{L15}
    v_lshl_add_u32 v25, v26, 2, v25
    v_and_b32 v26, 1, v{L15}
    v_lshl_add_u32 v25, v26, 1, v25
    v_mul_u32_u24 v25, 912, v25
    v_lshl_add_u32 v25, v21, 4, v25
    v_lshl_add_u32 v6, v22, 6, v25
    v_lshl_add_u32 v7, v23, 6, v25
    s_lshl_b32 s{t0}, s{sM}, 1
    s_mul_i32 s{t0}, s{t0}, {XK_STEP}
    s_lshl_b32 s{t1}, s{sW}, 13
    s_add_u32 s{t0}, s{t0}, s{t1}
    s_add_u32 s{t0}, s{t0}, {XK_OFF}
    """)
    for seg in range(2):
        base = 32 + 32 * seg
        for sg in range(2):
            a(f"v_add_u32 v5, {seg*32*912}, v{6+sg}")
            for t in range(2):
                for b in range(2):
                    o4 = (t * 912 + b * 32) // 4
                    a(f"ds_read2_b32 {vr(base+16*sg+8*t+4*b,2)}, v5 offset0:{o4} offset1:{o4+2}")
                    a(f"ds_read2_b32 {vr(base+16*sg+8*t+4*b+2,2)}, v5 offset0:{o4+1} offset1:{o4+3}")
            a("s_waitcnt lgkmcnt(0)")
        for r in range(16):
            a(f"v_and_b32 v{base+16+r}, v{base+16+r}, v{28+(r&1)}")
        a("s_waitcnt lgkmcnt(0)")
        for f in range(8):
            a(f"buffer_store_dwordx4 {vr(base+4*f,4)}, v4, {WSs}, s{t0} offen offset:{(f&3)*1024}")
            if f == 3:
                a(f"s_add_u32 s{t0}, s{t0}, 4096")
        a(f"s_add_u32 s{t0}, s{t0}, {XK_STEP-4096}")
    pevt(a, 2, diag)
    a("s_waitcnt vmcnt(0)")
    pevt(a, 3, diag)
    a("s_endpgm")
```

```python
from asmlib import *
from layout import *

S_X, S_OUT, S_DBG, S_WS = 4, 8, 10, 12
SRD_WS, SRD_X, SRD_DBG = 16, 20, 24
S_WAVE, S_ROLE, S_FB, S_LIM, S_CNT, S_STEP = 28, 29, 30, 31, 32, 33
S_K = 34
S_T0, S_T1, S_T2, S_T3 = 41, 42, 43, 44
S_MEMOFF, S_PSOFF = 45, 46
S_XO = 47
S_SLP, S_SL2 = 48, 49
S_RDY, S_MN = 56, 57
S_XB = 58
S_STP = 60
S_CNTS = 64
S_STB = 87
SPIN_LIMIT = 200000
OPT = dict(sleepT=0, sleepV=0, nox=0, sleepVm=0, memtime=0, novx=0, lat=0, nowarm=0, lead=3, wide=0, adapt=0, nomn=1, vdelay=0, lo=1, hi=2, nvx=0, rsleep=16, nb=10, w64=1, wfirst=0, wgap=2, evtonly=0, lightT=0, lightV=0, tstride=7, g_nold=0, g_plain=0, clk=0)
WS = f"s[{SRD_WS}:{SRD_WS+3}]"
XS = f"s[{SRD_X}:{SRD_X+3}]"
OOB = 0x7FFFFFF0

T_TR, T_PART = 8192, 20480
V_PART, V_WL = 8192, 16384
NWL = 12

V_IDX, V_FA, V_TMP = 1, 2, 19
MF, ACC = 20, 48
LN, G4, L15 = 40, 41, 42


def common_setup(a):
    a(f"""
    v_and_b32 v{LN}, 63, v0
    v_lshrrev_b32 v{G4}, 4, v{LN}
    v_and_b32 v{L15}, 15, v{LN}
    v_and_b32 v20, 1, v0
    v_cmp_eq_u32 vcc, 0, v20
    v_mov_b32 v20, 0xEEEE
    v_mov_b32 v21, 0x4444
    v_cndmask_b32 v{V_IDX}, v20, v21, vcc
    s_lshl_b32 s{S_T0}, s{S_WAVE}, 1
    """)
    for u in range(7):
        a(f"""
        s_add_u32 s{S_T1}, s{S_T0}, {u}
        s_sub_u32 s{S_T2}, s{S_T1}, 7
        s_cmp_ge_u32 s{S_T1}, 7
        s_cselect_b32 s{S_K+u}, s{S_T2}, s{S_T1}
        s_lshl_b32 s{S_T1}, s{S_K+u}, 10
        v_lshl_add_u32 v{V_FA+u}, v{LN}, 4, s{S_T1}
        """)
    a(f"s_mov_b32 s{S_LIM}, {SPIN_LIMIT}")
    a(f"s_mov_b32 s{S_STEP}, 0")
    a(f"s_mov_b32 s{S_MEMOFF}, {MEMS_OFF}")
    a(f"s_mov_b32 s{S_PSOFF}, {PS_OFF}")


def poll(a, loads, regs, depth2=True, sleep=0):
    n = len(loads)
    top, done = a.newlabel("poll"), a.newlabel("polled")
    a(f"s_mov_b32 s{S_CNT}, s{S_LIM}")
    if depth2:
        for l in loads:
            a(l)
    a.label(top)
    for l in loads:
        a(l)
    a(f"s_waitcnt vmcnt({n if depth2 else 0})")
    r = list(regs)
    a(f"v_max3_u32 v{V_TMP}, v{r[0]}, v{r[1]}, v{r[2]}")
    r = r[3:]
    while len(r) >= 2:
        a(f"v_max3_u32 v{V_TMP}, v{V_TMP}, v{r[0]}, v{r[1]}"); r = r[2:]
    if r:
        a(f"v_max_u32 v{V_TMP}, v{V_TMP}, v{r[0]}")
    a(f"v_cmp_eq_u32 vcc, -1, v{V_TMP}")
    a(f"s_cbranch_vccz {done}")
    if sleep:
        a(f"s_sleep {sleep}")
    a(f"""
    s_sub_u32 s{S_CNT}, s{S_CNT}, 1
    s_cmp_lg_u32 s{S_CNT}, 0
    s_cbranch_scc1 {top}
    s_mov_b32 s{S_LIM}, 1
    """)
    a.label(done)


def chk4(a, r, ok):
    a(f"v_max3_u32 v{V_TMP}, v{r}, v{r+1}, v{r+2}")
    a(f"v_max_u32 v{V_TMP}, v{V_TMP}, v{r+3}")
    a(f"v_cmp_eq_u32 vcc, -1, v{V_TMP}")
    a(f"s_cbranch_vccz {ok}")


def light(a, load, reg, name):
    a(f"s_mov_b32 s{S_CNT}, s{S_LIM}")
    a(load)
    a.label(name)
    a(load)
    a("s_waitcnt vmcnt(1)")
    a(f"v_cmp_ne_u32 vcc, -1, v{reg}")
    a(f"s_cbranch_vccnz {name}_go")
    retry(a, name)
    a.label(name + "_go")


def retry(a, top):
    a(f"""
    s_sub_u32 s{S_CNT}, s{S_CNT}, 1
    s_cmp_lg_u32 s{S_CNT}, 0
    s_cbranch_scc1 {top}
    s_mov_b32 s{S_LIM}, 1
    """)


def backoff(a, sreg):
    top, done = a.newlabel("bo"), a.newlabel("bod")
    a(f"""
    s_mov_b32 s{S_T0}, s{sreg}
    {top}:
    s_cmp_eq_u32 s{S_T0}, 0
    s_cbranch_scc1 {done}
    s_sleep 1
    s_sub_u32 s{S_T0}, s{S_T0}, 1
    s_branch {top}
    {done}:
    """)


def adapt(a, sreg, saved):
    lo, hi = OPT["lo"], OPT["hi"]
    a(f"""
    s_sub_u32 s{S_T0}, s{S_LIM}, s{saved}
    s_sub_u32 s{S_T1}, s{sreg}, 1
    s_max_i32 s{S_T1}, s{S_T1}, 0
    s_cmp_lt_u32 s{S_T0}, {lo}
    s_cselect_b32 s{sreg}, s{S_T1}, s{sreg}
    s_sub_u32 s{S_T1}, s{S_T0}, {hi}
    s_add_u32 s{S_T1}, s{S_T1}, s{sreg}
    s_min_u32 s{S_T1}, s{S_T1}, 48
    s_cmp_gt_u32 s{S_T0}, {hi}
    s_cselect_b32 s{sreg}, s{S_T1}, s{sreg}
    """)


def stamp(a, k, diag):
    if diag and not OPT["evtonly"]:
        a(f"{'s_memtime' if OPT['memtime'] else 's_memrealtime'} s[{S_STP+2*k}:{S_STP+2*k+1}]")


def stamp_setup(a, diag):
    if diag:
        a(f"s_lshl_b32 s{S_STB}, s{S_ROLE}, 2\ns_add_u32 s{S_STB}, s{S_STB}, s{S_WAVE}\ns_lshl_b32 s{S_STB}, s{S_STB}, 11\ns_add_u32 s{S_STB}, s{S_STB}, {STAMP_OFF}")


def stamp_store(a, n, diag, t0, t1):
    if not diag or OPT["evtonly"]:
        return
    a("s_waitcnt lgkmcnt(0)")
    a(f"s_lshl_b32 s{S_T0}, s{S_STEP}, 5")
    a(f"s_add_u32 s{S_T0}, s{S_T0}, s{S_STB}")
    a("s_mov_b64 exec, 1")
    for k in range(n):
        a(f"v_mov_b32 v{t0}, s{S_STP+2*k}")
        a(f"v_mov_b32 v{t1}, {4*k}")
        a(f"buffer_store_dword v{t0}, v{t1}, {WS}, s{S_T0} offen")
    a("s_mov_b64 exec, -1")


EVT_OFF = STAMP_OFF + (1 << 19)


def evt(a, k, diag, t0, t1, role=None):
    if not diag:
        return
    a(f"""
    s_memrealtime s[96:97]
    s_lshl_b32 s98, s{S_ROLE if role is None else role}, 2
    s_add_u32 s98, s98, s{S_WAVE}
    s_lshl_b32 s98, s98, 5
    s_add_u32 s98, s98, {EVT_OFF + 4*k}
    s_waitcnt lgkmcnt(0)
    v_mov_b32 v{t0}, s96
    v_mov_b32 v{t1}, 0
    s_mov_b64 exec, 1
    buffer_store_dword v{t0}, v{t1}, {WS}, s98 offen
    s_mov_b64 exec, -1
    s_waitcnt vmcnt(0)
    """)


def smf(acc, A, B):
    return f"v_smfmac_f32_16x16x64_bf16 {vr(acc,4)}, {vr(A,4)}, {B}, v{V_IDX}"


DPPS = ["quad_perm:[1,0,3,2]", "quad_perm:[2,3,0,1]", "row_half_mirror", "row_mirror"]


def mem_polls():
    return [f"buffer_load_dwordx4 {vr(MF+4*u,4)}, v{V_FA+u}, {WS}, s{S_MEMOFF} offen sc1" for u in range(2)]


def gen_T(a, diag=False):
    SA, XK = 76, 88
    (V_M0, V_M1, V_MK0, V_MK1, V_TW, V_TRD, V_PW, V_PR, V_PA0, V_PA1) = range(9, 19)
    V_MASK = 0

    def W(jj, u):
        o = (u * 7 + jj) if u < 2 else 14 + jj * 5 + (u - 2)
        return ar(8 * o, 8) if o < 32 else vr(120 + 8 * (o - 32), 8)

    a.label("L_role_T")
    a.c("T role: head = S_ROLE")
    evt(a, 1, diag, 20, 21)
    common_setup(a)
    h = S_ROLE
    S_ODD, S_TAU0, S_TAUL, S_CC0, S_CCL = 80, 81, 82, 83, 84
    a(f"""
    s_and_b32 s{S_ODD}, s{S_WAVE}, 1
    s_mul_i32 s{S_T0}, s{S_WAVE}, 7
    s_add_u32 s{S_TAU0}, s{S_T0}, s{S_ODD}
    s_lshr_b32 s{S_CC0}, s{S_TAU0}, 1
    s_add_u32 s{S_T1}, s{S_T0}, 6
    s_cmp_eq_u32 s{S_ODD}, 1
    s_cselect_b32 s{S_TAUL}, s{S_T0}, s{S_T1}
    s_lshr_b32 s{S_CCL}, s{S_TAUL}, 1
    v_lshlrev_b32 v43, 4, v{LN}
    s_mul_i32 s{S_T3}, s{h}, {28*14*FR}
    """)
    a.c("weights -> registers")
    for jj in range(7):
        if jj < 6:
            a(f"s_add_u32 s{S_T0}, s{S_TAU0}, {jj}")
        else:
            a(f"s_mov_b32 s{S_T0}, s{S_TAUL}")
        a(f"s_mul_i32 s{S_T0}, s{S_T0}, {14*FR}")
        a(f"s_add_u32 s{S_T0}, s{S_T0}, s{S_T3}")
        for u in range(7):
            w = W(jj, u)
            k, base = w[0], int(w[2:].split(":")[0])
            a(f"s_lshl_b32 s{S_T1}, s{S_K+u}, 11")
            a(f"s_add_u32 s{S_T1}, s{S_T1}, s{S_T0}")
            a(f"buffer_load_dwordx4 {k}[{base}:{base+3}], v43, {WS}, s{S_T1} offen")
            a(f"buffer_load_dwordx4 {k}[{base+4}:{base+7}], v43, {WS}, s{S_T1} offen offset:1024")
    a.c("address registers")
    a(f"""
    v_and_b32 v20, 1, v{G4}
    v_lshrrev_b32 v21, 1, v{G4}
    v_cmp_eq_u32 vcc, 1, v20
    v_add_u32 v22, s{S_CC0}, v20
    s_add_u32 s{S_T0}, s{S_CC0}, 2
    v_mov_b32 v23, s{S_T0}
    v_mov_b32 v24, s{S_CCL}
    v_cndmask_b32 v23, v23, v24, vcc
    s_sub_u32 s{S_T0}, s{S_ODD}, 1
    s_not_b32 s{S_T1}, s{S_T0}
    v_mov_b32 v24, s{S_T0}
    v_cndmask_b32 v{V_M0}, -1, v24, vcc
    v_mov_b32 v24, s{S_T1}
    v_cndmask_b32 v{V_M1}, -1, v24, vcc
    v_and_b32 v25, 7, v{L15}
    v_lshlrev_b32 v25, 5, v25
    v_lshl_add_u32 v25, v21, 3, v25
    v_lshl_add_u32 v{V_MK0}, v22, 9, v25
    v_lshl_add_u32 v{V_MK1}, v23, 9, v25
    s_mul_i32 s{S_T2}, s{S_WAVE}, 2560
    s_add_u32 s{S_T2}, s{S_T2}, {T_TR}
    v_lshlrev_b32 v25, 3, v{LN}
    v_lshl_add_u32 v25, v21, 6, v25
    v_add_u32 v{V_TW}, s{S_T2}, v25
    v_and_b32 v25, 3, v{L15}
    v_lshrrev_b32 v26, 1, v25
    v_lshlrev_b32 v25, 7, v25
    v_lshl_add_u32 v25, v26, 6, v25
    v_lshrrev_b32 v26, 2, v{LN}
    v_lshl_add_u32 v25, v26, 3, v25
    v_add_u32 v{V_TRD}, s{S_T2}, v25
    s_lshl_b32 s{S_T2}, s{S_WAVE}, 11
    s_add_u32 s{S_T2}, s{S_T2}, {T_PART}
    v_lshlrev_b32 v25, 9, v{G4}
    v_lshl_add_u32 v25, v{L15}, 4, v25
    v_add_u32 v{V_PW}, s{S_T2}, v25
    s_lshl_b32 s{S_T2}, s{S_WAVE}, 9
    s_add_u32 s{S_T2}, s{S_T2}, {T_PART}
    v_and_b32 v25, 31, v{LN}
    v_lshl_add_u32 v{V_PR}, v25, 4, s{S_T2}
    s_lshl_b32 s{S_T0}, s{S_WAVE}, 1
    v_add_u32 v26, s{S_T0}, v20
    s_and_b32 s85, s{h}, 1
    s_bfe_u32 s86, s{h}, 0x10001
    s_lshr_b32 s{S_T0}, s{h}, 2
    s_mul_i32 s{S_T0}, s{S_T0}, {PS_W}
    s_lshl_b32 s{S_T1}, s86, 10
    s_add_u32 s{S_T1}, s{S_T1}, s{S_T0}
    s_lshl_b32 s{S_T2}, s85, 9
    s_add_u32 s{S_T1}, s{S_T1}, s{S_T2}
    v_lshrrev_b32 v27, 3, v{L15}
    v_lshlrev_b32 v27, 8, v27
    v_lshl_add_u32 v27, v26, 5, v27
    v_and_b32 v28, 1, v{L15}
    v_lshl_add_u32 v27, v28, 4, v27
    v_bfe_u32 v29, v{L15}, 1, 2
    v_lshl_add_u32 v27, v29, 2, v27
    v_add_u32 v27, s{S_T1}, v27
    s_add_u32 s{S_T1}, s{S_T0}, 2048
    s_lshl_b32 s{S_T2}, s86, 9
    s_add_u32 s{S_T1}, s{S_T1}, s{S_T2}
    s_lshl_b32 s{S_T2}, s85, 2
    s_add_u32 s{S_T1}, s{S_T1}, s{S_T2}
    v_bfe_u32 v29, v{L15}, 2, 1
    v_lshlrev_b32 v29, 8, v29
    v_lshl_add_u32 v29, v26, 5, v29
    v_lshl_add_u32 v29, v28, 4, v29
    v_bfe_u32 v30, v{L15}, 1, 1
    v_lshl_add_u32 v29, v30, 3, v29
    v_add_u32 v29, s{S_T1}, v29
    v_mov_b32 v30, {OOB}
    v_cmp_gt_u32 vcc, 32, v{LN}
    v_cndmask_b32 v{V_PA0}, v30, v27, vcc
    v_cndmask_b32 v29, v30, v29, vcc
    v_cmp_gt_u32 vcc, 8, v{L15}
    v_cndmask_b32 v{V_PA1}, v30, v29, vcc
    v_mov_b32 v30, 0xf149f2ca
    v_cndmask_b32 v{V_MASK}, v30, 0, vcc
    s_lshl_b32 s{S_XO}, s{S_WAVE}, 13
    s_add_u32 s{S_XO}, s{S_XO}, {XK_OFF}
    s_lshl_b32 s{S_T0}, s{S_K}, 10
    s_sub_u32 s{S_XO}, s{S_XO}, s{S_T0}
    s_mov_b32 s{S_SLP}, 0
    """)
    stamp_setup(a, diag)

    def xloads():
        for sg in range(2):
            for f in range(4):
                a(f"buffer_load_dwordx4 {vr(XK+16*sg+4*f,4)}, v{V_FA}, {WS}, s{S_XO} offen offset:{f*1024}")
            a(f"s_add_u32 s{S_XO}, s{S_XO}, {4096 if sg == 0 else XK_STEP-4096}")

    def zero():
        for r in range(28):
            a(f"v_mov_b32 v{ACC+r}, 0")
        for r in range(12):
            a(f"v_mov_b32 v{SA+r}, " + (f"v{V_MASK}" if r in (8, 10) else "0"))

    xloads()
    zero()
    a("s_waitcnt vmcnt(0) lgkmcnt(0)")
    chain_mode(a, 20, 21)
    evt(a, 2, diag, 20, 21)
    a("s_barrier")

    acc = lambda j: ACC + 4 * j
    a.label("L_T_step")
    NB = OPT["nb"]
    own = [smf(acc(j), MF + 4 * u, W(j, u)) for u in range(2) for j in range(7)]
    rd = [f"ds_read_b128 {vr(MF+4*u,4)}, v{V_FA+u}" for u in range(2, 7)]
    wr = [f"ds_write_b64 v{V_FA+u}, {vr(MF+4*u+2*k,2)} offset:{8*k}" for u in range(2) for k in range(2)]
    L0, L1 = mem_polls()
    if OPT["lightT"]:
        light(a, L0, MF, "L_T_light")
    a(f"s_mov_b32 s{S_CNT}, s{S_LIM}")
    a(L0); a(L1)
    a.label("L_T_pollA")
    a(L0); a(L1)
    a("s_waitcnt vmcnt(3)")
    chk4(a, MF, "polled_T")
    retry(a, "L_T_pollA")
    a.label("polled_T")
    stamp(a, 0, diag)
    a(own[0]); a(wr[0]); a(own[1]); a(wr[1])
    a("s_waitcnt vmcnt(2)")
    a(own[2])
    chk4(a, MF + 4, "L_T_f1ok")
    a(f"s_mov_b32 s{S_CNT}, s{S_LIM}")
    a.label("L_T_pollB")
    a(L1)
    a("s_waitcnt vmcnt(1)")
    chk4(a, MF + 4, "L_T_f1ok")
    retry(a, "L_T_pollB")
    a.label("L_T_f1ok")
    wr = wr[2:]
    for k in range(3, 14):
        if k == NB:
            a("s_waitcnt lgkmcnt(0)")
            a("s_barrier")
            a(rd.pop(0))
        a(own[k])
        if wr:
            a(wr.pop(0))
        if k >= NB and rd:
            a(rd.pop(0))
    for s_ in rd:
        a(s_)

    MK0, MK1 = MF, acc(2)
    TB0, TB1 = acc(0), acc(1)

    def mkreads(dst, addr):
        return [f"ds_read_b64 {vr(dst+4*b+2*d,2)}, v{addr} offset:{256*b+16*d}" for b in range(2) for d in range(2)]

    def add2(A_):
        return [f"v_add_f32 v{A_}, v{A_}, v{A_+1}", f"v_add_f32 v{A_+2}, v{A_+2}, v{A_+3}"]

    def cvt(p):
        A_, B_ = acc(2 * p), acc(2 * p + 1)
        return [f"v_cvt_pk_bf16_f32 v{B_+3}, v{A_+2}, v{B_+2}", f"v_cvt_pk_bf16_f32 v{B_+2}, v{A_}, v{B_}"]

    def trans(p, wreg, dst):
        return [f"ds_write_b64 v{V_TW}, {vr(wreg,2)} offset:{640*p}", f"ds_read_b64_tr_b16 {vr(dst,2)}, v{V_TRD} offset:{640*p}"]

    def sstep(sg, tb, mk):
        B = [vr(XK + 16 * sg, 8), vr(XK + 16 * sg + 8, 8), vr(mk, 8)]
        return [smf(SA + 4 * t, tb, B[t]) for t in range(3)]

    pre = {n: [] for n in range(35)}
    side = {n: [] for n in range(35)}
    for u in range(5):
        pre[u].append(f"s_waitcnt lgkmcnt({4-u})")
    mk = mkreads(MK0, V_MK0)
    side[5] += ["s_waitcnt vmcnt(0)", mk[0]]
    side[6] += [mk[1]]; side[7] += [mk[2]]; side[10] += [mk[3]]
    for p in range(3):
        n0 = 10 * p
        x = add2(acc(2 * p)); side[n0 + 8].append(x[0]); side[n0 + 9].append(x[1])
        x = add2(acc(2 * p + 1)); side[n0 + 13].append(x[0]); side[n0 + 14].append(x[1])
        if p < 2:
            x = cvt(p); side[n0 + 15].append(x[0]); side[n0 + 16].append(x[1])
            x = trans(p, acc(2 * p + 1) + 2, TB0 + 2 * p); side[n0 + 17].append(x[0]); side[n0 + 18].append(x[1])
    mk = mkreads(MK1, V_MK1)
    side[29] += mk[0:2]
    side[30] += mk[2:4]
    n = 0
    for jj in range(7):
        for u in range(2, 7):
            for s_ in pre[n]:
                a(s_)
            a(smf(acc(jj), MF + 4 * u, W(jj, u)))
            for s_ in side[n]:
                a(s_)
            n += 1
    for s_ in cvt(2) + trans(2, acc(5) + 2, TB1):
        a(s_)
    s0 = sstep(0, TB0, MK0)
    L = acc(6)
    for s_ in add2(L):
        a(s_)
    a(f"v_cvt_pk_bf16_f32 v{L+3}, v{L+2}, v{L+2}")
    a(f"v_cvt_pk_bf16_f32 v{L+2}, v{L}, v{L}")
    for s_ in trans(3, L + 2, TB1 + 2):
        a(s_)
    a("s_waitcnt lgkmcnt(4)")
    for k, s_ in enumerate(s0):
        a(s_)
        for r in range(3 * k, min(3 * k + 3, 8)):
            a(f"v_and_b32 v{MK1+r}, v{MK1+r}, v{V_M0+(r&1)}")
    a("s_waitcnt lgkmcnt(0)")
    for s_ in sstep(1, TB1, MK1):
        a(s_)
    stamp(a, 1, diag)
    Q0, Q1 = acc(4), acc(5)
    for t in range(3):
        a(f"v_add_f32 v{Q0+t}, v{SA+4*t}, v{SA+4*t+1}")
        a(f"v_add_f32 v{Q1+t}, v{SA+4*t+2}, v{SA+4*t+3}")
    a(f"ds_write_b96 v{V_PW}, {vr(Q0,3)}")
    a(f"ds_write_b96 v{V_PW}, {vr(Q1,3)} offset:256")
    a("s_waitcnt lgkmcnt(0)")
    a("s_barrier")
    R = ACC
    for w in range(4):
        a(f"ds_read_b128 {vr(R+4*w,4)}, v{V_PR} offset:{2048*w}")
    a(f"""
    s_waitcnt lgkmcnt(2)
    v_pk_add_f32 {vr(R,2)}, {vr(R,2)}, {vr(R+4,2)}
    v_add_f32 v{R+2}, v{R+2}, v{R+6}
    s_waitcnt lgkmcnt(0)
    v_pk_add_f32 {vr(R+8,2)}, {vr(R+8,2)}, {vr(R+12,2)}
    v_add_f32 v{R+10}, v{R+10}, v{R+14}
    v_pk_add_f32 {vr(R,2)}, {vr(R,2)}, {vr(R+8,2)}
    v_add_f32 v{R+2}, v{R+2}, v{R+10}
    v_max3_f32 v{R+4}, v{R}, v{R+1}, v{R+2}
    """)
    for d in DPPS:
        a(f"v_max_f32_dpp v{R+4}, v{R+4}, v{R+4} {d} row_mask:0xf bank_mask:0xf")
    for r in range(3):
        a(f"v_sub_f32 v{R+r}, v{R+r}, v{R+4}")
    for r in range(3):
        a(f"v_exp_f32 v{R+r}, v{R+r}")
    a(f"v_add_f32 v{R+5}, v{R}, v{R+1}")
    a(f"v_add_f32 v{R+5}, v{R+5}, v{R+2}")
    for d in DPPS:
        a(f"v_add_f32_dpp v{R+5}, v{R+5}, v{R+5} {d} row_mask:0xf bank_mask:0xf")
    a(f"v_rcp_f32 v{R+5}, v{R+5}")
    a(f"""
    v_mul_f32 v{R}, v{R}, v{R+5}
    v_mul_f32 v{R+1}, v{R+1}, v{R+5}
    v_cvt_pk_bf16_f32 v{R+6}, v{R}, v{R+1}
    buffer_store_dword v{R+6}, v{V_PA0}, {WS}, s{S_PSOFF} offen
    v_mul_f32 v{R+2}, v{R+2}, v{R+5}
    v_cvt_pk_bf16_f32 v{R+7}, v{R+2}, v{R+2}
    buffer_store_dword v{R+7}, v{V_PA1}, {WS}, s{S_PSOFF} offen
    s_cmp_eq_u32 s{S_FB}, 0
    s_cbranch_scc1 L_T_nofb
    buffer_store_dword v{R+6}, v{V_PA0}, {WS}, s{S_PSOFF} offen sc1
    buffer_store_dword v{R+7}, v{V_PA1}, {WS}, s{S_PSOFF} offen sc1
    L_T_nofb:
    """)
    stamp(a, 2, diag)
    if OPT["lat"]:
        a("s_waitcnt vmcnt(0) lgkmcnt(0)")
        stamp(a, 3, diag)
    if OPT["clk"] and diag:
        a(f"s_memtime s[{S_STP+6}:{S_STP+7}]")
        a(f"s_memrealtime s[{S_STP+8}:{S_STP+9}]")
    if not OPT["nox"]:
        xloads()
    if OPT["lat"]:
        a("s_waitcnt vmcnt(0)")
        stamp(a, 4, diag)
    stamp_store(a, 5, diag, R + 8, R + 9)
    zero()
    if OPT["sleepT"]:
        a(f"s_sleep {OPT['sleepT']}")
    if OPT["adapt"]:
        adapt(a, S_SLP, S_SL2)
        backoff(a, S_SLP)
    a(f"""
    s_add_u32 s{S_MEMOFF}, s{S_MEMOFF}, {MEMS_STEP}
    s_add_u32 s{S_PSOFF}, s{S_PSOFF}, {PS_STEP}
    s_add_u32 s{S_STEP}, s{S_STEP}, 1
    s_cmp_lt_u32 s{S_STEP}, 63
    s_cbranch_scc1 L_T_step
    s_waitcnt vmcnt(0)
    """)
    evt(a, 3, diag, 20, 21)
    a("s_endpgm")


def gen_V(a, diag=False):
    VXB, VPB, PF, WLB = 80, 112, 128, 140
    YA = ACC
    V_L16, V_PQ, V_PW, V_PR, V_MS, V_MN, V_WLA, V_FL = range(9, 17)
    NREG = 56 - NWL

    def order(un, u):
        return (u * 8 + un) if u < 2 else 16 + un * 5 + (u - 2)

    def ldsk(o):
        n = o - 16
        return n // 3 - 1 if (n >= 5 and n % 3 == 2) else None

    def Wreg(o):
        r = o - sum(1 for q in range(o) if ldsk(q) is not None)
        assert r < NREG
        return ar(8 * r, 8) if r < 32 else vr(160 + 8 * (r - 32), 8)

    a.label("L_role_V")
    a.c("V role: column slice c = S_ROLE-16; unit un = 2*hl + t")
    evt(a, 1, diag, 20, 21)
    common_setup(a)
    S_C = 80
    a(f"""
    s_sub_u32 s{S_C}, s{S_ROLE}, 16
    v_lshlrev_b32 v{V_L16}, 4, v{LN}
    s_mul_i32 s{S_XB}, s{S_WAVE}, {NWL*2048}
    s_add_u32 s{S_XB}, s{S_XB}, {V_WL}
    v_add_u32 v{V_WLA}, s{S_XB}, v{V_L16}
    s_lshl_b32 s{S_T3}, s{S_WAVE}, 2
    s_mul_i32 s{S_T3}, s{S_T3}, {28*14*FR}
    s_mul_i32 s{S_T0}, s{S_C}, {2*14*FR}
    s_add_u32 s{S_T3}, s{S_T3}, s{S_T0}
    s_add_u32 s{S_T3}, s{S_T3}, {WB_OFF}
    """)
    for un in range(8):
        hl, t = un >> 1, un & 1
        a(f"s_add_u32 s{S_T0}, s{S_T3}, {(hl*28+t)*14*FR}")
        for u in range(7):
            o = order(un, u)
            a(f"s_lshl_b32 s{S_T1}, s{S_K+u}, 11")
            a(f"s_add_u32 s{S_T1}, s{S_T1}, s{S_T0}")
            if ldsk(o) is None:
                w = Wreg(o)
                k, base = w[0], int(w[2:].split(":")[0])
                a(f"buffer_load_dwordx4 {k}[{base}:{base+3}], v{V_L16}, {WS}, s{S_T1} offen")
                a(f"buffer_load_dwordx4 {k}[{base+4}:{base+7}], v{V_L16}, {WS}, s{S_T1} offen offset:1024")
            else:
                a(f"s_add_u32 m0, s{S_XB}, {ldsk(o)*2048}")
                a(f"buffer_load_dwordx4 v{V_L16}, {WS}, s{S_T1} offen lds")
                a(f"buffer_load_dwordx4 v{V_L16}, {WS}, s{S_T1} offen offset:1024 lds")
    a(f"""
    s_mul_i32 s{S_T0}, s{S_WAVE}, {PS_W}
    v_add_u32 v{V_PQ}, s{S_T0}, v{V_L16}
    s_lshl_b32 s{S_T0}, s{S_WAVE}, 10
    s_add_u32 s{S_T0}, s{S_T0}, {V_PART}
    v_add_u32 v{V_PW}, s{S_T0}, v{V_L16}
    v_and_b32 v20, 1, v{G4}
    v_lshlrev_b32 v21, 4, v{L15}
    v_lshl_add_u32 v21, v20, 3, v21
    s_lshl_b32 s{S_T0}, s{S_WAVE}, 8
    s_add_u32 s{S_T0}, s{S_T0}, {V_PART}
    v_add_u32 v{V_PR}, s{S_T0}, v21
    s_lshl_b32 s{S_T0}, s{S_WAVE}, 1
    v_add_u32 v22, s{S_T0}, v20
    v_lshrrev_b32 v23, 3, v{L15}
    v_lshlrev_b32 v23, 8, v23
    v_lshl_add_u32 v23, v22, 5, v23
    v_and_b32 v24, 1, v{L15}
    v_lshl_add_u32 v23, v24, 4, v23
    v_bfe_u32 v24, v{L15}, 1, 2
    v_lshl_add_u32 v23, v24, 2, v23
    s_lshl_b32 s{S_T0}, s{S_C}, 9
    v_add_u32 v23, s{S_T0}, v23
    v_mul_u32_u24 v24, 896, v22
    v_lshl_add_u32 v24, v{L15}, 2, v24
    s_lshl_b32 s{S_T0}, s{S_C}, 6
    v_add_u32 v24, s{S_T0}, v24
    v_mov_b32 v25, {OOB}
    v_cmp_gt_u32 vcc, 32, v{LN}
    v_cndmask_b32 v{V_MS}, v25, v23, vcc
    v_cndmask_b32 v{V_MN}, v25, v24, vcc
    v_and_b32 v24, 3, v{LN}
    s_lshl_b32 s{S_T0}, s{S_WAVE}, 2
    v_add_u32 v24, s{S_T0}, v24
    v_mul_u32_u24 v24, 14, v24
    v_add_u32 v24, s{S_C}, v24
    v_lshlrev_b32 v24, 6, v24
    v_add_u32 v{V_FL}, {PROG_OFF}, v24
    s_mov_b32 s{S_RDY}, 0
    s_mov_b32 s{S_SLP}, 0
    s_mov_b32 s{S_MN}, {0}
    s_lshl_b32 s{S_T0}, s{S_WAVE}, 2
    s_mul_i32 s{S_T0}, s{S_T0}, {28*FR}
    s_lshl_b32 s{S_T1}, s{S_C}, 11
    s_add_u32 s{S_T0}, s{S_T0}, s{S_T1}
    s_add_u32 s{S_XO}, s{S_T0}, {VX_OFF}
    """)
    stamp_setup(a, diag)
    for r in range(32):
        a(f"v_mov_b32 v{ACC+r}, 0")
    a("s_waitcnt vmcnt(0) lgkmcnt(0)")
    chain_mode(a, 20, 21)
    evt(a, 2, diag, 20, 21)
    a("s_barrier")

    acc = lambda un: ACC + 4 * un
    a.label("L_V_step")
    poll(a, mem_polls(), range(MF, MF + 8), depth2=False, sleep=OPT["sleepVm"])
    stamp(a, 0, diag)
    a(f"""
    s_cmp_lt_u32 s{S_STEP}, s{S_RDY}
    s_cbranch_scc1 L_V_vxok
    s_mov_b32 s{S_CNT}, s{S_LIM}
    L_V_vxpoll:
    buffer_load_dwordx4 {vr(PF,4)}, v{V_FL}, {WS}, 0 offen sc1
    s_waitcnt vmcnt(0)
    v_min3_u32 v{V_TMP}, v{PF}, v{PF+1}, v{PF+2}
    v_min_u32 v{V_TMP}, v{V_TMP}, v{PF+3}
    v_readlane_b32 s{S_T0}, v{V_TMP}, 0
    v_readlane_b32 s{S_T1}, v{V_TMP}, 1
    v_readlane_b32 s{S_T2}, v{V_TMP}, 2
    v_readlane_b32 s{S_T3}, v{V_TMP}, 3
    s_min_u32 s{S_T0}, s{S_T0}, s{S_T1}
    s_min_u32 s{S_T2}, s{S_T2}, s{S_T3}
    s_min_u32 s{S_RDY}, s{S_T0}, s{S_T2}
    s_lshl_b32 s{S_RDY}, s{S_RDY}, 2
    s_cmp_lt_u32 s{S_STEP}, s{S_RDY}
    s_cbranch_scc1 L_V_vxok
    s_sleep 4
    s_sub_u32 s{S_CNT}, s{S_CNT}, 1
    s_cmp_lg_u32 s{S_CNT}, 0
    s_cbranch_scc1 L_V_vxpoll
    s_mov_b32 s{S_LIM}, 1
    L_V_vxok:
    """)
    vx = []
    for hl in range(4):
        vx.append([f"s_add_u32 s{S_T0}, s{S_XO}, {hl*28*FR}",
                   f"buffer_load_dwordx4 {vr(VXB+4*hl,4)}, v{V_L16}, {WS}, s{S_T0} offen sc1"])
        vx.append([f"buffer_load_dwordx4 {vr(VXB+16+4*hl,4)}, v{V_L16}, {WS}, s{S_T0} offen offset:1024 sc1"])
    if OPT["novx"]:
        vx = [["s_nop 0"] for _ in vx]
    own = [smf(acc(un), MF + 4 * u, Wreg(order(un, u))) for u in range(2) for un in range(8)]
    rd = [f"ds_read_b128 {vr(MF+4*u,4)}, v{V_FA+u}" for u in range(2, 7)]
    wr = [f"ds_write_b64 v{V_FA+u}, {vr(MF+4*u+2*k,2)} offset:{8*k}" for u in range(2) for k in range(2)]
    for k in range(16):
        if k == 10:
            a("s_waitcnt lgkmcnt(0)")
            a("s_barrier")
            a(rd.pop(0))
        a(own[k])
        if k < 4:
            a(wr[k])
        elif k < 10:
            for s_ in vx.pop(0):
                a(s_)
        elif rd:
            a(rd.pop(0))
        else:
            for s_ in vx.pop(0):
                a(s_)
    a(f"s_add_u32 s{S_XO}, s{S_XO}, {VX_STEP}")

    def wlread(k):
        b = WLB + 8 * (k & 1)
        return [f"ds_read_b128 {vr(b,4)}, v{V_WLA} offset:{k*2048}", f"ds_read_b128 {vr(b+4,4)}, v{V_WLA} offset:{k*2048+1024}"]

    def cvt(un):
        hl, t = un >> 1, un & 1
        A_ = acc(un)
        return [f"v_cvt_pk_bf16_f32 v{VPB+8*t+2*hl}, v{A_}, v{A_+1}", f"v_cvt_pk_bf16_f32 v{VPB+8*t+2*hl+1}, v{A_+2}, v{A_+3}"]

    side = {n: [] for n in range(41)}
    pre = {n: [] for n in range(40)}
    x = wlread(0) + wlread(1)
    for k in range(4):
        side[k].append(x[k])
    for u in range(5):
        pre[u].append(f"s_waitcnt lgkmcnt({4 if u < 4 else 4})" if u >= 1 else "s_waitcnt lgkmcnt(4)")
    for un in range(7):
        x = cvt(un)
        side[5 * un + 9].append(x[0]); side[5 * un + 10].append(x[1])
    for r in range(8):
        side[21 + 2 * r].append(f"v_mov_b32 v{YA+r}, 0")
    n = 0
    for un in range(8):
        for u in range(2, 7):
            o = order(un, u)
            for s_ in pre[n]:
                a(s_)
            if ldsk(o) is None:
                a(smf(acc(un), MF + 4 * u, Wreg(o)))
            else:
                k = ldsk(o)
                a(f"s_waitcnt lgkmcnt({2 if k + 1 < NWL else 0})")
                a(smf(acc(un), MF + 4 * u, vr(WLB + 8 * (k & 1), 8)))
                if k + 2 < NWL:
                    x = wlread(k + 2)
                    side[n].insert(0, x[0]); side[n + 1].insert(0, x[1])
            for s_ in side[n]:
                a(s_)
            n += 1
    for s_ in side[40] + cvt(7):
        a(s_)
    stamp(a, 1, diag)
    if OPT["sleepV"]:
        a(f"s_sleep {OPT['sleepV']}")
    if OPT["adapt"]:
        backoff(a, S_SLP)
    P = [f"buffer_load_dwordx4 {vr(PF+4*q,4)}, v{V_PQ}, {WS}, s{S_PSOFF} offen offset:{1024*q} sc1" for q in range(3)]
    ys = [[smf(YA + 4 * t, PF + 4 * q, vr(VXB + 16 * t + 8 * q, 8) if q < 2 else vr(VPB + 8 * t, 8)) for t in range(2)] for q in range(3)]
    if OPT["lightV"]:
        light(a, P[2], PF + 8, "L_V_light")
    a(f"s_mov_b32 s{S_CNT}, s{S_LIM}")
    for l in P:
        a(l)
    a.label("L_V_pollA")
    for l in P:
        a(l)
    a("s_waitcnt vmcnt(5)")
    chk4(a, PF, "polled_V")
    retry(a, "L_V_pollA")
    a.label("polled_V")
    a(ys[0][0]); a(ys[0][1])
    a("s_waitcnt vmcnt(4)")
    chk4(a, PF + 4, "L_V_c0")
    a(f"s_mov_b32 s{S_CNT}, s{S_LIM}")
    a.label("L_V_pollB")
    a(P[1]); a(P[2])
    a("s_waitcnt vmcnt(3)")
    chk4(a, PF + 4, "L_V_cb")
    retry(a, "L_V_pollB")
    a.label("L_V_cb")
    a(ys[1][0]); a(ys[1][1])
    a("s_waitcnt vmcnt(2)")
    a("s_branch L_V_cchk")
    a.label("L_V_c0")
    a(ys[1][0]); a(ys[1][1])
    a("s_waitcnt vmcnt(3)")
    a.label("L_V_cchk")
    chk4(a, PF + 8, "L_V_pok")
    a(f"s_mov_b32 s{S_CNT}, s{S_LIM}")
    a.label("L_V_pollC")
    a(P[2])
    a("s_waitcnt vmcnt(1)")
    chk4(a, PF + 8, "L_V_pok")
    retry(a, "L_V_pollC")
    a.label("L_V_pok")
    a(ys[2][0]); a(ys[2][1])
    stamp(a, 2, diag)
    Y = ACC + 8
    a(f"""
    s_add_u32 s{S_MEMOFF}, s{S_MEMOFF}, {MEMS_STEP}
    v_add_f32 v{Y}, v{YA}, v{YA+1}
    v_add_f32 v{Y+2}, v{YA+2}, v{YA+3}
    v_add_f32 v{Y+1}, v{YA+4}, v{YA+5}
    v_add_f32 v{Y+3}, v{YA+6}, v{YA+7}
    ds_write_b128 v{V_PW}, {vr(Y,4)}
    s_waitcnt lgkmcnt(0)
    s_barrier
    """)
    R = ACC + 12
    for w in range(4):
        a(f"ds_read_b64 {vr(R+2*w,2)}, v{V_PR} offset:{1024*w}")
    a(f"""
    s_waitcnt lgkmcnt(2)
    v_pk_add_f32 {vr(R,2)}, {vr(R,2)}, {vr(R+2,2)}
    s_waitcnt lgkmcnt(0)
    v_pk_add_f32 {vr(R+4,2)}, {vr(R+4,2)}, {vr(R+6,2)}
    v_pk_add_f32 {vr(R,2)}, {vr(R,2)}, {vr(R+4,2)}
    v_cvt_pk_bf16_f32 v{R+2}, v{R}, v{R+1}
    buffer_store_dword v{R+2}, v{V_MS}, {WS}, s{S_MEMOFF} offen
    {"" if OPT["nomn"] else f"buffer_store_dword v{R+2}, v{V_MN}, {WS}, s{S_MN} offen sc1"}
    s_cmp_eq_u32 s{S_FB}, 0
    s_cbranch_scc1 L_V_nofb
    buffer_store_dword v{R+2}, v{V_MS}, {WS}, s{S_MEMOFF} offen sc1
    L_V_nofb:
    """)
    stamp(a, 3, diag)
    if OPT["adapt"]:
        adapt(a, S_SLP, S_CNT)
    if OPT["vdelay"]:
        a(f"s_sleep {OPT['vdelay']}")
    stamp_store(a, 6, diag, R + 4, R + 5)
    for r in range(32):
        if ACC + r != R + 2:
            a(f"v_mov_b32 v{ACC+r}, 0")
    a(f"v_mov_b32 v{R+2}, 0")
    a(f"""
    s_add_u32 s{S_MN}, s{S_MN}, 0
    s_add_u32 s{S_PSOFF}, s{S_PSOFF}, {PS_STEP}
    s_add_u32 s{S_STEP}, s{S_STEP}, 1
    s_cmp_lt_u32 s{S_STEP}, 63
    s_cbranch_scc1 L_V_step
    s_waitcnt vmcnt(0)
    """)
    evt(a, 3, diag, 20, 21)
    a("s_endpgm")


def gen_warm(a):
    LEAD = OPT["lead"]
    a.label("L_role_W")
    a(f"""
    v_and_b32 v{LN}, 63, v0
    s_mov_b32 s{S_LIM}, {SPIN_LIMIT}
    s_mov_b32 s{S_MEMOFF}, {MEMS_OFF+MEMS_STEP}
    s_cmp_eq_u32 s{S_ROLE}, 31
    s_cbranch_scc1 L_W_warm
    s_lshl_b32 s{S_T0}, s{S_WAVE}, 11
    s_min_u32 s{S_T0}, s{S_T0}, 5120
    v_lshl_add_u32 v6, v{LN}, 4, s{S_T0}
    s_mov_b32 s{S_STEP}, 1
    L_R_step:
    s_mov_b32 s{S_CNT}, s{S_LIM}
    L_R_poll:
    buffer_load_dwordx4 v[20:23], v6, {WS}, s{S_MEMOFF} offen sc1
    buffer_load_dwordx4 v[24:27], v6, {WS}, s{S_MEMOFF} offen offset:1024 sc1
    s_waitcnt vmcnt(0)
    v_max3_u32 v5, v20, v21, v22
    v_max3_u32 v5, v5, v23, v24
    v_max3_u32 v5, v5, v25, v26
    v_max_u32 v5, v5, v27
    v_cmp_eq_u32 vcc, -1, v5
    s_cbranch_vccz L_R_go
    s_sleep 2
    s_sub_u32 s{S_CNT}, s{S_CNT}, 1
    s_cmp_lg_u32 s{S_CNT}, 0
    s_cbranch_scc1 L_R_poll
    s_mov_b32 s{S_LIM}, 1
    L_R_go:
    s_add_u32 s{S_T0}, s{S_MEMOFF}, {MEMR_OFF-MEMS_OFF}
    buffer_store_dwordx4 v[20:23], v6, {WS}, s{S_T0} offen sc1
    buffer_store_dwordx4 v[24:27], v6, {WS}, s{S_T0} offen offset:1024 sc1
    s_add_u32 s{S_MEMOFF}, s{S_MEMOFF}, {MEMS_STEP}
    s_sleep {OPT["rsleep"]}
    s_add_u32 s{S_STEP}, s{S_STEP}, 1
    s_cmp_lt_u32 s{S_STEP}, 64
    s_cbranch_scc1 L_R_step
    s_waitcnt vmcnt(0)
    s_endpgm
    L_W_warm:
    v_lshlrev_b32 v2, 7, v{LN}
    v_mov_b32 v9, 0
    s_lshl_b32 s80, s{S_WAVE}, 13
    s_add_u32 s80, s80, {XK_OFF}
    s_sub_u32 s{S_T0}, s{S_WAVE}, 1
    s_mul_i32 s81, s{S_T0}, 6144
    s_add_u32 s81, s81, {PS_OFF}
    s_mov_b32 s82, {PS_STEP}
    s_cmp_eq_u32 s{S_WAVE}, 0
    s_cselect_b32 s81, {MEMS_OFF}, s81
    s_cselect_b32 s82, {MEMS_STEP}, s82
    s_cmp_eq_u32 s{S_WAVE}, 3
    s_cselect_b32 s81, {OOB}, s81
    s_cselect_b32 s82, 0, s82
    s_mov_b32 s{S_STEP}, 0
    L_W_step:
    s_cmp_lt_u32 s{S_STEP}, {LEAD+1}
    s_cbranch_scc1 L_W_paced
    s_mov_b32 s{S_CNT}, s{S_LIM}
    L_W_pace:
    buffer_load_dword v5, v9, {WS}, s{S_MEMOFF} offen sc1
    s_waitcnt vmcnt(0)
    v_cmp_eq_u32 vcc, -1, v5
    s_cbranch_vccz L_W_paced2
    s_sleep 4
    s_sub_u32 s{S_CNT}, s{S_CNT}, 1
    s_cmp_lg_u32 s{S_CNT}, 0
    s_cbranch_scc1 L_W_pace
    s_mov_b32 s{S_LIM}, 1
    L_W_paced2:
    s_add_u32 s{S_MEMOFF}, s{S_MEMOFF}, {MEMS_STEP}
    L_W_paced:
    buffer_load_dword v8, v2, {WS}, s80 offen
    buffer_load_dword v10, v2, {WS}, s81 offen sc1
    s_add_u32 s80, s80, {XK_STEP}
    s_add_u32 s81, s81, s82
    s_add_u32 s{S_STEP}, s{S_STEP}, 1
    s_cmp_lt_u32 s{S_STEP}, 64
    s_cbranch_scc1 L_W_step
    s_waitcnt vmcnt(0)
    s_endpgm
    """)


CNT_OFF = PROG_OFF + 224 * 64


def wait_all(a):
    top, done = a.newlabel("wa"), a.newlabel("wad")
    a(f"""
    v_and_b32 v4, 15, v0
    v_lshlrev_b32 v4, 7, v4
    s_mov_b32 s{S_CNT}, {SPIN_LIMIT}
    s_mov_b32 s{S_T1}, {CNT_OFF}
    {top}:
    buffer_load_dword v5, v4, {WS}, s{S_T1} offen sc1
    s_waitcnt vmcnt(0)
    s_mov_b32 s{S_T0}, 0
    """)
    for x in range(16):
        a(f"v_readlane_b32 s{S_CNTS+x}, v5, {x}")
    for x in range(16):
        a(f"s_add_u32 s{S_T0}, s{S_T0}, s{S_CNTS+x}")
    a(f"""
    s_cmp_ge_u32 s{S_T0}, 256
    s_cbranch_scc1 {done}
    s_sleep 2
    s_sub_u32 s{S_CNT}, s{S_CNT}, 1
    s_cmp_lg_u32 s{S_CNT}, 0
    s_cbranch_scc1 {top}
    {done}:
    """)


def chain_mode(a, t0, t1):
    top, done = a.newlabel("cm"), a.newlabel("cmd")
    a(f"""
    v_and_b32 v{t0}, 15, v{LN}
    v_lshlrev_b32 v{t0}, 7, v{t0}
    s_mov_b32 s{S_CNT}, {SPIN_LIMIT}
    s_mov_b32 s{S_T1}, {CNT_OFF}
    {top}:
    buffer_load_dword v{t1}, v{t0}, {WS}, s{S_T1} offen sc1
    s_waitcnt vmcnt(0)
    v_readlane_b32 s{S_T0}, v{t1}, 0
    s_mov_b32 s{S_FB}, 0
    s_cmp_ge_u32 s{S_T0}, {32 if NSLOT == 32 else 9999}
    s_cbranch_scc1 {done}
    s_mov_b32 s{S_FB}, 1
    """)
    for x in range(1, 16):
        a(f"v_readlane_b32 s{S_T2}, v{t1}, {x}")
        a(f"s_add_u32 s{S_T0}, s{S_T0}, s{S_T2}")
    a(f"""
    s_cmp_ge_u32 s{S_T0}, 256
    s_cbranch_scc1 {done}
    s_sleep 2
    s_sub_u32 s{S_CNT}, s{S_CNT}, 1
    s_cmp_lg_u32 s{S_CNT}, 0
    s_cbranch_scc1 {top}
    {done}:
    """)


NSLOT = 32


def gen_main_prologue(a, force_fb=False, diag=False):
    global NSLOT
    NSLOT = 13 if force_fb else 32
    a(f"""
    s_cmp_ge_u32 s2, 256
    s_cbranch_scc1 L_exit
    s_memrealtime s[90:91]
    s_load_dwordx2 s[{S_X}:{S_X+1}], s[0:1], 0
    s_load_dwordx4 s[{S_OUT}:{S_OUT+3}], s[0:1], 104
    s_load_dwordx2 s[{S_WS}:{S_WS+1}], s[0:1], 120
    v_lshrrev_b32 v1, 6, v0
    s_getreg_b32 s{S_T3}, hwreg(HW_REG_XCC_ID)
    v_readfirstlane_b32 s{S_WAVE}, v1
    s_and_b32 s{S_T3}, s{S_T3}, 15
    s_waitcnt lgkmcnt(0)
    s_mov_b32 s{SRD_WS}, s{S_WS}
    s_mov_b32 s{SRD_WS+1}, s{S_WS+1}
    s_mov_b32 s{SRD_WS+2}, 0x10000000
    s_mov_b32 s{SRD_WS+3}, 0x20000
    s_mov_b32 s{SRD_X}, s{S_X}
    s_mov_b32 s{SRD_X+1}, s{S_X+1}
    s_mov_b32 s{SRD_X+2}, {2048*896}
    s_mov_b32 s{SRD_X+3}, 0x20000
    s_mov_b32 s{SRD_DBG}, s{S_DBG}
    s_mov_b32 s{SRD_DBG+1}, s{S_DBG+1}
    s_mov_b32 s{SRD_DBG+2}, 256
    s_mov_b32 s{SRD_DBG+3}, 0x20000
    s_cmp_lg_u32 s{S_WAVE}, 0
    s_cbranch_scc1 L_elect_wait
    s_lshl_b32 s{S_T0}, s{S_T3}, 7
    v_mov_b32 v2, s{S_T0}
    v_mov_b32 v3, 1
    s_mov_b32 s{S_T1}, {CNT_OFF}
    s_mov_b64 exec, 1
    buffer_atomic_add v3, v2, {WS}, s{S_T1} offen sc0 sc1
    s_mov_b64 exec, -1
    s_waitcnt vmcnt(0)
    v_readfirstlane_b32 s{S_T2}, v3
    s_lshl_b32 s{S_ROLE}, s{S_T3}, 5
    s_add_u32 s{S_ROLE}, s{S_ROLE}, s{S_T2}
    s_cmp_lt_u32 s{S_T2}, {NSLOT}
    s_cselect_b32 s{S_T0}, s{S_T3}, 99
    s_cmp_lt_u32 s{S_T0}, 8
    s_cbranch_scc1 L_elect_done
    """)
    wait_all(a)
    a(f"""
    s_sub_u32 s{S_T1}, s{S_T2}, {NSLOT}
    s_cmp_lt_u32 s{S_T3}, 8
    s_cselect_b32 s{S_T1}, s{S_T1}, s{S_T2}
    """)
    for x in range(16):
        if x < 8:
            a(f"s_sub_u32 s{S_T0}, s{S_CNTS+x}, {NSLOT}")
            a(f"s_max_i32 s{S_T0}, s{S_T0}, 0")
        else:
            a(f"s_mov_b32 s{S_T0}, s{S_CNTS+x}")
        a(f"s_cmp_lt_u32 {x}, s{S_T3}")
        a(f"s_cselect_b32 s{S_T0}, s{S_T0}, 0")
        a(f"s_add_u32 s{S_T1}, s{S_T1}, s{S_T0}")
    a(f"s_mov_b32 s{S_ROLE}, 0xfff")
    for x in range(8):
        a(f"""
        s_min_u32 s{S_T0}, s{S_CNTS+x}, {NSLOT}
        s_sub_u32 s{S_T2}, 32, s{S_T0}
        s_add_u32 s{S_T0}, s{S_T0}, s{S_T1}
        s_add_u32 s{S_T0}, s{S_T0}, {32*x}
        s_cmp_lt_u32 s{S_T1}, s{S_T2}
        s_cselect_b32 s{S_ROLE}, s{S_T0}, s{S_ROLE}
        s_sub_u32 s{S_T1}, s{S_T1}, s{S_T2}
        """)
    a(f"""
    L_elect_done:
    s_mov_b32 s{S_FB}, 0
    s_lshl_b32 s{S_T0}, s{S_FB}, 16
    s_or_b32 s{S_T0}, s{S_T0}, s{S_ROLE}
    v_mov_b32 v2, 0
    v_mov_b32 v3, s{S_T0}
    ds_write_b32 v2, v3
    s_waitcnt lgkmcnt(0)
    L_elect_wait:
    s_barrier
    v_mov_b32 v2, 0
    ds_read_b32 v3, v2
    s_waitcnt lgkmcnt(0)
    v_readfirstlane_b32 s{S_T0}, v3
    s_and_b32 s{S_ROLE}, s{S_T0}, 0xffff
    s_lshr_b32 s{S_FB}, s{S_T0}, 16
    s_barrier
    """)
    if diag:
        a(f"""
        s_lshl_b32 s98, s{S_ROLE}, 2
        s_add_u32 s98, s98, s{S_WAVE}
        s_lshl_b32 s98, s98, 5
        s_add_u32 s98, s98, {EVT_OFF}
        v_mov_b32 v2, s90
        v_mov_b32 v3, 0
        s_mov_b64 exec, 1
        buffer_store_dword v2, v3, {WS}, s98 offen
        s_mov_b64 exec, -1
        """)
    a(f"""
    s_cmp_lt_u32 s{S_ROLE}, 16
    s_cbranch_scc1 L_role_T
    s_cmp_lt_u32 s{S_ROLE}, 30
    s_cbranch_scc1 L_role_V
    s_cmp_lt_u32 s{S_ROLE}, 32
    s_cbranch_scc1 L_role_W
    s_cmp_ge_u32 s{S_ROLE}, 256
    s_cbranch_scc1 L_exit
    """)
```

```python
from asmlib import *
from layout import *
import gen_chain as gc
from gen_chain import (SRD_WS, SRD_X, S_WAVE, S_ROLE, S_LIM, S_CNT, S_STEP, S_T0, S_T1, S_T2, S_T3, S_OUT, WS, XS,
                       SPIN_LIMIT, OOB)
from gen_prep import f32hex, srd, LOG2E

S_H, S_C, S_RANK, S_FLG = 34, 35, 36, 37
LN, G, L15, L16, IDX, TMP = 1, 2, 3, 4, 5, 6
NEG = "0xf149f2ca"


def WBr(t, ks, n=4):
    return ar(56 * t + 4 * ks, n)


def WAr(t, ks):
    return ar(112 + 56 * t + 4 * ks, 4)


def flagwait(a, vaddr, vthr, vval, sleep=8):
    top, go = a.newlabel("fw"), a.newlabel("fgo")
    a(f"""
    s_mov_b32 s{S_CNT}, s{S_LIM}
    {top}:
    buffer_load_dword v{vval}, v{vaddr}, {WS}, 0 offen sc1
    s_waitcnt vmcnt(0)
    v_cmp_lt_u32 vcc, v{vthr}, v{vval}
    s_cmp_eq_u64 vcc, -1
    s_cbranch_scc1 {go}
    s_sleep {sleep}
    s_sub_u32 s{S_CNT}, s{S_CNT}, 1
    s_cmp_lg_u32 s{S_CNT}, 0
    s_cbranch_scc1 {top}
    s_mov_b32 s{S_LIM}, 1
    {go}:
    """)


def mempoll(a, dst, soff, sleep=4):
    top, done = a.newlabel("mp"), a.newlabel("mpd")
    a(f"s_mov_b32 s{S_CNT}, s{S_LIM}")
    a(f"s_add_u32 s{S_T3}, s{soff}, 4096")
    a.label(top)
    for u in range(7):
        so = soff if u < 4 else S_T3
        a(f"buffer_load_dwordx4 {vr(dst+4*u,4)}, v{L16}, {WS}, s{so} offen offset:{(u&3)*1024} sc1")
    a("s_waitcnt vmcnt(0)")
    r = list(range(dst, dst + 28))
    a(f"v_max3_u32 v{TMP}, v{r[0]}, v{r[1]}, v{r[2]}")
    r = r[3:]
    while len(r) >= 2:
        a(f"v_max3_u32 v{TMP}, v{TMP}, v{r[0]}, v{r[1]}"); r = r[2:]
    a(f"v_max_u32 v{TMP}, v{TMP}, v{r[0]}")
    a(f"""
    v_cmp_eq_u32 vcc, -1, v{TMP}
    s_cbranch_vccz {done}
    s_sleep {sleep}
    s_sub_u32 s{S_CNT}, s{S_CNT}, 1
    s_cmp_lg_u32 s{S_CNT}, 0
    s_cbranch_scc1 {top}
    s_mov_b32 s{S_LIM}, 1
    {done}:
    """)


def xg_reduce(a, op, v, t):
    a(f"v_mov_b32 v{t}, v{v}")
    a(f"v_permlane16_swap_b32 v{v}, v{t}")
    a(f"{op} v{v}, v{v}, v{t}")
    a(f"v_mov_b32 v{t}, v{v}")
    a(f"v_permlane32_swap_b32 v{v}, v{t}")
    a(f"{op} v{v}, v{v}, v{t}")


def full_reduce(a, op, v, t):
    for d in gc.DPPS:
        a(f"{op}_dpp v{v}, v{v}, v{v} {d} row_mask:0xf bank_mask:0xf")
    xg_reduce(a, op, v, t)


def rbf(a, v):
    a(f"v_cvt_pk_bf16_f32 v{v}, v{v}, v{v}")
    a(f"v_and_b32 v{v}, 0xffff0000, v{v}")


def gen_helper(a, diag=False):
    global DIAG
    DIAG = diag
    a.c("helper: rank = role-32")
    gc.evt(a, 1, diag, 8, 9)
    a(f"""
    s_sub_u32 s{S_RANK}, s{S_ROLE}, 32
    s_mul_i32 s{S_H}, s{S_RANK}, 4682
    s_lshr_b32 s{S_H}, s{S_H}, 16
    s_mul_i32 s{S_T0}, s{S_H}, 14
    s_sub_u32 s{S_C}, s{S_RANK}, s{S_T0}
    s_lshl_b32 s{S_FLG}, s{S_RANK}, 6
    s_add_u32 s{S_FLG}, s{S_FLG}, {PROG_OFF}
    s_mov_b32 s{S_LIM}, {SPIN_LIMIT}
    v_and_b32 v{LN}, 63, v0
    v_lshrrev_b32 v{G}, 4, v{LN}
    v_and_b32 v{L15}, 15, v{LN}
    v_lshlrev_b32 v{L16}, 4, v{LN}
    v_and_b32 v8, 1, v0
    v_cmp_eq_u32 vcc, 0, v8
    v_mov_b32 v8, 0xEEEE
    v_mov_b32 v9, 0x4444
    v_cndmask_b32 v{IDX}, v8, v9, vcc
    s_mul_i32 s{S_T0}, s{S_H}, 28
    s_lshl_b32 s{S_T1}, s{S_C}, 1
    s_add_u32 s{S_T0}, s{S_T0}, s{S_T1}
    s_mul_i32 s{S_T0}, s{S_T0}, {14*FR}
    s_add_u32 s{S_T1}, s{S_T0}, {WB_OFF}
    """)
    XB, AV, AT, OV = 32, 144, 160, 16
    S_XA, S_XB2, S_VO, S_TO = 45, 46, 47, 48
    a(f"""
    s_mul_i32 s{S_XA}, s{S_WAVE}, {28*FR}
    s_add_u32 s{S_XA}, s{S_XA}, {XF_OFF}
    """)

    def xload(ks, mt):
        f = mt * 14 + ks
        return [f"s_add_u32 s{S_T2}, s{S_XA}, {(f & ~3) * FR}",
                f"buffer_load_dwordx4 {vr(XB+8*ks+4*mt,4)}, v{L16}, {WS}, s{S_T2} offen offset:{(f&3)*FR}"]
    for f in range(28):
        a(f"buffer_load_dwordx4 {ar(4*f,4)}, v{L16}, {WS}, s{S_T1} offen offset:{(f&3)*FR}")
        if f & 3 == 3:
            a(f"s_add_u32 s{S_T1}, s{S_T1}, 4096")
    for ks in range(14):
        for mt in range(2):
            for s_ in xload(ks, mt):
                a(s_)
    for f in range(28):
        a(f"buffer_load_dwordx4 {ar(112+4*f,4)}, v{L16}, {WS}, s{S_T0} offen offset:{(f&3)*FR}")
        if f & 3 == 3:
            a(f"s_add_u32 s{S_T0}, s{S_T0}, 4096")
    a(f"""
    s_lshl_b32 s{S_T0}, s{S_WAVE}, 4
    s_add_u32 s{S_T0}, s{S_T0}, s{S_H}
    s_mul_i32 s{S_T0}, s{S_T0}, 14
    s_add_u32 s{S_T0}, s{S_T0}, s{S_C}
    s_lshl_b32 s{S_T0}, s{S_T0}, 11
    s_add_u32 s{S_VO}, s{S_T0}, {VX_OFF}
    s_add_u32 s{S_TO}, s{S_T0}, {TX_OFF}
    s_lshl_b32 s{S_T0}, s{S_WAVE}, 2
    v_mov_b32 v7, s{S_T0}
    s_mov_b32 s{S_STEP}, 0
    s_waitcnt vmcnt(0)
    """)
    gc.evt(a, 2, diag, 8, 9)
    a(f"""
    H_gemm:
    s_add_u32 s{S_XA}, s{S_XA}, {4*28*FR}
    s_cmp_eq_u32 s{S_STEP}, 15
    s_cselect_b32 s{S_XA}, {XF_OFF}, s{S_XA}
    v_mov_b32 v8, s{S_STEP}
    """)
    for ks in range(14):
        a(f"s_waitcnt vmcnt({30 if ks < 13 else 26})")
        z = ks == 0
        for mt in range(2):
            for t in range(2):
                d = AV + 8 * mt + 4 * t
                a(f"v_mfma_f32_16x16x32_bf16 {vr(d,4)}, {vr(XB+8*ks+4*mt,4)}, {WBr(t,ks)}, {'0' if z else vr(d,4)}")
            for t in range(2):
                d = AT + 8 * mt + 4 * t
                a(f"v_mfma_f32_16x16x32_bf16 {vr(d,4)}, {WAr(t,ks)}, {vr(XB+8*ks+4*mt,4)}, {'0' if z else vr(d,4)}")
            for s_ in xload(ks, mt):
                a(s_ if not gc.OPT["g_nold"] else "s_nop 0")
    a("s_mov_b64 exec, 1")
    a(f"buffer_store_dword v8, v7, {WS}, s{S_FLG} offen sc1")
    a("s_mov_b64 exec, -1")
    for t in range(2):
        o = OV + 4 * t
        for mt in range(2):
            d = AV + 8 * mt + 4 * t
            a(f"v_cvt_pk_bf16_f32 v{o+2*mt}, v{d}, v{d+1}")
            a(f"v_cvt_pk_bf16_f32 v{o+2*mt+1}, v{d+2}, v{d+3}")
        a(f"buffer_store_dwordx4 {vr(o,4)}, v{L16}, {WS}, s{S_VO} offen offset:{t*FR}{'' if gc.OPT['g_plain'] else ' sc1'}")
    for mt in range(2):
        o = OV + 8 + 4 * mt
        for t in range(2):
            d = AT + 8 * mt + 4 * t
            a(f"v_cvt_pk_bf16_f32 v{o+2*t}, v{d}, v{d+1}")
            a(f"v_cvt_pk_bf16_f32 v{o+2*t+1}, v{d+2}, v{d+3}")
        a(f"buffer_store_dwordx4 {vr(o,4)}, v{L16}, {WS}, s{S_TO} offen offset:{mt*FR}{'' if gc.OPT['g_plain'] else ' sc1'}")
    a(f"""
    s_add_u32 s{S_VO}, s{S_VO}, {4*VX_STEP}
    s_add_u32 s{S_TO}, s{S_TO}, {4*VX_STEP}
    s_add_u32 s{S_STEP}, s{S_STEP}, 1
    s_cmp_lt_u32 s{S_STEP}, 16
    s_cbranch_scc1 H_gemm
    v_mov_b32 v8, 16
    s_waitcnt vmcnt(0)
    s_mov_b64 exec, 1
    buffer_store_dword v8, v7, {WS}, s{S_FLG} offen sc1
    s_mov_b64 exec, -1
    """)
    gc.evt(a, 3, diag, 8, 9)
    a(f"""
    s_cmp_lt_u32 s{S_RANK}, 28
    s_cbranch_scc0 H_phase2
    """)
    gen_mod(a)
    a.label("H_phase2")
    gc.evt(a, 4, diag, 8, 9)
    a(f"""
    s_cmp_eq_u32 s{S_WAVE}, 0
    s_cbranch_scc1 H_vp
    s_cmp_eq_u32 s{S_WAVE}, 3
    s_cbranch_scc1 H_f2
    """)
    gen_f1(a)
    gen_vp(a)
    gen_f2(a)


def gen_mod(a):
    SG, SU, SD = 48, 52, 56
    S_IDX, S_RM = 60, 61
    a(f"""
    s_load_dwordx4 s[64:67], s[0:1], 72
    s_load_dwordx2 s[68:69], s[0:1], 88
    s_mov_b32 s{S_T0}, {RG_OFF}
    s_mov_b32 s{S_T1}, {RG_OFF+4096}
    """)
    R = 32
    for k in range(8):
        a(f"buffer_load_dwordx4 {vr(R+4*k,4)}, v{L16}, {WS}, s{S_T0 if k < 4 else S_T1} offen offset:{(k&3)*1024}")
    a("s_waitcnt lgkmcnt(0)")
    srd(a, SG, 64, 448 * 3584)
    srd(a, SU, 66, 448 * 3584)
    srd(a, SD, 68, 1792 * 896)
    a("s_waitcnt vmcnt(0)")
    a(f"v_max3_f32 v8, v{R}, v{R+1}, v{R+2}")
    for k in range(3, 31, 2):
        a(f"v_max3_f32 v8, v8, v{R+k}, v{R+k+1}")
    a(f"v_max_f32 v8, v8, v{R+31}")
    full_reduce(a, "v_max_f32", 8, 9)
    a(f"v_lshlrev_b32 v10, 2, v{LN}")
    a(f"v_mov_b32 v11, 0x7fffffff")
    for k in range(31, -1, -1):
        a(f"v_cmp_eq_f32 vcc, v8, v{R+k}")
        a(f"v_add_u32 v12, {256*(k>>2)+(k&3)}, v10")
        a(f"v_cndmask_b32 v11, v11, v12, vcc")
    full_reduce(a, "v_min_u32", 11, 9)
    a(f"""
    v_min_u32 v11, 2047, v11
    v_readfirstlane_b32 s{S_IDX}, v11
    v_readfirstlane_b32 s{S_RM}, v8
    v_lshrrev_b32 v12, 3, v{LN}
    v_and_b32 v13, 7, v{LN}
    v_lshlrev_b32 v14, 1, v12
    v_mul_u32_u24 v15, 3584, v12
    v_lshl_add_u32 v15, v13, 4, v15
    s_mul_i32 s{S_T0}, s{S_IDX}, 896
    s_mul_i32 s{S_T1}, s{S_WAVE}, 224
    s_add_u32 s{S_T0}, s{S_T0}, s{S_T1}
    s_mul_i32 s{S_T1}, s{S_WAVE}, {112*3584}
    s_lshl_b32 s{S_T2}, s{S_RANK}, 7
    s_add_u32 s{S_T1}, s{S_T1}, s{S_T2}
    """)
    XSEL, WG_, WU_, AC = 16, 32, 88, 144
    for i in range(14):
        a(f"buffer_load_ushort v{XSEL+i}, v14, {XS}, s{S_T0} offen offset:{16*i}")
    for i in range(14):
        a(f"buffer_load_dwordx4 {vr(WG_+4*i,4)}, v15, s[{SG}:{SG+3}], s{S_T1} offen")
        a(f"buffer_load_dwordx4 {vr(WU_+4*i,4)}, v15, s[{SU}:{SU+3}], s{S_T1} offen")
        a(f"s_add_u32 s{S_T1}, s{S_T1}, {8*3584}")
    for r in range(16):
        a(f"v_mov_b32 v{AC+r}, 0")
    for i in range(14):
        a(f"s_waitcnt vmcnt({26-2*i})")
        a(f"v_lshlrev_b32 v{XSEL+i}, 16, v{XSEL+i}")
        for m, base in enumerate((WG_, WU_)):
            for q in range(4):
                w = base + 4 * i + q
                a(f"v_lshlrev_b32 v8, 16, v{w}")
                a(f"v_and_b32 v9, 0xffff0000, v{w}")
                a(f"v_fmac_f32 v{AC+8*m+2*q}, v8, v{XSEL+i}")
                a(f"v_fmac_f32 v{AC+8*m+2*q+1}, v9, v{XSEL+i}")
    a(f"""
    s_lshl_b32 s{S_T0}, s{S_WAVE}, 12
    v_lshlrev_b32 v8, 9, v12
    v_lshl_add_u32 v8, v13, 5, v8
    v_add_u32 v8, s{S_T0}, v8
    ds_write_b128 v8, {vr(AC,4)}
    ds_write_b128 v8, {vr(AC+4,4)} offset:16
    ds_write_b128 v8, {vr(AC+8,4)} offset:256
    ds_write_b128 v8, {vr(AC+12,4)} offset:272
    s_lshl_b32 s{S_T0}, s{S_RANK}, 6
    s_lshl_b32 s{S_T1}, s{S_WAVE}, 4
    s_add_u32 s{S_T0}, s{S_T0}, s{S_T1}
    s_mul_i32 s{S_T0}, s{S_T0}, 896
    v_mov_b32 v9, {OOB}
    v_cmp_gt_u32 vcc, 56, v{LN}
    v_cndmask_b32 v9, v9, v{L16}, vcc
    """)
    WD = 32
    for i in range(16):
        a(f"buffer_load_dwordx4 {vr(WD+4*i,4)}, v9, s[{SD}:{SD+3}], s{S_T0} offen")
        a(f"s_add_u32 s{S_T0}, s{S_T0}, 896")
    a(f"""
    s_waitcnt lgkmcnt(0)
    s_barrier
    v_lshlrev_b32 v10, 2, v{LN}
    v_mov_b32 v12, 0
    v_mov_b32 v13, 0
    """)
    P = 100
    for half in range(4):
        for p in range(8):
            a(f"ds_read2_b32 {vr(P+2*p,2)}, v10 offset0:0 offset1:64")
            a(f"v_add_u32 v10, 512, v10")
        a("s_waitcnt lgkmcnt(0)")
        for p in range(8):
            a(f"v_add_f32 v12, v12, v{P+2*p}")
            a(f"v_add_f32 v13, v13, v{P+2*p+1}")
    rbf(a, 12)
    rbf(a, 13)
    a(f"""
    v_mul_f32 v14, {f32hex(-LOG2E)}, v12
    v_exp_f32 v14, v14
    v_add_f32 v14, 1.0, v14
    v_rcp_f32 v14, v14
    v_mul_f32 v12, v12, v14
    """)
    rbf(a, 12)
    a("v_mul_f32 v12, v12, v13")
    rbf(a, 12)
    a(f"s_lshl_b32 s{S_T1}, s{S_WAVE}, 4")
    for r in range(8):
        a(f"v_mov_b32 v{AC+r}, 0")
    for i in range(16):
        a(f"s_add_u32 s{S_T2}, s{S_T1}, {i}")
        a(f"v_readlane_b32 s{S_T0}, v12, s{S_T2}")
        a(f"s_waitcnt vmcnt({15-i})")
        for q in range(4):
            w = WD + 4 * i + q
            a(f"v_lshlrev_b32 v8, 16, v{w}")
            a(f"v_and_b32 v9, 0xffff0000, v{w}")
            a(f"v_fmac_f32 v{AC+2*q}, s{S_T0}, v8")
            a(f"v_fmac_f32 v{AC+2*q+1}, s{S_T0}, v9")
    a(f"""
    s_barrier
    s_lshl_b32 s{S_T0}, s{S_WAVE}, 11
    v_lshlrev_b32 v8, 5, v{LN}
    v_add_u32 v9, s{S_T0}, v8
    ds_write_b128 v9, {vr(AC,4)}
    ds_write_b128 v9, {vr(AC+4,4)} offset:16
    s_waitcnt lgkmcnt(0)
    s_barrier
    s_cmp_lg_u32 s{S_WAVE}, 0
    s_cbranch_scc1 H_mod_done
    """)
    for w in range(1, 4):
        a(f"ds_read_b128 {vr(P+8*w,4)}, v8 offset:{2048*w}")
        a(f"ds_read_b128 {vr(P+8*w+4,4)}, v8 offset:{2048*w+16}")
    a("s_waitcnt lgkmcnt(0)")
    for w in range(1, 4):
        for r in range(8):
            a(f"v_add_f32 v{AC+r}, v{AC+r}, v{P+8*w+r}")
    a(f"""
    v_mov_b32 v9, {OOB}
    v_cmp_gt_u32 vcc, 56, v{LN}
    v_cndmask_b32 v9, v9, v8, vcc
    s_mul_i32 s{S_T0}, s{S_RANK}, 1792
    s_add_u32 s{S_T0}, s{S_T0}, {YM_OFF}
    buffer_store_dwordx4 {vr(AC,4)}, v9, {WS}, s{S_T0} offen sc1
    buffer_store_dwordx4 {vr(AC+4,4)}, v9, {WS}, s{S_T0} offen offset:16 sc1
    v_mov_b32 v10, s{S_IDX}
    v_mov_b32 v11, s{S_RM}
    v_mov_b32 v12, 32
    v_mov_b32 v13, 28
    v_mov_b32 v14, 1
    s_mov_b64 exec, 1
    buffer_store_dwordx2 v[10:11], v12, {WS}, s{S_FLG} offen sc1
    s_waitcnt vmcnt(0)
    buffer_store_dword v14, v13, {WS}, s{S_FLG} offen sc1
    s_mov_b64 exec, -1
    H_mod_done:
    s_barrier
    """)


def gen_vp(a):
    SETS, AC, O = (32, 64), 96, 104
    S_MO, S_VPO, S_MO2, S_PO, S_PO2 = 45, 46, 47, 48, 49

    def loads(dst, s0, s1):
        for u in range(7):
            a(f"buffer_load_dwordx4 {vr(dst+4*u,4)}, v{L16}, {WS}, s{s0 if u < 4 else s1} offen offset:{(u&3)*1024} sc1")

    def check(dst, ok):
        r = list(range(dst, dst + 28))
        a(f"v_max3_u32 v{TMP}, v{r[0]}, v{r[1]}, v{r[2]}")
        r = r[3:]
        while len(r) >= 2:
            a(f"v_max3_u32 v{TMP}, v{TMP}, v{r[0]}, v{r[1]}"); r = r[2:]
        a(f"v_max_u32 v{TMP}, v{TMP}, v{r[0]}")
        a(f"v_cmp_eq_u32 vcc, -1, v{TMP}")
        a(f"s_cbranch_vccz {ok}")

    def flag(sval):
        a(f"v_mov_b32 v8, s{sval}")
        a("s_mov_b64 exec, 1")
        a(f"buffer_store_dword v8, v7, {WS}, s{S_FLG} offen sc1")
        a("s_mov_b64 exec, -1")

    a.label("H_vp")
    a(f"""
    s_mov_b32 s{S_STEP}, 0
    s_mov_b32 s{S_MO}, {MEMR_OFF}
    s_mov_b32 s{S_MO2}, {MEMR_OFF+4096}
    s_lshl_b32 s{S_VPO}, s{S_RANK}, 10
    s_add_u32 s{S_VPO}, s{S_VPO}, {VP_OFF}
    v_mov_b32 v7, 16
    """)
    loads(SETS[0], S_MO, S_MO2)
    a("s_waitcnt vmcnt(0)")
    a.label("H_vp_step")
    for ph in range(2):
        cur, nxt = SETS[ph], SETS[1 - ph]
        a(f"""
        s_mov_b32 s{S_PO}, s{S_MO}
        s_mov_b32 s{S_PO2}, s{S_MO2}
        s_cmp_lt_u32 s{S_STEP}, 63
        s_cselect_b32 s{S_T0}, {MEMS_STEP}, 0
        s_add_u32 s{S_MO}, s{S_MO}, s{S_T0}
        s_add_u32 s{S_MO2}, s{S_MO2}, s{S_T0}
        """)
        loads(nxt, S_MO, S_MO2)
        for r in range(8):
            a(f"v_mov_b32 v{AC+r}, 0")
        a(f"s_sub_u32 s{S_T0}, s{S_STEP}, 1")
        a(f"s_max_i32 s{S_T0}, s{S_T0}, 0")
        a("s_waitcnt vmcnt(9)")
        flag(S_T0)
        check(cur, f"H_vp_go{ph}")
        a("s_waitcnt vmcnt(0)")
        flag(S_STEP)
        a(f"s_mov_b32 s{S_CNT}, s{S_LIM}")
        a.label(f"H_vp_poll{ph}")
        loads(cur, S_PO, S_PO2)
        a("s_waitcnt vmcnt(0)")
        check(cur, f"H_vp_go{ph}")
        a("s_sleep 3")
        gc.retry(a, f"H_vp_poll{ph}")
        a.label(f"H_vp_go{ph}")
        for u in range(7):
            for t in range(2):
                a(f"v_smfmac_f32_16x16x64_bf16 {vr(AC+4*t,4)}, {vr(cur+4*u,4)}, {WBr(t,2*u,8)}, v{IDX}")
        a(f"s_add_u32 s{S_STEP}, s{S_STEP}, 1")
        for t in range(2):
            a(f"v_cvt_pk_bf16_f32 v{O+2*t}, v{AC+4*t}, v{AC+4*t+1}")
            a(f"v_cvt_pk_bf16_f32 v{O+2*t+1}, v{AC+4*t+2}, v{AC+4*t+3}")
        a(f"buffer_store_dwordx4 {vr(O,4)}, v{L16}, {WS}, s{S_VPO} offen sc1")
        a(f"s_add_u32 s{S_VPO}, s{S_VPO}, {224*FR}")
    a(f"""
    s_cmp_lt_u32 s{S_STEP}, 64
    s_cbranch_scc1 H_vp_step
    s_waitcnt vmcnt(0)
    """)
    flag(S_STEP)
    a("s_waitcnt vmcnt(0)")
    gc.evt(a, 5, DIAG, 8, 9)
    a("s_endpgm")


def gen_f1(a):
    TXr, KX, MKr, D, MSK = 16, 72, 184, 240, 8
    MFm = KX
    V_FA, V_LB, V_MA, V_PM, V_FLG = 252, 253, 254, 255, 7
    S_S, S_N, S_QT, S_MO = 45, 46, 47, 48
    a(f"""
    s_sub_u32 s{S_QT}, s{S_WAVE}, 1
    s_mov_b32 s{S_S}, s{S_C}
    s_mov_b32 s{S_N}, 0
    s_lshl_b32 s{S_T0}, s{S_QT}, 4
    v_add_u32 v16, s{S_T0}, v{L15}
    v_lshlrev_b32 v17, 2, v{G}
    v_mov_b32 v18, {NEG}
    """)
    for kt in range(2):
        for r in range(4):
            a(f"v_add_u32 v19, {16*kt+r}, v17")
            a(f"v_cmp_le_u32 vcc, v19, v16")
            a(f"v_cndmask_b32 v{MSK+4*kt+r}, v18, 0, vcc")
    a(f"""
    s_lshl_b32 s{S_T0}, s{S_WAVE}, 13
    v_add_u32 v{V_LB}, s{S_T0}, v{L16}
    v_lshrrev_b32 v16, 1, v{G}
    v_lshlrev_b32 v16, 8, v16
    v_lshrrev_b32 v17, 1, v{L15}
    v_lshl_add_u32 v16, v17, 5, v16
    v_and_b32 v17, 1, v{G}
    v_lshl_add_u32 v16, v17, 3, v16
    v_add_u32 v{V_MA}, s{S_T0}, v16
    s_and_b32 s{S_T0}, s{S_H}, 1
    s_lshl_b32 s{S_T0}, s{S_T0}, 3
    v_add_u32 v{V_PM}, s{S_T0}, v{L16}
    v_min_u32 v16, 13, v{LN}
    s_mul_i32 s{S_T0}, s{S_H}, 14
    v_add_u32 v16, s{S_T0}, v16
    v_lshlrev_b32 v16, 6, v16
    v_add_u32 v{V_FA}, {PROG_OFF}, v16
    s_lshl_b32 s{S_T0}, s{S_QT}, 2
    s_add_u32 s{S_T0}, s{S_T0}, 20
    v_mov_b32 v{V_FLG}, s{S_T0}
    H_f1_step:
    s_and_b32 s{S_T0}, s{S_S}, 3
    s_lshl_b32 s{S_T0}, s{S_T0}, 2
    v_add_u32 v{D}, s{S_T0}, v{V_FA}
    s_lshr_b32 s{S_T0}, s{S_S}, 2
    v_mov_b32 v{D+1}, s{S_T0}
    """)
    flagwait(a, D, D + 1, D + 2)
    a(f"""
    s_lshl_b32 s{S_T0}, s{S_S}, 4
    s_add_u32 s{S_T0}, s{S_T0}, s{S_H}
    s_mul_i32 s{S_T0}, s{S_T0}, {28*FR}
    s_lshl_b32 s{S_T1}, s{S_QT}, 10
    s_add_u32 s{S_T0}, s{S_T0}, s{S_T1}
    s_add_u32 s{S_T0}, s{S_T0}, {TX_OFF}
    s_mul_i32 s{S_T1}, s{S_S}, {28*FR}
    s_add_u32 s{S_T1}, s{S_T1}, {XF_OFF}
    s_add_u32 s{S_T2}, s{S_T1}, {14*FR}
    """)
    for ks in range(14):
        a(f"buffer_load_dwordx4 {vr(TXr+4*ks,4)}, v{L16}, {WS}, s{S_T0} offen offset:{(ks&1)*2048} sc1")
        a(f"buffer_load_dwordx4 {vr(KX+8*ks,4)}, v{L16}, {WS}, s{S_T1} offen offset:{(ks&3)*1024}")
        a(f"buffer_load_dwordx4 {vr(KX+8*ks+4,4)}, v{L16}, {WS}, s{S_T2} offen offset:{(ks&3)*1024}")
        if ks & 1:
            a(f"s_add_u32 s{S_T0}, s{S_T0}, 4096")
        if ks & 3 == 3:
            a(f"s_add_u32 s{S_T1}, s{S_T1}, 4096\ns_add_u32 s{S_T2}, s{S_T2}, 4096")
    for ks in range(14):
        a(f"s_waitcnt vmcnt({39-3*ks})")
        for kt in range(2):
            c_ = vr(MSK + 4 * kt, 4) if ks == 0 else vr(D + 4 * kt, 4)
            a(f"v_mfma_f32_16x16x32_bf16 {vr(D+4*kt,4)}, {vr(KX+8*ks+4*kt,4)}, {vr(TXr+4*ks,4)}, {c_}")
    a(f"s_mul_i32 s{S_MO}, s{S_S}, {MEMS_STEP}")
    a(f"s_add_u32 s{S_MO}, s{S_MO}, {MEMR_OFF}")
    a(f"""
    s_mov_b32 s{S_CNT}, s{S_LIM}
    H_f1_light:
    buffer_load_dword v{TMP}, v{L16}, {WS}, s{S_MO} offen sc1
    s_waitcnt vmcnt(0)
    v_cmp_ne_u32 vcc, -1, v{TMP}
    s_cbranch_vccnz H_f1_lgo
    s_sleep 4
    """)
    gc.retry(a, "H_f1_light")
    a.label("H_f1_lgo")
    mempoll(a, MFm, S_MO, sleep=1)
    for u in range(7):
        a(f"ds_write_b128 v{V_LB}, {vr(MFm+4*u,4)} offset:{u*1024}")
    a(f"v_mov_b32 v{TMP}, v{V_MA}")
    for ks in range(14):
        o = 128 * (ks & 1)
        a(f"ds_read2_b32 {vr(MKr+4*ks,2)}, v{TMP} offset0:{o} offset1:{o+4}")
        a(f"ds_read2_b32 {vr(MKr+4*ks+2,2)}, v{TMP} offset0:{o+1} offset1:{o+5}")
        if ks & 1:
            a(f"v_add_u32 v{TMP}, 1024, v{TMP}")
        if ks == 6:
            a("s_waitcnt lgkmcnt(0)")
    for ks in range(14):
        if ks >= 7:
            a(f"s_waitcnt lgkmcnt({2*(13-ks)})")
        c_ = "0" if ks == 0 else vr(D + 8, 4)
        a(f"v_mfma_f32_16x16x32_bf16 {vr(D+8,4)}, {vr(MKr+4*ks,4)}, {vr(TXr+4*ks,4)}, {c_}")
    Mx, T2 = KX, KX + 1
    a(f"""
    s_lshl_b32 s{S_T0}, s{S_S}, 1
    s_add_u32 s{S_T0}, s{S_T0}, s{S_QT}
    s_mul_i32 s{S_T0}, s{S_T0}, {24*FR}
    s_add_u32 s{S_T0}, s{S_T0}, {PX_OFF}
    s_lshl_b32 s{S_T1}, s{S_H}, 10
    s_add_u32 s{S_T1}, s{S_T1}, s{S_T0}
    s_lshr_b32 s{S_T2}, s{S_H}, 1
    s_lshl_b32 s{S_T2}, s{S_T2}, 10
    s_add_u32 s{S_T2}, s{S_T2}, s{S_T0}
    s_add_u32 s{S_T2}, s{S_T2}, {16*FR}
    v_max3_f32 v{Mx}, v{D}, v{D+1}, v{D+2}
    v_max3_f32 v{Mx}, v{Mx}, v{D+3}, v{D+4}
    v_max3_f32 v{Mx}, v{Mx}, v{D+5}, v{D+6}
    v_max3_f32 v{Mx}, v{Mx}, v{D+7}, v{D+8}
    v_max_f32 v{Mx}, v{Mx}, v{D+10}
    """)
    xg_reduce(a, "v_max_f32", Mx, T2)
    vals = list(range(D, D + 8)) + [D + 8, D + 10]
    for v in vals:
        a(f"v_sub_f32 v{v}, v{v}, v{Mx}")
    for v in vals:
        a(f"v_exp_f32 v{v}, v{v}")
    a(f"v_add_f32 v{Mx}, v{vals[0]}, v{vals[1]}")
    for v in vals[2:]:
        a(f"v_add_f32 v{Mx}, v{Mx}, v{v}")
    xg_reduce(a, "v_add_f32", Mx, T2)
    a(f"v_rcp_f32 v{Mx}, v{Mx}")
    for v in vals:
        a(f"v_mul_f32 v{v}, v{v}, v{Mx}")
    O = KX + 4
    for q in range(4):
        a(f"v_cvt_pk_bf16_f32 v{O+q}, v{D+2*q}, v{D+2*q+1}")
    a(f"""
    v_cvt_pk_bf16_f32 v{O+4}, v{D+8}, v{D+8}
    v_cvt_pk_bf16_f32 v{O+5}, v{D+10}, v{D+10}
    buffer_store_dwordx4 {vr(O,4)}, v{L16}, {WS}, s{S_T1} offen sc1
    buffer_store_dwordx2 {vr(O+4,2)}, v{V_PM}, {WS}, s{S_T2} offen sc1
    s_add_u32 s{S_N}, s{S_N}, 1
    v_mov_b32 v{TMP}, s{S_N}
    s_waitcnt vmcnt(0)
    s_mov_b64 exec, 1
    buffer_store_dword v{TMP}, v{V_FLG}, {WS}, s{S_FLG} offen sc1
    s_mov_b64 exec, -1
    s_add_u32 s{S_S}, s{S_S}, 14
    s_cmp_lt_u32 s{S_S}, 64
    s_cbranch_scc1 H_f1_step
    s_waitcnt vmcnt(0)
    """)
    gc.evt(a, 5, DIAG, 8, 9)
    a("s_endpgm")


def gen_f2(a):
    PXX, PXM, VPr, D, XV, GV = 16, 80, 112, 176, 184, 188
    V_F0, V_F1, V_THR, V_VAL, V_OA = 8, 9, 10, 11, 12
    S_U, S_S, S_QT, S_MT, S_IDX, S_RS = 45, 46, 47, 48, 49, 50
    SO = 52
    a.label("H_f2")
    srd(a, SO, S_OUT, 2048 * 896)
    a(f"""
    v_mov_b32 v{V_F0}, {PROG_OFF+28}
    v_mov_b32 v{V_THR}, 0
    """)
    flagwait(a, V_F0, V_THR, V_VAL)
    a(f"""
    v_mov_b32 v{V_F0}, {PROG_OFF+32}
    buffer_load_dwordx2 v[14:15], v{V_F0}, {WS}, 0 offen sc1
    s_and_b32 s{S_QT}, s{S_H}, 1
    s_lshr_b32 s{S_S}, s{S_H}, 1
    s_mov_b32 s{S_U}, 0
    v_mul_u32_u24 v{V_F0}, {14*64}, v{L15}
    v_add_u32 v{V_F0}, {PROG_OFF}, v{V_F0}
    v_mul_u32_u24 v{V_OA}, 896, v{L15}
    v_lshl_add_u32 v{V_OA}, v{G}, 4, v{V_OA}
    s_waitcnt vmcnt(0)
    v_readfirstlane_b32 s{S_IDX}, v14
    v_cvt_pk_bf16_f32 v15, v15, v15
    v_and_b32 v15, 0xffff0000, v15
    v_mul_f32 v15, {f32hex(-LOG2E)}, v15
    v_exp_f32 v15, v15
    v_add_f32 v15, 1.0, v15
    v_rcp_f32 v15, v15
    v_cvt_pk_bf16_f32 v15, v15, v15
    v_and_b32 v15, 0xffff0000, v15
    v_readfirstlane_b32 s{S_RS}, v15
    H_f2_step:
    s_lshl_b32 s{S_MT}, s{S_S}, 1
    s_add_u32 s{S_MT}, s{S_MT}, s{S_QT}
    s_lshl_b32 s{S_T0}, s{S_C}, 6
    s_and_b32 s{S_T1}, s{S_S}, 3
    s_lshl_b32 s{S_T1}, s{S_T1}, 2
    s_add_u32 s{S_T1}, s{S_T1}, s{S_T0}
    v_add_u32 v{V_F1}, s{S_T1}, v{V_F0}
    s_lshr_b32 s{S_T1}, s{S_S}, 2
    v_mov_b32 v{V_THR}, s{S_T1}
    """)
    flagwait(a, V_F1, V_THR, V_VAL)
    a(f"""
    s_mul_i32 s{S_T0}, s{S_S}, {VX_STEP}
    s_lshl_b32 s{S_T1}, s{S_C}, 11
    s_add_u32 s{S_T0}, s{S_T0}, s{S_T1}
    s_add_u32 s{S_T0}, s{S_T0}, {VX_OFF}
    """)
    for h in range(16):
        for t in range(2):
            a(f"buffer_load_dwordx4 {ar(8*h+4*t,4)}, v{L16}, {WS}, s{S_T0} offen offset:{t*FR} sc1")
        a(f"s_add_u32 s{S_T0}, s{S_T0}, {28*FR}")
    a(f"""
    s_mul_i32 s{S_T0}, s{S_MT}, 14
    s_add_u32 s{S_T0}, s{S_T0}, s{S_C}
    s_lshl_b32 s{S_T0}, s{S_T0}, 10
    s_add_u32 s{S_T0}, s{S_T0}, {XF_OFF}
    buffer_load_dwordx4 {vr(XV,4)}, v{L16}, {WS}, s{S_T0} offen
    s_lshl_b32 s{S_T0}, s{S_MT}, 6
    s_add_u32 s{S_T0}, s{S_T0}, {RG_OFF+8192}
    v_lshlrev_b32 v13, 2, v{L15}
    buffer_load_dword v{GV}, v13, {WS}, s{S_T0} offen
    ; lanes 0..15: V' flag (h', c) word 4 > s ; lanes 16..: F1 flag (h', s%14) word 5+qt > s/14
    s_mul_i32 s{S_T1}, s{S_S}, 4682
    s_lshr_b32 s{S_T1}, s{S_T1}, 16
    s_mul_i32 s{S_T2}, s{S_T1}, 14
    s_sub_u32 s{S_T2}, s{S_S}, s{S_T2}
    s_lshl_b32 s{S_T2}, s{S_T2}, 6
    s_lshl_b32 s{S_T3}, s{S_QT}, 2
    s_add_u32 s{S_T2}, s{S_T2}, s{S_T3}
    s_add_u32 s{S_T2}, s{S_T2}, 20
    s_lshl_b32 s{S_T0}, s{S_C}, 6
    s_add_u32 s{S_T0}, s{S_T0}, 16
    v_mov_b32 v13, s{S_T0}
    v_mov_b32 v14, s{S_T2}
    v_mov_b32 v15, s{S_S}
    v_mov_b32 v{V_THR}, s{S_T1}
    v_cmp_gt_u32 vcc, 16, v{LN}
    v_cndmask_b32 v13, v14, v13, vcc
    v_cndmask_b32 v{V_THR}, v{V_THR}, v15, vcc
    v_add_u32 v{V_F1}, v13, v{V_F0}
    """)
    flagwait(a, V_F1, V_THR, V_VAL, sleep=2)
    a(f"""
    s_mul_i32 s{S_T0}, s{S_MT}, {24*FR}
    s_add_u32 s{S_T0}, s{S_T0}, {PX_OFF}
    s_mul_i32 s{S_T1}, s{S_S}, {224*FR}
    s_lshl_b32 s{S_T2}, s{S_C}, 10
    s_add_u32 s{S_T1}, s{S_T1}, s{S_T2}
    s_add_u32 s{S_T1}, s{S_T1}, {VP_OFF}
    """)
    for f in range(24):
        dst = PXX + 4 * f
        a(f"buffer_load_dwordx4 {vr(dst,4)}, v{L16}, {WS}, s{S_T0} offen offset:{(f&3)*FR} sc1")
        if f & 3 == 3:
            a(f"s_add_u32 s{S_T0}, s{S_T0}, 4096")
    for h in range(16):
        a(f"buffer_load_dwordx4 {vr(VPr+4*h,4)}, v{L16}, {WS}, s{S_T1} offen sc1")
        a(f"s_add_u32 s{S_T1}, s{S_T1}, {14*FR}")
    for h in range(16):
        a(f"s_waitcnt vmcnt({39-h})")
        for t in range(2):
            c_ = "0" if h == 0 else vr(D + 4 * t, 4)
            a(f"v_mfma_f32_16x16x32_bf16 {vr(D+4*t,4)}, {ar(8*h+4*t,4)}, {vr(PXX+4*h,4)}, {c_}")
    for hp in range(8):
        b = VPr + 8 * hp
        a(f"s_waitcnt vmcnt({14-2*hp})")
        a(f"v_swap_b32 v{b+2}, v{b+4}")
        a(f"v_swap_b32 v{b+3}, v{b+5}")
        for t in range(2):
            a(f"v_mfma_f32_16x16x32_bf16 {vr(D+4*t,4)}, {vr(b+4*t,4)}, {vr(PXM+4*hp,4)}, {vr(D+4*t,4)}")
    B = PXX
    for r in range(4):
        a(f"v_lshlrev_b32 v{B+2*r}, 16, v{XV+r}")
        a(f"v_and_b32 v{B+2*r+1}, 0xffff0000, v{XV+r}")
    a(f"""
    s_lshr_b32 s{S_T0}, s{S_IDX}, 4
    s_cmp_lg_u32 s{S_T0}, s{S_MT}
    s_cbranch_scc1 H_f2_nomod
    v_min_u32 v13, 27, v{LN}
    v_lshlrev_b32 v13, 6, v13
    v_add_u32 v13, {PROG_OFF+28}, v13
    v_mov_b32 v{V_THR}, 0
    """)
    flagwait(a, 13, V_THR, V_VAL)
    Y, YL = PXM, PXM + 8
    a(f"""
    v_lshlrev_b32 v13, 5, v{G}
    s_lshl_b32 s{S_T0}, s{S_C}, 7
    s_add_u32 s{S_T0}, s{S_T0}, {YM_OFF}
    s_mov_b32 s{S_T1}, 28
    """)
    for r in range(8):
        a(f"v_mov_b32 v{Y+r}, 0")
    a(f"""
    H_f2_ysum:
    buffer_load_dwordx4 {vr(YL,4)}, v13, {WS}, s{S_T0} offen sc1
    buffer_load_dwordx4 {vr(YL+4,4)}, v13, {WS}, s{S_T0} offen offset:16 sc1
    s_add_u32 s{S_T0}, s{S_T0}, 1792
    s_waitcnt vmcnt(0)
    """)
    for r in range(8):
        a(f"v_add_f32 v{Y+r}, v{Y+r}, v{YL+r}")
    a(f"""
    s_sub_u32 s{S_T1}, s{S_T1}, 1
    s_cmp_lg_u32 s{S_T1}, 0
    s_cbranch_scc1 H_f2_ysum
    s_and_b32 s{S_T0}, s{S_IDX}, 15
    v_cmp_eq_u32 vcc, s{S_T0}, v{L15}
    """)
    for r in range(8):
        rbf(a, Y + r)
        a(f"v_mul_f32 v{Y+r}, s{S_RS}, v{Y+r}")
        rbf(a, Y + r)
        a(f"v_add_f32 v{Y+r}, v{Y+r}, v{B+r}")
        rbf(a, Y + r)
        a(f"v_cndmask_b32 v{B+r}, v{B+r}, v{Y+r}, vcc")
    a.label("H_f2_nomod")
    OM = PXM + 16
    a(f"v_sub_f32 v{OM}, 1.0, v{GV}")
    rbf(a, OM)
    O = PXM + 20
    for r in range(4):
        lo, hi = D + r, D + 4 + r
        T = PXM + 24
        a(f"v_cvt_pk_bf16_f32 v{T}, v{lo}, v{hi}")
        a(f"v_lshlrev_b32 v{lo}, 16, v{T}")
        a(f"v_and_b32 v{hi}, 0xffff0000, v{T}")
        a(f"v_mul_f32 v{lo}, v{lo}, v{GV}")
        a(f"v_mul_f32 v{hi}, v{hi}, v{GV}")
        a(f"v_cvt_pk_bf16_f32 v{T}, v{lo}, v{hi}")
        a(f"v_lshlrev_b32 v{lo}, 16, v{T}")
        a(f"v_and_b32 v{hi}, 0xffff0000, v{T}")
        a(f"v_mul_f32 v{B+2*r}, v{B+2*r}, v{OM}")
        a(f"v_mul_f32 v{B+2*r+1}, v{B+2*r+1}, v{OM}")
        a(f"v_cvt_pk_bf16_f32 v{T}, v{B+2*r}, v{B+2*r+1}")
        a(f"v_lshlrev_b32 v{B+2*r}, 16, v{T}")
        a(f"v_and_b32 v{B+2*r+1}, 0xffff0000, v{T}")
        a(f"v_add_f32 v{lo}, v{lo}, v{B+2*r}")
        a(f"v_add_f32 v{hi}, v{hi}, v{B+2*r+1}")
        a(f"v_cvt_pk_bf16_f32 v{O+r}, v{lo}, v{hi}")
    a(f"""
    s_mul_i32 s{S_T0}, s{S_MT}, {16*896}
    s_lshl_b32 s{S_T1}, s{S_C}, 6
    s_add_u32 s{S_T0}, s{S_T0}, s{S_T1}
    buffer_store_dwordx4 {vr(O,4)}, v{V_OA}, s[{SO}:{SO+3}], s{S_T0} offen
    s_add_u32 s{S_S}, s{S_S}, 8
    s_add_u32 s{S_U}, s{S_U}, 1
    s_cmp_lt_u32 s{S_U}, 8
    s_cbranch_scc1 H_f2_step
    s_waitcnt vmcnt(0)
    """)
    gc.evt(a, 5, DIAG, 8, 9)
    a("s_endpgm")
```

```python
import sys
from asmlib import *
from layout import *
import gen_chain as gc
import gen_prep as gp

HDR = open("gated_mix__memory_aug_recurrent_mem_tr__moe_arch_mod__prompt.s.ref").read().split("; Override launch")[0]

def kd(name, vgpr, accum, sgpr=102):
    return f""".p2align 6
.amdhsa_kernel {name}
  .amdhsa_next_free_vgpr {vgpr}
  .amdhsa_next_free_sgpr {sgpr}
  .amdhsa_accum_offset {accum}
  .amdhsa_group_segment_fixed_size 0
  .amdhsa_kernarg_size 128
  .amdhsa_user_sgpr_count 2
  .amdhsa_user_sgpr_kernarg_segment_ptr 1
  .amdhsa_system_sgpr_workgroup_id_x 1
.end_amdhsa_kernel
"""

def kstart(a, name):
    a.raw(f".globl {name}\n.p2align 8\n.type {name},@function\n{name}:")
    a.hist = []

def build(diag=False, force_fb=False, prep=True, main=True, helpers=True):
    a = Asm()
    hdr = HDR
    kds = ""
    if prep:
        kstart(a, "prep_kernel")
        gp.gen_prep(a, diag)
        hdr += "; @launch kernel=prep_kernel grid=(256,1,1) block=(256,1,1) lds=131072\n"
        kds += kd("prep_kernel", 256, 256)
    if main:
        kstart(a, "main_kernel")
        gc.gen_main_prologue(a, force_fb, diag)
        if helpers:
            import gen_help as gh
            gh.gen_helper(a, diag)
        a.label("L_exit")
        a("s_endpgm")
        gc.gen_T(a, diag)
        gc.gen_V(a, diag)
        gc.gen_warm(a)
        hdr += "; @launch kernel=main_kernel grid=(256,1,1) block=(256,1,1) lds=131072\n"
        kds += kd("main_kernel", 512, 256)
    txt = hdr + '.amdgcn_target "amdgcn-amd-amdhsa--gfx950"\n.text\n' + a.text() + '.section .rodata,"a"\n' + kds
    return txt, a

if __name__ == "__main__":
    for kv in sys.argv[2:]:
        if "=" in kv:
            k, v = kv.split("="); gc.OPT[k] = int(v)
    txt, a = build(diag="diag" in sys.argv, force_fb="fb" in sys.argv, prep="noprep" not in sys.argv,
                   main="nomain" not in sys.argv, helpers="nohelp" not in sys.argv)
    open(sys.argv[1], "w").write(txt)
    print("pads:", a.pads, "lines", len(a.lines))
    if "v" in sys.argv:
        for ln, p, t in a.padlog: print("  pad", p, "before", t)
```

```python
from asmlib import *
from layout import *
import gen_pre as gpre

S_X, S_OUT, S_DBG, S_WS = 4, 8, 10, 12
SRD_WS, SRD_X, SRD_DBG = 16, 20, 24
S_WAVE, S_ROLE, S_FB, S_LIM, S_CNT, S_STEP = 28, 29, 30, 31, 32, 33
S_K = 34
S_T0, S_T1, S_T2, S_T3 = 41, 42, 43, 44
S_MEMOFF, S_PSOFF = 45, 46
S_XO = 47
S_SLP, S_SL2 = 48, 49
S_RDY, S_MN = 56, 57
S_XB = 58
S_EP = 59
S_STP = 60
S_CNTS = 64
S_STB = 87
SPIN_LIMIT = 200000
OPT = dict(sleepT=0, sleepV=0, nox=0, sleepVm=0, memtime=0, novx=0, lat=0, nowarm=0, lead=3, wide=0, adapt=0, nomn=1, vdelay=0, lo=1, hi=2, nvx=0, rsleep=8, nb=10, w64=1, wfirst=0, wgap=2, evtonly=0, lightT=0, lightV=0, tstride=7, g_nold=0, g_plain=0, clk=0, csl=8, tlb=0, xfwarm=1, hsl=32, vpsl=2, direct=0, f2pre=16, f2sl=4)
WS = f"s[{SRD_WS}:{SRD_WS+3}]"
XS = f"s[{SRD_X}:{SRD_X+3}]"
DBG = f"s[{SRD_DBG}:{SRD_DBG+3}]"
OOB = 0x7FFFFFF0

T_TR, T_PART = 8192, 20480
V_PART, V_WL = 8192, 16384
NWL = 12

V_IDX, V_FA, V_TMP = 1, 2, 19
MF, ACC = 20, 48
LN, G4, L15 = 40, 41, 42


def common_setup(a):
    a(f"""
    v_and_b32 v{LN}, 63, v0
    v_lshrrev_b32 v{G4}, 4, v{LN}
    v_and_b32 v{L15}, 15, v{LN}
    v_and_b32 v20, 1, v0
    v_cmp_eq_u32 vcc, 0, v20
    v_mov_b32 v20, 0xEEEE
    v_mov_b32 v21, 0x4444
    v_cndmask_b32 v{V_IDX}, v20, v21, vcc
    s_lshl_b32 s{S_T0}, s{S_WAVE}, 1
    """)
    for u in range(7):
        a(f"""
        s_add_u32 s{S_T1}, s{S_T0}, {u}
        s_sub_u32 s{S_T2}, s{S_T1}, 7
        s_cmp_ge_u32 s{S_T1}, 7
        s_cselect_b32 s{S_K+u}, s{S_T2}, s{S_T1}
        s_lshl_b32 s{S_T1}, s{S_K+u}, 10
        v_lshl_add_u32 v{V_FA+u}, v{LN}, 4, s{S_T1}
        """)
    a(f"s_mov_b32 s{S_LIM}, {SPIN_LIMIT}")
    a(f"s_mov_b32 s{S_STEP}, 0")
    a(f"s_mov_b32 s{S_MEMOFF}, {MEMS_OFF}")
    a(f"s_mov_b32 s{S_PSOFF}, {PS_OFF}")


def poll(a, loads, regs, depth2=True, sleep=0):
    n = len(loads)
    top, done = a.newlabel("poll"), a.newlabel("polled")
    a(f"s_mov_b32 s{S_CNT}, s{S_LIM}")
    if depth2:
        for l in loads:
            a(l)
    a.label(top)
    for l in loads:
        a(l)
    a(f"s_waitcnt vmcnt({n if depth2 else 0})")
    r = list(regs)
    a(f"v_max3_u32 v{V_TMP}, v{r[0]}, v{r[1]}, v{r[2]}")
    r = r[3:]
    while len(r) >= 2:
        a(f"v_max3_u32 v{V_TMP}, v{V_TMP}, v{r[0]}, v{r[1]}"); r = r[2:]
    if r:
        a(f"v_max_u32 v{V_TMP}, v{V_TMP}, v{r[0]}")
    a(f"v_cmp_eq_u32 vcc, -1, v{V_TMP}")
    a(f"s_cbranch_vccz {done}")
    if sleep:
        a(f"s_sleep {sleep}")
    a(f"""
    s_sub_u32 s{S_CNT}, s{S_CNT}, 1
    s_cmp_lg_u32 s{S_CNT}, 0
    s_cbranch_scc1 {top}
    s_mov_b32 s{S_LIM}, 1
    """)
    a.label(done)


def chk4(a, r, ok):
    a(f"v_max3_u32 v{V_TMP}, v{r}, v{r+1}, v{r+2}")
    a(f"v_max_u32 v{V_TMP}, v{V_TMP}, v{r+3}")
    a(f"v_cmp_eq_u32 vcc, -1, v{V_TMP}")
    a(f"s_cbranch_vccz {ok}")


def light(a, load, reg, name):
    a(f"s_mov_b32 s{S_CNT}, s{S_LIM}")
    a(load)
    a.label(name)
    a(load)
    a("s_waitcnt vmcnt(1)")
    a(f"v_cmp_ne_u32 vcc, -1, v{reg}")
    a(f"s_cbranch_vccnz {name}_go")
    retry(a, name)
    a.label(name + "_go")


def retry(a, top):
    a(f"""
    s_sub_u32 s{S_CNT}, s{S_CNT}, 1
    s_cmp_lg_u32 s{S_CNT}, 0
    s_cbranch_scc1 {top}
    s_mov_b32 s{S_LIM}, 1
    """)


def backoff(a, sreg):
    top, done = a.newlabel("bo"), a.newlabel("bod")
    a(f"""
    s_mov_b32 s{S_T0}, s{sreg}
    {top}:
    s_cmp_eq_u32 s{S_T0}, 0
    s_cbranch_scc1 {done}
    s_sleep 1
    s_sub_u32 s{S_T0}, s{S_T0}, 1
    s_branch {top}
    {done}:
    """)


def adapt(a, sreg, saved):
    lo, hi = OPT["lo"], OPT["hi"]
    a(f"""
    s_sub_u32 s{S_T0}, s{S_LIM}, s{saved}
    s_sub_u32 s{S_T1}, s{sreg}, 1
    s_max_i32 s{S_T1}, s{S_T1}, 0
    s_cmp_lt_u32 s{S_T0}, {lo}
    s_cselect_b32 s{sreg}, s{S_T1}, s{sreg}
    s_sub_u32 s{S_T1}, s{S_T0}, {hi}
    s_add_u32 s{S_T1}, s{S_T1}, s{sreg}
    s_min_u32 s{S_T1}, s{S_T1}, 48
    s_cmp_gt_u32 s{S_T0}, {hi}
    s_cselect_b32 s{sreg}, s{S_T1}, s{sreg}
    """)


def stamp(a, k, diag):
    if diag and not OPT["evtonly"]:
        a(f"{'s_memtime' if OPT['memtime'] else 's_memrealtime'} s[{S_STP+2*k}:{S_STP+2*k+1}]")


def stamp_setup(a, diag):
    if diag:
        a(f"s_lshl_b32 s{S_STB}, s{S_ROLE}, 2\ns_add_u32 s{S_STB}, s{S_STB}, s{S_WAVE}\ns_lshl_b32 s{S_STB}, s{S_STB}, 11\ns_add_u32 s{S_STB}, s{S_STB}, {STAMP_OFF}")


def stamp_store(a, n, diag, t0, t1):
    if not diag or OPT["evtonly"]:
        return
    a("s_waitcnt lgkmcnt(0)")
    a(f"s_lshl_b32 s{S_T0}, s{S_STEP}, 5")
    a(f"s_add_u32 s{S_T0}, s{S_T0}, s{S_STB}")
    a("s_mov_b64 exec, 1")
    for k in range(n):
        a(f"v_mov_b32 v{t0}, s{S_STP+2*k}")
        a(f"v_mov_b32 v{t1}, {4*k}")
        a(f"buffer_store_dword v{t0}, v{t1}, {WS}, s{S_T0} offen")
    a("s_mov_b64 exec, -1")


EVT_OFF = STAMP_OFF + (1 << 19)


def evt(a, k, diag, t0, t1, role=None):
    if not diag:
        return
    a(f"""
    s_memrealtime s[96:97]
    s_lshl_b32 s98, s{S_ROLE if role is None else role}, 2
    s_add_u32 s98, s98, s{S_WAVE}
    s_lshl_b32 s98, s98, 5
    s_add_u32 s98, s98, {EVT_OFF + 4*k}
    s_waitcnt lgkmcnt(0)
    v_mov_b32 v{t0}, s96
    v_mov_b32 v{t1}, 0
    s_mov_b64 exec, 1
    buffer_store_dword v{t0}, v{t1}, {WS}, s98 offen
    s_mov_b64 exec, -1
    s_waitcnt vmcnt(0)
    """)


def smf(acc, A, B):
    return f"v_smfmac_f32_16x16x64_bf16 {vr(acc,4)}, {vr(A,4)}, {B}, v{V_IDX}"


DPPS = ["quad_perm:[1,0,3,2]", "quad_perm:[2,3,0,1]", "row_half_mirror", "row_mirror"]


def mem_polls():
    return [f"buffer_load_dwordx4 {vr(MF+4*u,4)}, v{V_FA+u}, {WS}, s{S_MEMOFF} offen sc1" for u in range(2)]


def gen_T(a, diag=False):
    SA, XK = 76, 88
    (V_M0, V_M1, V_MK0, V_MK1, V_TW, V_TRD, V_PW, V_PR, V_PA0, V_PA1) = range(9, 19)
    V_MASK = 0

    def W(jj, u):
        o = (u * 7 + jj) if u < 2 else 14 + jj * 5 + (u - 2)
        return ar(8 * o, 8) if o < 32 else vr(120 + 8 * (o - 32), 8)

    a.label("L_role_T")
    a.c("T role: head = S_ROLE")
    evt(a, 1, diag, 20, 21)
    common_setup(a)
    h = S_ROLE
    S_ODD, S_TAU0, S_TAUL, S_CC0, S_CCL = 80, 81, 82, 83, 84
    a(f"""
    s_and_b32 s{S_ODD}, s{S_WAVE}, 1
    s_mul_i32 s{S_T0}, s{S_WAVE}, 7
    s_add_u32 s{S_TAU0}, s{S_T0}, s{S_ODD}
    s_lshr_b32 s{S_CC0}, s{S_TAU0}, 1
    s_add_u32 s{S_T1}, s{S_T0}, 6
    s_cmp_eq_u32 s{S_ODD}, 1
    s_cselect_b32 s{S_TAUL}, s{S_T0}, s{S_T1}
    s_lshr_b32 s{S_CCL}, s{S_TAUL}, 1
    v_lshlrev_b32 v43, 4, v{LN}
    v_sub_u32 v43, 0, v43
    s_mul_i32 s{S_T3}, s{h}, {28*14*FR}
    """)
    fwait(a, f"s_mul_i32 s{S_T1}, s{h}, 14\nv_min_u32 v20, 6, v{LN}\nv_add_u32 v20, s{S_T1}, v20\nv_lshlrev_b32 v20, 6, v20", 20, OPT["csl"])
    evt(a, 4, diag, 20, 21)
    a.c("weights -> registers")
    for u in range(7):
        a(f"v_lshl_add_u32 v{ACC+u}, v{V_FA+u}, 1, v43")
    a(f"s_mul_i32 s{S_T0}, s{S_TAU0}, {14*FR}")
    a(f"s_add_u32 s{S_T0}, s{S_T0}, s{S_T3}")
    a(f"s_mov_b32 s{S_T1}, {14*FR}")
    for jj in range(7):
        if jj == 6:
            a(f"s_mul_i32 s{S_T0}, s{S_TAUL}, {14*FR}")
            a(f"s_add_u32 s{S_T0}, s{S_T0}, s{S_T3}")
        for u in range(7):
            w = W(jj, u)
            k, base = w[0], int(w[2:].split(":")[0])
            a(f"buffer_load_dwordx4 {k}[{base}:{base+3}], v{ACC+u}, {WS}, s{S_T0} offen")
            a(f"buffer_load_dwordx4 {k}[{base+4}:{base+7}], v{ACC+u}, {WS}, s{S_T0} offen offset:1024")
        if jj < 5:
            a(f"s_add_u32 s{S_T0}, s{S_T0}, s{S_T1}")
    a.c("address registers")
    a(f"""
    v_and_b32 v20, 1, v{G4}
    v_lshrrev_b32 v21, 1, v{G4}
    v_cmp_eq_u32 vcc, 1, v20
    v_add_u32 v22, s{S_CC0}, v20
    s_add_u32 s{S_T0}, s{S_CC0}, 2
    v_mov_b32 v23, s{S_T0}
    v_mov_b32 v24, s{S_CCL}
    v_cndmask_b32 v23, v23, v24, vcc
    s_sub_u32 s{S_T0}, s{S_ODD}, 1
    s_not_b32 s{S_T1}, s{S_T0}
    v_mov_b32 v24, s{S_T0}
    v_cndmask_b32 v{V_M0}, -1, v24, vcc
    v_mov_b32 v24, s{S_T1}
    v_cndmask_b32 v{V_M1}, -1, v24, vcc
    v_and_b32 v25, 7, v{L15}
    v_lshlrev_b32 v25, 5, v25
    v_lshl_add_u32 v25, v21, 3, v25
    v_lshl_add_u32 v{V_MK0}, v22, 9, v25
    v_lshl_add_u32 v{V_MK1}, v23, 9, v25
    s_mul_i32 s{S_T2}, s{S_WAVE}, 2560
    s_add_u32 s{S_T2}, s{S_T2}, {T_TR}
    v_lshlrev_b32 v25, 3, v{LN}
    v_lshl_add_u32 v25, v21, 6, v25
    v_add_u32 v{V_TW}, s{S_T2}, v25
    v_and_b32 v25, 3, v{L15}
    v_lshrrev_b32 v26, 1, v25
    v_lshlrev_b32 v25, 7, v25
    v_lshl_add_u32 v25, v26, 6, v25
    v_lshrrev_b32 v26, 2, v{LN}
    v_lshl_add_u32 v25, v26, 3, v25
    v_add_u32 v{V_TRD}, s{S_T2}, v25
    s_lshl_b32 s{S_T2}, s{S_WAVE}, 11
    s_add_u32 s{S_T2}, s{S_T2}, {T_PART}
    v_lshlrev_b32 v25, 9, v{G4}
    v_lshl_add_u32 v25, v{L15}, 4, v25
    v_add_u32 v{V_PW}, s{S_T2}, v25
    s_lshl_b32 s{S_T2}, s{S_WAVE}, 9
    s_add_u32 s{S_T2}, s{S_T2}, {T_PART}
    v_and_b32 v25, 31, v{LN}
    v_lshl_add_u32 v{V_PR}, v25, 4, s{S_T2}
    s_lshl_b32 s{S_T0}, s{S_WAVE}, 1
    v_add_u32 v26, s{S_T0}, v20
    s_and_b32 s85, s{h}, 1
    s_bfe_u32 s86, s{h}, 0x10001
    s_lshr_b32 s{S_T0}, s{h}, 2
    s_mul_i32 s{S_T0}, s{S_T0}, {PS_W}
    s_lshl_b32 s{S_T1}, s86, 10
    s_add_u32 s{S_T1}, s{S_T1}, s{S_T0}
    s_lshl_b32 s{S_T2}, s85, 9
    s_add_u32 s{S_T1}, s{S_T1}, s{S_T2}
    v_lshrrev_b32 v27, 3, v{L15}
    v_lshlrev_b32 v27, 8, v27
    v_lshl_add_u32 v27, v26, 5, v27
    v_and_b32 v28, 1, v{L15}
    v_lshl_add_u32 v27, v28, 4, v27
    v_bfe_u32 v29, v{L15}, 1, 2
    v_lshl_add_u32 v27, v29, 2, v27
    v_add_u32 v27, s{S_T1}, v27
    s_add_u32 s{S_T1}, s{S_T0}, 2048
    s_lshl_b32 s{S_T2}, s86, 9
    s_add_u32 s{S_T1}, s{S_T1}, s{S_T2}
    s_lshl_b32 s{S_T2}, s85, 2
    s_add_u32 s{S_T1}, s{S_T1}, s{S_T2}
    v_bfe_u32 v29, v{L15}, 2, 1
    v_lshlrev_b32 v29, 8, v29
    v_lshl_add_u32 v29, v26, 5, v29
    v_lshl_add_u32 v29, v28, 4, v29
    v_bfe_u32 v30, v{L15}, 1, 1
    v_lshl_add_u32 v29, v30, 3, v29
    v_add_u32 v29, s{S_T1}, v29
    v_mov_b32 v30, {OOB}
    v_cmp_gt_u32 vcc, 32, v{LN}
    v_cndmask_b32 v{V_PA0}, v30, v27, vcc
    v_cndmask_b32 v29, v30, v29, vcc
    v_cmp_gt_u32 vcc, 8, v{L15}
    v_cndmask_b32 v{V_PA1}, v30, v29, vcc
    v_mov_b32 v30, 0xf149f2ca
    v_cndmask_b32 v{V_MASK}, v30, 0, vcc
    s_lshl_b32 s{S_XO}, s{S_WAVE}, 13
    s_add_u32 s{S_XO}, s{S_XO}, {XK_OFF}
    s_lshl_b32 s{S_T0}, s{S_K}, 10
    s_sub_u32 s{S_XO}, s{S_XO}, s{S_T0}
    s_mov_b32 s{S_SLP}, 0
    """)
    stamp_setup(a, diag)

    def xloads():
        for sg in range(2):
            for f in range(4):
                a(f"buffer_load_dwordx4 {vr(XK+16*sg+4*f,4)}, v{V_FA}, {WS}, s{S_XO} offen offset:{f*1024}")
            a(f"s_add_u32 s{S_XO}, s{S_XO}, {4096 if sg == 0 else XK_STEP-4096}")

    def zero():
        for r in range(28):
            a(f"v_mov_b32 v{ACC+r}, 0")
        for r in range(12):
            a(f"v_mov_b32 v{SA+r}, " + (f"v{V_MASK}" if r in (8, 10) else "0"))

    kwait(a, 20)
    chain_mode(a, 20, 21)
    fb_fixup(a, 20)
    xloads()
    zero()
    a("s_waitcnt vmcnt(0) lgkmcnt(0)")
    evt(a, 2, diag, 20, 21)
    a("s_barrier")

    acc = lambda j: ACC + 4 * j
    a.label("L_T_step")
    NB = OPT["nb"]
    own = [smf(acc(j), MF + 4 * u, W(j, u)) for u in range(2) for j in range(7)]
    rd = [f"ds_read_b128 {vr(MF+4*u,4)}, v{V_FA+u}" for u in range(2, 7)]
    wr = [f"ds_write_b64 v{V_FA+u}, {vr(MF+4*u+2*k,2)} offset:{8*k}" for u in range(2) for k in range(2)]
    L0, L1 = mem_polls()
    if OPT["lightT"]:
        light(a, L0, MF, "L_T_light")
    a(f"s_mov_b32 s{S_CNT}, s{S_LIM}")
    a(L0); a(L1)
    a.label("L_T_pollA")
    a(L0); a(L1)
    a("s_waitcnt vmcnt(3)")
    chk4(a, MF, "polled_T")
    retry(a, "L_T_pollA")
    a.label("polled_T")
    stamp(a, 0, diag)
    a(own[0]); a(wr[0]); a(own[1]); a(wr[1])
    a("s_waitcnt vmcnt(2)")
    a(own[2])
    chk4(a, MF + 4, "L_T_f1ok")
    a(f"s_mov_b32 s{S_CNT}, s{S_LIM}")
    a.label("L_T_pollB")
    a(L1)
    a("s_waitcnt vmcnt(1)")
    chk4(a, MF + 4, "L_T_f1ok")
    retry(a, "L_T_pollB")
    a.label("L_T_f1ok")
    wr = wr[2:]
    for k in range(3, 14):
        if k == NB:
            a("s_waitcnt lgkmcnt(0)")
            a("s_barrier")
            a(rd.pop(0))
        a(own[k])
        if wr:
            a(wr.pop(0))
        if k >= NB and rd:
            a(rd.pop(0))
    for s_ in rd:
        a(s_)

    MK0, MK1 = MF, acc(2)
    TB0, TB1 = acc(0), acc(1)

    def mkreads(dst, addr):
        return [f"ds_read_b64 {vr(dst+4*b+2*d,2)}, v{addr} offset:{256*b+16*d}" for b in range(2) for d in range(2)]

    def add2(A_):
        return [f"v_add_f32 v{A_}, v{A_}, v{A_+1}", f"v_add_f32 v{A_+2}, v{A_+2}, v{A_+3}"]

    def cvt(p):
        A_, B_ = acc(2 * p), acc(2 * p + 1)
        return [f"v_cvt_pk_bf16_f32 v{B_+3}, v{A_+2}, v{B_+2}", f"v_cvt_pk_bf16_f32 v{B_+2}, v{A_}, v{B_}"]

    def trans(p, wreg, dst):
        return [f"ds_write_b64 v{V_TW}, {vr(wreg,2)} offset:{640*p}", f"ds_read_b64_tr_b16 {vr(dst,2)}, v{V_TRD} offset:{640*p}"]

    def sstep(sg, tb, mk):
        B = [vr(XK + 16 * sg, 8), vr(XK + 16 * sg + 8, 8), vr(mk, 8)]
        return [smf(SA + 4 * t, tb, B[t]) for t in range(3)]

    pre = {n: [] for n in range(35)}
    side = {n: [] for n in range(35)}
    for u in range(5):
        pre[u].append(f"s_waitcnt lgkmcnt({4-u})")
    mk = mkreads(MK0, V_MK0)
    side[5] += ["s_waitcnt vmcnt(0)", mk[0]]
    side[6] += [mk[1]]; side[7] += [mk[2]]; side[10] += [mk[3]]
    for p in range(3):
        n0 = 10 * p
        x = add2(acc(2 * p)); side[n0 + 8].append(x[0]); side[n0 + 9].append(x[1])
        x = add2(acc(2 * p + 1)); side[n0 + 13].append(x[0]); side[n0 + 14].append(x[1])
        if p < 2:
            x = cvt(p); side[n0 + 15].append(x[0]); side[n0 + 16].append(x[1])
            x = trans(p, acc(2 * p + 1) + 2, TB0 + 2 * p); side[n0 + 17].append(x[0]); side[n0 + 18].append(x[1])
    mk = mkreads(MK1, V_MK1)
    side[29] += mk[0:2]
    side[30] += mk[2:4]
    n = 0
    for jj in range(7):
        for u in range(2, 7):
            for s_ in pre[n]:
                a(s_)
            a(smf(acc(jj), MF + 4 * u, W(jj, u)))
            for s_ in side[n]:
                a(s_)
            n += 1
    for s_ in cvt(2) + trans(2, acc(5) + 2, TB1):
        a(s_)
    s0 = sstep(0, TB0, MK0)
    L = acc(6)
    for s_ in add2(L):
        a(s_)
    a(f"v_cvt_pk_bf16_f32 v{L+3}, v{L+2}, v{L+2}")
    a(f"v_cvt_pk_bf16_f32 v{L+2}, v{L}, v{L}")
    for s_ in trans(3, L + 2, TB1 + 2):
        a(s_)
    a("s_waitcnt lgkmcnt(4)")
    for k, s_ in enumerate(s0):
        a(s_)
        for r in range(3 * k, min(3 * k + 3, 8)):
            a(f"v_and_b32 v{MK1+r}, v{MK1+r}, v{V_M0+(r&1)}")
    a("s_waitcnt lgkmcnt(0)")
    for s_ in sstep(1, TB1, MK1):
        a(s_)
    stamp(a, 1, diag)
    Q0, Q1 = acc(4), acc(5)
    for t in range(3):
        a(f"v_add_f32 v{Q0+t}, v{SA+4*t}, v{SA+4*t+1}")
        a(f"v_add_f32 v{Q1+t}, v{SA+4*t+2}, v{SA+4*t+3}")
    a(f"ds_write_b96 v{V_PW}, {vr(Q0,3)}")
    a(f"ds_write_b96 v{V_PW}, {vr(Q1,3)} offset:256")
    a("s_waitcnt lgkmcnt(0)")
    a("s_barrier")
    R = ACC
    for w in range(4):
        a(f"ds_read_b128 {vr(R+4*w,4)}, v{V_PR} offset:{2048*w}")
    a(f"""
    s_waitcnt lgkmcnt(2)
    v_pk_add_f32 {vr(R,2)}, {vr(R,2)}, {vr(R+4,2)}
    v_add_f32 v{R+2}, v{R+2}, v{R+6}
    s_waitcnt lgkmcnt(0)
    v_pk_add_f32 {vr(R+8,2)}, {vr(R+8,2)}, {vr(R+12,2)}
    v_add_f32 v{R+10}, v{R+10}, v{R+14}
    v_pk_add_f32 {vr(R,2)}, {vr(R,2)}, {vr(R+8,2)}
    v_add_f32 v{R+2}, v{R+2}, v{R+10}
    v_max3_f32 v{R+4}, v{R}, v{R+1}, v{R+2}
    """)
    for d in DPPS:
        a(f"v_max_f32_dpp v{R+4}, v{R+4}, v{R+4} {d} row_mask:0xf bank_mask:0xf")
    for r in range(3):
        a(f"v_sub_f32 v{R+r}, v{R+r}, v{R+4}")
    for r in range(3):
        a(f"v_exp_f32 v{R+r}, v{R+r}")
    a(f"v_add_f32 v{R+5}, v{R}, v{R+1}")
    a(f"v_add_f32 v{R+5}, v{R+5}, v{R+2}")
    for d in DPPS:
        a(f"v_add_f32_dpp v{R+5}, v{R+5}, v{R+5} {d} row_mask:0xf bank_mask:0xf")
    a(f"v_rcp_f32 v{R+5}, v{R+5}")
    a(f"""
    v_mul_f32 v{R}, v{R}, v{R+5}
    v_mul_f32 v{R+1}, v{R+1}, v{R+5}
    v_cvt_pk_bf16_f32 v{R+6}, v{R}, v{R+1}
    buffer_store_dword v{R+6}, v{V_PA0}, {WS}, s{S_PSOFF} offen
    v_mul_f32 v{R+2}, v{R+2}, v{R+5}
    v_cvt_pk_bf16_f32 v{R+7}, v{R+2}, v{R+2}
    buffer_store_dword v{R+7}, v{V_PA1}, {WS}, s{S_PSOFF} offen
    s_cmp_eq_u32 s{S_FB}, 0
    s_cbranch_scc1 L_T_nofb
    buffer_store_dword v{R+6}, v{V_PA0}, {WS}, s{S_PSOFF} offen sc1
    buffer_store_dword v{R+7}, v{V_PA1}, {WS}, s{S_PSOFF} offen sc1
    L_T_nofb:
    """)
    stamp(a, 2, diag)
    if OPT["lat"]:
        a("s_waitcnt vmcnt(0) lgkmcnt(0)")
        stamp(a, 3, diag)
    if OPT["clk"] and diag:
        a(f"s_memtime s[{S_STP+6}:{S_STP+7}]")
        a(f"s_memrealtime s[{S_STP+8}:{S_STP+9}]")
    if not OPT["nox"]:
        xloads()
    if OPT["lat"]:
        a("s_waitcnt vmcnt(0)")
        stamp(a, 4, diag)
    stamp_store(a, 5, diag, R + 8, R + 9)
    zero()
    if OPT["sleepT"]:
        a(f"s_sleep {OPT['sleepT']}")
    if OPT["adapt"]:
        adapt(a, S_SLP, S_SL2)
        backoff(a, S_SLP)
    a(f"""
    s_add_u32 s{S_MEMOFF}, s{S_MEMOFF}, {MEMS_STEP}
    s_add_u32 s{S_PSOFF}, s{S_PSOFF}, {PS_STEP}
    s_add_u32 s{S_STEP}, s{S_STEP}, 1
    s_cmp_lt_u32 s{S_STEP}, 63
    s_cbranch_scc1 L_T_step
    s_cmp_lg_u32 s{S_ROLE}, 0
    s_cbranch_scc1 L_T_end
    v_mov_b32 v20, {EP_OFF}
    v_mov_b32 v21, s{S_EP}
    s_mov_b64 exec, 1
    buffer_store_dword v21, v20, {WS}, 0 offen sc1
    s_mov_b64 exec, -1
    L_T_end:
    s_waitcnt vmcnt(0)
    """)
    evt(a, 3, diag, 20, 21)
    a("s_endpgm")


def gen_V(a, diag=False):
    VXB, VPB, PF, WLB = 80, 112, 128, 140
    YA = ACC
    V_L16, V_PQ, V_PW, V_PR, V_MS, V_MN, V_WLA, V_FL = range(9, 17)
    NREG = 56 - NWL

    def order(un, u):
        return (u * 8 + un) if u < 2 else 16 + un * 5 + (u - 2)

    def ldsk(o):
        n = o - 16
        return n // 3 - 1 if (n >= 5 and n % 3 == 2) else None

    def Wreg(o):
        r = o - sum(1 for q in range(o) if ldsk(q) is not None)
        assert r < NREG
        return ar(8 * r, 8) if r < 32 else vr(160 + 8 * (r - 32), 8)

    a.label("L_role_V")
    a.c("V role: column slice c = S_ROLE-16; unit un = 2*hl + t")
    evt(a, 1, diag, 20, 21)
    common_setup(a)
    S_C = 80
    a(f"""
    s_sub_u32 s{S_C}, s{S_ROLE}, 16
    v_lshlrev_b32 v{V_L16}, 4, v{LN}
    s_mul_i32 s{S_XB}, s{S_WAVE}, {NWL*2048}
    s_add_u32 s{S_XB}, s{S_XB}, {V_WL}
    v_add_u32 v{V_WLA}, s{S_XB}, v{V_L16}
    s_lshl_b32 s{S_T3}, s{S_WAVE}, 2
    s_mul_i32 s{S_T3}, s{S_T3}, {28*14*FR}
    s_mul_i32 s{S_T0}, s{S_C}, {2*14*FR}
    s_add_u32 s{S_T3}, s{S_T3}, s{S_T0}
    s_add_u32 s{S_T3}, s{S_T3}, {WB_OFF}
    """)
    fwait(a, f"s_lshr_b32 s{S_T1}, s{S_C}, 1\ns_add_u32 s{S_T1}, s{S_T1}, 7\nv_mul_u32_u24 v20, 14, v{L15}\nv_add_u32 v20, s{S_T1}, v20\nv_lshlrev_b32 v20, 6, v20", 20, OPT["csl"])
    evt(a, 4, diag, 20, 21)
    a(f"v_sub_u32 v43, 0, v{V_L16}")
    for u in range(7):
        a(f"v_lshl_add_u32 v{ACC+u}, v{V_FA+u}, 1, v43")
    a(f"s_mov_b32 m0, s{S_XB}")
    for un in range(8):
        hl, t = un >> 1, un & 1
        a(f"s_add_u32 s{S_T0}, s{S_T3}, {(hl*28+t)*14*FR}")
        for u in range(7):
            o = order(un, u)
            if ldsk(o) is None:
                w = Wreg(o)
                k, base = w[0], int(w[2:].split(":")[0])
                a(f"buffer_load_dwordx4 {k}[{base}:{base+3}], v{ACC+u}, {WS}, s{S_T0} offen")
                a(f"buffer_load_dwordx4 {k}[{base+4}:{base+7}], v{ACC+u}, {WS}, s{S_T0} offen offset:1024")
            else:
                a(f"buffer_load_dwordx4 v{ACC+u}, {WS}, s{S_T0} offen lds")
                a(f"buffer_load_dwordx4 v{ACC+u}, {WS}, s{S_T0} offen offset:1024 lds")
                a(f"s_add_u32 m0, m0, 2048")
    a(f"""
    s_mul_i32 s{S_T0}, s{S_WAVE}, {PS_W}
    v_add_u32 v{V_PQ}, s{S_T0}, v{V_L16}
    s_lshl_b32 s{S_T0}, s{S_WAVE}, 10
    s_add_u32 s{S_T0}, s{S_T0}, {V_PART}
    v_add_u32 v{V_PW}, s{S_T0}, v{V_L16}
    v_and_b32 v20, 1, v{G4}
    v_lshlrev_b32 v21, 4, v{L15}
    v_lshl_add_u32 v21, v20, 3, v21
    s_lshl_b32 s{S_T0}, s{S_WAVE}, 8
    s_add_u32 s{S_T0}, s{S_T0}, {V_PART}
    v_add_u32 v{V_PR}, s{S_T0}, v21
    s_lshl_b32 s{S_T0}, s{S_WAVE}, 1
    v_add_u32 v22, s{S_T0}, v20
    v_lshrrev_b32 v23, 3, v{L15}
    v_lshlrev_b32 v23, 8, v23
    v_lshl_add_u32 v23, v22, 5, v23
    v_and_b32 v24, 1, v{L15}
    v_lshl_add_u32 v23, v24, 4, v23
    v_bfe_u32 v24, v{L15}, 1, 2
    v_lshl_add_u32 v23, v24, 2, v23
    s_lshl_b32 s{S_T0}, s{S_C}, 9
    v_add_u32 v23, s{S_T0}, v23
    v_mul_u32_u24 v24, 896, v22
    v_lshl_add_u32 v24, v{L15}, 2, v24
    s_lshl_b32 s{S_T0}, s{S_C}, 6
    v_add_u32 v24, s{S_T0}, v24
    v_mov_b32 v25, {OOB}
    v_cmp_gt_u32 vcc, 32, v{LN}
    v_cndmask_b32 v{V_MS}, v25, v23, vcc
    v_cndmask_b32 v{V_MN}, v25, v24, vcc
    v_and_b32 v24, 3, v{LN}
    s_lshl_b32 s{S_T0}, s{S_WAVE}, 2
    v_add_u32 v24, s{S_T0}, v24
    v_mul_u32_u24 v24, 14, v24
    v_add_u32 v24, s{S_C}, v24
    v_lshlrev_b32 v24, 6, v24
    v_add_u32 v{V_FL}, {PROG_OFF}, v24
    s_mov_b32 s{S_RDY}, 0
    s_mov_b32 s{S_SLP}, 0
    s_mov_b32 s{S_MN}, {0}
    s_lshl_b32 s{S_T0}, s{S_WAVE}, 2
    s_mul_i32 s{S_T0}, s{S_T0}, {28*FR}
    s_lshl_b32 s{S_T1}, s{S_C}, 11
    s_add_u32 s{S_T0}, s{S_T0}, s{S_T1}
    s_add_u32 s{S_XO}, s{S_T0}, {VX_OFF}
    """)
    stamp_setup(a, diag)
    for r in range(32):
        a(f"v_mov_b32 v{ACC+r}, 0")
    kwait(a, 20)
    chain_mode(a, 20, 21)
    fb_fixup(a, 20)
    a("s_waitcnt vmcnt(0) lgkmcnt(0)")
    evt(a, 2, diag, 20, 21)
    a("s_barrier")

    acc = lambda un: ACC + 4 * un
    a.label("L_V_step")
    poll(a, mem_polls(), range(MF, MF + 8), depth2=False, sleep=OPT["sleepVm"])
    stamp(a, 0, diag)
    a(f"""
    s_cmp_lt_u32 s{S_STEP}, s{S_RDY}
    s_cbranch_scc1 L_V_vxok
    s_mov_b32 s{S_CNT}, s{S_LIM}
    L_V_vxpoll:
    buffer_load_dwordx4 {vr(PF,4)}, v{V_FL}, {WS}, 0 offen sc1
    s_waitcnt vmcnt(0)
    v_min3_u32 v{V_TMP}, v{PF}, v{PF+1}, v{PF+2}
    v_min_u32 v{V_TMP}, v{V_TMP}, v{PF+3}
    v_readlane_b32 s{S_T0}, v{V_TMP}, 0
    v_readlane_b32 s{S_T1}, v{V_TMP}, 1
    v_readlane_b32 s{S_T2}, v{V_TMP}, 2
    v_readlane_b32 s{S_T3}, v{V_TMP}, 3
    s_min_u32 s{S_T0}, s{S_T0}, s{S_T1}
    s_min_u32 s{S_T2}, s{S_T2}, s{S_T3}
    s_min_u32 s{S_RDY}, s{S_T0}, s{S_T2}
    s_lshl_b32 s{S_RDY}, s{S_RDY}, 2
    s_cmp_lt_u32 s{S_STEP}, s{S_RDY}
    s_cbranch_scc1 L_V_vxok
    s_sleep 4
    s_sub_u32 s{S_CNT}, s{S_CNT}, 1
    s_cmp_lg_u32 s{S_CNT}, 0
    s_cbranch_scc1 L_V_vxpoll
    s_mov_b32 s{S_LIM}, 1
    L_V_vxok:
    """)
    vx = []
    for hl in range(4):
        vx.append([f"s_add_u32 s{S_T0}, s{S_XO}, {hl*28*FR}",
                   f"buffer_load_dwordx4 {vr(VXB+4*hl,4)}, v{V_L16}, {WS}, s{S_T0} offen sc1"])
        vx.append([f"buffer_load_dwordx4 {vr(VXB+16+4*hl,4)}, v{V_L16}, {WS}, s{S_T0} offen offset:1024 sc1"])
    if OPT["novx"]:
        vx = [["s_nop 0"] for _ in vx]
    own = [smf(acc(un), MF + 4 * u, Wreg(order(un, u))) for u in range(2) for un in range(8)]
    rd = [f"ds_read_b128 {vr(MF+4*u,4)}, v{V_FA+u}" for u in range(2, 7)]
    wr = [f"ds_write_b64 v{V_FA+u}, {vr(MF+4*u+2*k,2)} offset:{8*k}" for u in range(2) for k in range(2)]
    for k in range(16):
        if k == 10:
            a("s_waitcnt lgkmcnt(0)")
            a("s_barrier")
            a(rd.pop(0))
        a(own[k])
        if k < 4:
            a(wr[k])
        elif k < 10:
            for s_ in vx.pop(0):
                a(s_)
        elif rd:
            a(rd.pop(0))
        else:
            for s_ in vx.pop(0):
                a(s_)
    a(f"s_add_u32 s{S_XO}, s{S_XO}, {VX_STEP}")

    def wlread(k):
        b = WLB + 8 * (k & 1)
        return [f"ds_read_b128 {vr(b,4)}, v{V_WLA} offset:{k*2048}", f"ds_read_b128 {vr(b+4,4)}, v{V_WLA} offset:{k*2048+1024}"]

    def cvt(un):
        hl, t = un >> 1, un & 1
        A_ = acc(un)
        return [f"v_cvt_pk_bf16_f32 v{VPB+8*t+2*hl}, v{A_}, v{A_+1}", f"v_cvt_pk_bf16_f32 v{VPB+8*t+2*hl+1}, v{A_+2}, v{A_+3}"]

    side = {n: [] for n in range(41)}
    pre = {n: [] for n in range(40)}
    x = wlread(0) + wlread(1)
    for k in range(4):
        side[k].append(x[k])
    for u in range(5):
        pre[u].append(f"s_waitcnt lgkmcnt({4 if u < 4 else 4})" if u >= 1 else "s_waitcnt lgkmcnt(4)")
    for un in range(7):
        x = cvt(un)
        side[5 * un + 9].append(x[0]); side[5 * un + 10].append(x[1])
    for r in range(8):
        side[21 + 2 * r].append(f"v_mov_b32 v{YA+r}, 0")
    n = 0
    for un in range(8):
        for u in range(2, 7):
            o = order(un, u)
            for s_ in pre[n]:
                a(s_)
            if ldsk(o) is None:
                a(smf(acc(un), MF + 4 * u, Wreg(o)))
            else:
                k = ldsk(o)
                a(f"s_waitcnt lgkmcnt({2 if k + 1 < NWL else 0})")
                a(smf(acc(un), MF + 4 * u, vr(WLB + 8 * (k & 1), 8)))
                if k + 2 < NWL:
                    x = wlread(k + 2)
                    side[n].insert(0, x[0]); side[n + 1].insert(0, x[1])
            for s_ in side[n]:
                a(s_)
            n += 1
    for s_ in side[40] + cvt(7):
        a(s_)
    stamp(a, 1, diag)
    if OPT["sleepV"]:
        a(f"s_sleep {OPT['sleepV']}")
    if OPT["adapt"]:
        backoff(a, S_SLP)
    P = [f"buffer_load_dwordx4 {vr(PF+4*q,4)}, v{V_PQ}, {WS}, s{S_PSOFF} offen offset:{1024*q} sc1" for q in range(3)]
    ys = [[smf(YA + 4 * t, PF + 4 * q, vr(VXB + 16 * t + 8 * q, 8) if q < 2 else vr(VPB + 8 * t, 8)) for t in range(2)] for q in range(3)]
    if OPT["lightV"]:
        light(a, P[2], PF + 8, "L_V_light")
    a(f"s_mov_b32 s{S_CNT}, s{S_LIM}")
    for l in P:
        a(l)
    a.label("L_V_pollA")
    for l in P:
        a(l)
    a("s_waitcnt vmcnt(5)")
    chk4(a, PF, "polled_V")
    retry(a, "L_V_pollA")
    a.label("polled_V")
    a(ys[0][0]); a(ys[0][1])
    a("s_waitcnt vmcnt(4)")
    chk4(a, PF + 4, "L_V_c0")
    a(f"s_mov_b32 s{S_CNT}, s{S_LIM}")
    a.label("L_V_pollB")
    a(P[1]); a(P[2])
    a("s_waitcnt vmcnt(3)")
    chk4(a, PF + 4, "L_V_cb")
    retry(a, "L_V_pollB")
    a.label("L_V_cb")
    a(ys[1][0]); a(ys[1][1])
    a("s_waitcnt vmcnt(2)")
    a("s_branch L_V_cchk")
    a.label("L_V_c0")
    a(ys[1][0]); a(ys[1][1])
    a("s_waitcnt vmcnt(3)")
    a.label("L_V_cchk")
    chk4(a, PF + 8, "L_V_pok")
    a(f"s_mov_b32 s{S_CNT}, s{S_LIM}")
    a.label("L_V_pollC")
    a(P[2])
    a("s_waitcnt vmcnt(1)")
    chk4(a, PF + 8, "L_V_pok")
    retry(a, "L_V_pollC")
    a.label("L_V_pok")
    a(ys[2][0]); a(ys[2][1])
    stamp(a, 2, diag)
    Y = ACC + 8
    a(f"""
    s_add_u32 s{S_MEMOFF}, s{S_MEMOFF}, {MEMS_STEP}
    v_add_f32 v{Y}, v{YA}, v{YA+1}
    v_add_f32 v{Y+2}, v{YA+2}, v{YA+3}
    v_add_f32 v{Y+1}, v{YA+4}, v{YA+5}
    v_add_f32 v{Y+3}, v{YA+6}, v{YA+7}
    ds_write_b128 v{V_PW}, {vr(Y,4)}
    s_waitcnt lgkmcnt(0)
    s_barrier
    """)
    R = ACC + 12
    for w in range(4):
        a(f"ds_read_b64 {vr(R+2*w,2)}, v{V_PR} offset:{1024*w}")
    a(f"""
    s_waitcnt lgkmcnt(2)
    v_pk_add_f32 {vr(R,2)}, {vr(R,2)}, {vr(R+2,2)}
    s_waitcnt lgkmcnt(0)
    v_pk_add_f32 {vr(R+4,2)}, {vr(R+4,2)}, {vr(R+6,2)}
    v_pk_add_f32 {vr(R,2)}, {vr(R,2)}, {vr(R+4,2)}
    v_cvt_pk_bf16_f32 v{R+2}, v{R}, v{R+1}
    buffer_store_dword v{R+2}, v{V_MS}, {WS}, s{S_MEMOFF} offen
    {"" if OPT["nomn"] else f"buffer_store_dword v{R+2}, v{V_MN}, {WS}, s{S_MN} offen sc1"}
    s_cmp_lg_u32 s{S_STEP}, {62 if OPT["direct"] else 99}
    s_cbranch_scc1 L_V_nodir
    s_add_u32 s{S_T0}, s{S_MEMOFF}, {MEMR_OFF-MEMS_OFF}
    buffer_store_dword v{R+2}, v{V_MS}, {WS}, s{S_T0} offen sc1
    L_V_nodir:
    s_cmp_eq_u32 s{S_FB}, 0
    s_cbranch_scc1 L_V_nofb
    buffer_store_dword v{R+2}, v{V_MS}, {WS}, s{S_MEMOFF} offen sc1
    L_V_nofb:
    """)
    stamp(a, 3, diag)
    if OPT["adapt"]:
        adapt(a, S_SLP, S_CNT)
    if OPT["vdelay"]:
        a(f"s_sleep {OPT['vdelay']}")
    stamp_store(a, 6, diag, R + 4, R + 5)
    for r in range(32):
        if ACC + r != R + 2:
            a(f"v_mov_b32 v{ACC+r}, 0")
    a(f"v_mov_b32 v{R+2}, 0")
    a(f"""
    s_add_u32 s{S_MN}, s{S_MN}, 0
    s_add_u32 s{S_PSOFF}, s{S_PSOFF}, {PS_STEP}
    s_add_u32 s{S_STEP}, s{S_STEP}, 1
    s_cmp_lt_u32 s{S_STEP}, 63
    s_cbranch_scc1 L_V_step
    s_waitcnt vmcnt(0)
    """)
    evt(a, 3, diag, 20, 21)
    a("s_endpgm")


def gen_warm(a):
    LEAD = OPT["lead"]
    a.label("L_role_W")
    a(f"v_and_b32 v{LN}, 63, v0")
    kwait(a, 20)
    chain_mode(a, 20, 21)
    fb_fixup(a, 20)
    a(f"""
    v_and_b32 v{LN}, 63, v0
    s_mov_b32 s{S_LIM}, {SPIN_LIMIT}
    s_mov_b32 s{S_MEMOFF}, {MEMS_OFF+MEMS_STEP}
    s_cmp_eq_u32 s{S_ROLE}, 31
    s_cbranch_scc1 L_W_warm
    s_lshl_b32 s{S_T0}, s{S_WAVE}, 11
    s_min_u32 s{S_T0}, s{S_T0}, 5120
    v_lshl_add_u32 v6, v{LN}, 4, s{S_T0}
    s_mov_b32 s{S_STEP}, 1
    v_mov_b32 v8, {MFLAG_OFF}
    L_R_step:
    s_mov_b32 s{S_CNT}, s{S_LIM}
    L_R_poll:
    buffer_load_dwordx4 v[20:23], v6, {WS}, s{S_MEMOFF} offen sc1
    buffer_load_dwordx4 v[24:27], v6, {WS}, s{S_MEMOFF} offen offset:1024 sc1
    s_waitcnt vmcnt(0)
    v_max3_u32 v5, v20, v21, v22
    v_max3_u32 v5, v5, v23, v24
    v_max3_u32 v5, v5, v25, v26
    v_max_u32 v5, v5, v27
    v_cmp_eq_u32 vcc, -1, v5
    s_cbranch_vccz L_R_go
    s_sleep 2
    s_sub_u32 s{S_CNT}, s{S_CNT}, 1
    s_cmp_lg_u32 s{S_CNT}, 0
    s_cbranch_scc1 L_R_poll
    s_mov_b32 s{S_LIM}, 1
    L_R_go:
    s_add_u32 s{S_T0}, s{S_MEMOFF}, {MEMR_OFF-MEMS_OFF}
    buffer_store_dwordx4 v[20:23], v6, {WS}, s{S_T0} offen sc1
    buffer_store_dwordx4 v[24:27], v6, {WS}, s{S_T0} offen offset:1024 sc1
    s_add_u32 s{S_MEMOFF}, s{S_MEMOFF}, {MEMS_STEP}
    v_mov_b32 v7, s{S_STEP}
    s_waitcnt vmcnt(0)
    s_barrier
    s_cmp_lg_u32 s{S_WAVE}, 0
    s_cbranch_scc1 L_R_nf
    s_mov_b64 exec, 1
    buffer_store_dword v7, v8, {WS}, 0 offen sc1
    s_mov_b64 exec, -1
    L_R_nf:
    s_sleep {OPT["rsleep"]}
    s_add_u32 s{S_STEP}, s{S_STEP}, 1
    s_cmp_lt_u32 s{S_STEP}, 64
    s_cbranch_scc1 L_R_step
    s_waitcnt vmcnt(0)
    """)
    evt(a, 5, gpre.DIAG, 20, 21)
    a(f"""
    s_endpgm
    L_W_warm:
    """)
    for k in range(4):
        fwait(a, f"v_lshlrev_b32 v20, 6, v{LN}\nv_add_u32 v20, {4096*k}, v20", 20)
    a(f"""
    v_mov_b32 v20, {GO_OFF}
    v_mov_b32 v21, s{S_EP}
    s_mov_b64 exec, 1
    buffer_store_dword v21, v20, {WS}, 0 offen sc1
    s_mov_b64 exec, -1
    v_lshlrev_b32 v2, 7, v{LN}
    v_mov_b32 v9, 0
    s_lshl_b32 s80, s{S_WAVE}, 13
    s_add_u32 s80, s80, {XK_OFF}
    s_sub_u32 s{S_T0}, s{S_WAVE}, 1
    s_mul_i32 s81, s{S_T0}, 6144
    s_add_u32 s81, s81, {PS_OFF}
    s_mov_b32 s82, {PS_STEP}
    s_cmp_eq_u32 s{S_WAVE}, 0
    s_cselect_b32 s81, {MEMS_OFF}, s81
    s_cselect_b32 s82, {MEMS_STEP}, s82
    s_cmp_eq_u32 s{S_WAVE}, 3
    s_cselect_b32 s81, {OOB}, s81
    s_cselect_b32 s82, 0, s82
    s_mov_b32 s{S_STEP}, 0
    L_W_step:
    s_cmp_lt_u32 s{S_STEP}, {LEAD+1}
    s_cbranch_scc1 L_W_paced
    s_mov_b32 s{S_CNT}, s{S_LIM}
    L_W_pace:
    buffer_load_dword v5, v9, {WS}, s{S_MEMOFF} offen sc1
    s_waitcnt vmcnt(0)
    v_cmp_eq_u32 vcc, -1, v5
    s_cbranch_vccz L_W_paced2
    s_sleep 4
    s_sub_u32 s{S_CNT}, s{S_CNT}, 1
    s_cmp_lg_u32 s{S_CNT}, 0
    s_cbranch_scc1 L_W_pace
    s_mov_b32 s{S_LIM}, 1
    L_W_paced2:
    s_add_u32 s{S_MEMOFF}, s{S_MEMOFF}, {MEMS_STEP}
    L_W_paced:
    buffer_load_dword v8, v2, {WS}, s80 offen
    buffer_load_dword v10, v2, {WS}, s81 offen sc1
    s_add_u32 s80, s80, {XK_STEP}
    s_add_u32 s81, s81, s82
    s_add_u32 s{S_STEP}, s{S_STEP}, 1
    s_cmp_lt_u32 s{S_STEP}, 64
    s_cbranch_scc1 L_W_step
    s_waitcnt vmcnt(0)
    s_endpgm
    """)


def cnt_addr(a, v, ln):
    a(f"""
    v_and_b32 v{v}, 15, v{ln}
    v_cmp_eq_u32 vcc, 8, v{v}
    v_lshlrev_b32 v{v}, 5, v{v}
    v_min_u32 v{v}, 252, v{v}
    v_cndmask_b32 v{v}, v{v}, 28, vcc
    """)


def wait_all(a):
    top, done = a.newlabel("wa"), a.newlabel("wad")
    cnt_addr(a, 4, 0)
    a(f"""
    s_mov_b32 s{S_CNT}, {SPIN_LIMIT}
    {top}:
    buffer_load_dword v5, v4, {DBG}, 0 offen sc1
    s_waitcnt vmcnt(0)
    s_mov_b32 s{S_T0}, 0
    """)
    for x in range(9):
        a(f"v_readlane_b32 s{S_CNTS+x}, v5, {x}")
    for x in range(9):
        a(f"s_add_u32 s{S_T0}, s{S_T0}, s{S_CNTS+x}")
    a(f"""
    s_cmp_ge_u32 s{S_T0}, 256
    s_cbranch_scc1 {done}
    s_sleep 2
    s_sub_u32 s{S_CNT}, s{S_CNT}, 1
    s_cmp_lg_u32 s{S_CNT}, 0
    s_cbranch_scc1 {top}
    {done}:
    """)


def chain_mode(a, t0, t1):
    top, done = a.newlabel("cm"), a.newlabel("cmd")
    cnt_addr(a, t0, LN)
    a(f"""
    s_mov_b32 s{S_CNT}, {SPIN_LIMIT}
    {top}:
    buffer_load_dword v{t1}, v{t0}, {DBG}, 0 offen sc1
    s_waitcnt vmcnt(0)
    v_readlane_b32 s{S_T0}, v{t1}, 0
    s_mov_b32 s{S_FB}, 0
    s_cmp_ge_u32 s{S_T0}, {32 if NSLOT == 32 else 9999}
    s_cbranch_scc1 {done}
    s_mov_b32 s{S_FB}, 1
    """)
    for x in range(1, 9):
        a(f"v_readlane_b32 s{S_T2}, v{t1}, {x}")
        a(f"s_add_u32 s{S_T0}, s{S_T0}, s{S_T2}")
    a(f"""
    s_cmp_ge_u32 s{S_T0}, 256
    s_cbranch_scc1 {done}
    s_sleep 2
    s_sub_u32 s{S_CNT}, s{S_CNT}, 1
    s_cmp_lg_u32 s{S_CNT}, 0
    s_cbranch_scc1 {top}
    {done}:
    """)


def fb_fixup(a, t):
    lab = a.newlabel("nofix")
    a(f"""
    s_cmp_eq_u32 s{S_FB}, 0
    s_cbranch_scc1 {lab}
    buffer_wbl2 sc1
    s_waitcnt vmcnt(0)
    s_mov_b32 s89, {4*61}
    """)
    gpre.arrive(a, 89, t)
    cwait(a, [(4 * 61, 32)], t)
    a.label(lab)


def cwait(a, conds, t, sleep=16):
    top, done = a.newlabel("cw"), a.newlabel("cwd")
    off = lambda o: f"s{o[1:]}" if isinstance(o, str) else str(o)
    a(f"s_cmp_lg_u32 s{S_WAVE}, 0")
    a(f"s_cbranch_scc1 {done}")
    a(f"v_mov_b32 v{t}, {off(conds[0][0])}")
    a(f"v_mov_b32 v{t+1}, {conds[0][1]}")
    for k, (o, th) in enumerate(conds[1:], 1):
        if not isinstance(o, str):
            a(f"s_mov_b32 s{S_T0}, {o}")
            o = f"s{S_T0}"
        a(f"v_writelane_b32 v{t}, {o}, {k}")
        a(f"v_writelane_b32 v{t+1}, {th}, {k}")
    a(f"""
    s_mov_b32 s{S_CNT}, {SPIN_LIMIT}
    s_mov_b64 exec, 7
    {top}:
    buffer_load_dword v{t+2}, v{t}, {DBG}, 0 offen sc1
    s_waitcnt vmcnt(0)
    v_cmp_le_u32 vcc, v{t+1}, v{t+2}
    s_cmp_eq_u64 vcc, 7
    s_cbranch_scc1 {done}
    s_sleep {sleep}
    s_sub_u32 s{S_CNT}, s{S_CNT}, 1
    s_cmp_lg_u32 s{S_CNT}, 0
    s_cbranch_scc1 {top}
    {done}:
    s_mov_b64 exec, -1
    s_barrier
    """)


def fwait(a, addr_code, t, sleep=4):
    top, done = a.newlabel("fl"), a.newlabel("fld")
    a(f"s_cmp_lg_u32 s{S_WAVE}, 0")
    a(f"s_cbranch_scc1 {done}")
    a(addr_code)
    a(f"""
    s_mov_b32 s{S_CNT}, {SPIN_LIMIT}
    s_mov_b32 s{S_T0}, {FL_OFF}
    {top}:
    buffer_load_dword v{t+1}, v{t}, {WS}, s{S_T0} offen sc1
    s_waitcnt vmcnt(0)
    v_cmp_eq_u32 vcc, s{S_EP}, v{t+1}
    s_cmp_eq_u64 vcc, -1
    s_cbranch_scc1 {done}
    s_sleep {sleep}
    s_sub_u32 s{S_CNT}, s{S_CNT}, 1
    s_cmp_lg_u32 s{S_CNT}, 0
    s_cbranch_scc1 {top}
    {done}:
    s_barrier
    """)


def kwait(a, t):
    fwait(a, f"v_and_b32 v{t}, 31, v{LN}\nv_lshlrev_b32 v{t}, 6, v{t}\nv_add_u32 v{t}, {224*64+4}, v{t}", t)


def cw_a_off(a, dst, sh):
    a(f"""
    s_lshr_b32 s{dst}, s{sh}, 1
    s_lshl_b32 s{dst}, s{dst}, 5
    s_and_b32 s{S_T0}, s{sh}, 1
    s_lshl_b32 s{S_T0}, s{S_T0}, 2
    s_add_u32 s{dst}, s{dst}, s{S_T0}
    s_add_u32 s{dst}, s{dst}, 4
    """)


def cw_b_off(a, dst, sc):
    a(f"""
    s_lshr_b32 s{dst}, s{sc}, 1
    s_lshl_b32 s{dst}, s{dst}, 5
    s_add_u32 s{dst}, s{dst}, 12
    """)


NSLOT = 32


def gen_main_prologue(a, force_fb=False, diag=False):
    global NSLOT
    NSLOT = 13 if force_fb else 32
    a(f"""
    s_cmp_ge_u32 s2, 256
    s_cbranch_scc1 L_exit
    s_load_dwordx2 s[{S_X}:{S_X+1}], s[0:1], 0
    s_load_dwordx4 s[{S_OUT}:{S_OUT+3}], s[0:1], 104
    s_load_dwordx2 s[{S_WS}:{S_WS+1}], s[0:1], 120
    s_load_dwordx16 s[60:75], s[0:1], 8
    s_load_dwordx2 s[76:77], s[0:1], 96
    {'s_memrealtime s[90:91]' if diag else ''}
    v_lshrrev_b32 v1, 6, v0
    s_getreg_b32 s{S_T3}, hwreg(HW_REG_XCC_ID)
    v_readfirstlane_b32 s{S_WAVE}, v1
    s_and_b32 s{S_T3}, s{S_T3}, 15
    s_min_u32 s{S_T3}, s{S_T3}, 8
    s_lshl_b32 s{S_T0}, s{S_T3}, 5
    s_cmp_eq_u32 s{S_T3}, 8
    s_cselect_b32 s{S_T0}, 28, s{S_T0}
    v_mov_b32 v2, s{S_T0}
    v_accvgpr_write_b32 a255, 1
    s_mov_b32 s{SRD_WS+2}, 0x10000000
    s_mov_b32 s{SRD_WS+3}, 0x20000
    s_mov_b32 s{SRD_X+2}, {2048*896}
    s_mov_b32 s{SRD_X+3}, 0x20000
    s_mov_b32 s{SRD_DBG+2}, 256
    s_mov_b32 s{SRD_DBG+3}, 0x20000
    s_and_b32 s{S_T0}, s2, 7
    s_lshr_b32 s{S_T1}, s2, 3
    s_waitcnt lgkmcnt(0)
    s_mov_b32 s{SRD_WS}, s{S_WS}
    s_mov_b32 s{SRD_WS+1}, s{S_WS+1}
    s_mov_b32 s{SRD_X}, s{S_X}
    s_mov_b32 s{SRD_X+1}, s{S_X+1}
    s_mov_b32 s{SRD_DBG}, s{S_DBG}
    s_mov_b32 s{SRD_DBG+1}, s{S_DBG+1}
    v_mov_b32 v3, {EP_OFF}
    buffer_load_dword a254, v3, {WS}, 0 offen
    s_cmp_lg_u32 s{S_WAVE}, 0
    s_cbranch_scc1 L_noatom
    s_mov_b64 exec, 1
    buffer_atomic_add a255, v2, {DBG}, 0 offen sc0 sc1
    s_mov_b64 exec, -1
    L_noatom:
    s_cmp_eq_u32 s{S_T0}, 0
    s_cbranch_scc1 L_unit_misc
    s_sub_u32 s{S_T0}, s{S_T0}, 1
    s_lshl_b32 s{S_T0}, s{S_T0}, 5
    s_add_u32 s{S_T1}, s{S_T1}, s{S_T0}
    """)
    gpre.gen_ab(a, S_T1)
    a("s_branch L_unit_done")
    a.label("L_unit_misc")
    gpre.gen_misc(a, S_T1)
    a.label("L_unit_done")
    gpre.ev(a, 4)
    a("s_waitcnt vmcnt(0)")
    gpre.ev(a, 5)
    gpre.ev_flush(a)
    a(f"""
    v_accvgpr_read_b32 v3, a254
    v_add_u32 v3, 1, v3
    s_barrier
    v_readfirstlane_b32 s{S_EP}, v3
    s_cmp_lg_u32 s{S_WAVE}, 0
    s_cbranch_scc1 L_elect_wait
    v_mov_b32 v2, s89
    s_mov_b32 s{S_T0}, {FL_OFF}
    s_mov_b64 exec, 1
    buffer_store_dword v3, v2, {WS}, s{S_T0} offen sc1
    s_mov_b64 exec, -1
    v_accvgpr_read_b32 v3, a255
    v_readfirstlane_b32 s{S_T2}, v3
    s_lshl_b32 s{S_ROLE}, s{S_T3}, 5
    s_add_u32 s{S_ROLE}, s{S_ROLE}, s{S_T2}
    s_cmp_lt_u32 s{S_T2}, {NSLOT}
    s_cselect_b32 s{S_T0}, s{S_T3}, 99
    s_cmp_lt_u32 s{S_T0}, 8
    s_cbranch_scc0 L_overflow
    L_elect_done:
    v_mov_b32 v2, 0
    v_mov_b32 v3, s{S_ROLE}
    ds_write_b32 v2, v3
    s_waitcnt lgkmcnt(0)
    L_elect_wait:
    s_barrier
    v_mov_b32 v2, 0
    ds_read_b32 v3, v2
    s_waitcnt lgkmcnt(0)
    v_readfirstlane_b32 s{S_ROLE}, v3
    s_barrier
    """)
    if diag:
        a(f"""
        s_lshl_b32 s98, s{S_ROLE}, 2
        s_add_u32 s98, s98, s{S_WAVE}
        s_lshl_b32 s98, s98, 5
        s_add_u32 s98, s98, {EVT_OFF}
        v_mov_b32 v2, s90
        v_mov_b32 v3, 0
        s_mov_b64 exec, 1
        buffer_store_dword v2, v3, {WS}, s98 offen
        s_mov_b64 exec, -1
        """)
    a(f"""
    s_cmp_lt_u32 s{S_ROLE}, 16
    s_cbranch_scc1 L_role_T
    s_cmp_lt_u32 s{S_ROLE}, 30
    s_cbranch_scc1 L_role_V
    s_cmp_lt_u32 s{S_ROLE}, 32
    s_cbranch_scc1 L_role_W
    s_cmp_ge_u32 s{S_ROLE}, 256
    s_cbranch_scc1 L_exit
    """)


def gen_overflow(a):
    a.label("L_overflow")
    wait_all(a)
    a(f"""
    s_sub_u32 s{S_T1}, s{S_T2}, {NSLOT}
    s_cmp_lt_u32 s{S_T3}, 8
    s_cselect_b32 s{S_T1}, s{S_T1}, s{S_T2}
    """)
    for x in range(8):
        a(f"s_sub_u32 s{S_T0}, s{S_CNTS+x}, {NSLOT}")
        a(f"s_max_i32 s{S_T0}, s{S_T0}, 0")
        a(f"s_cmp_lt_u32 {x}, s{S_T3}")
        a(f"s_cselect_b32 s{S_T0}, s{S_T0}, 0")
        a(f"s_add_u32 s{S_T1}, s{S_T1}, s{S_T0}")
    a(f"s_mov_b32 s{S_ROLE}, 0xfff")
    for x in range(8):
        a(f"""
        s_min_u32 s{S_T0}, s{S_CNTS+x}, {NSLOT}
        s_sub_u32 s{S_T2}, 32, s{S_T0}
        s_add_u32 s{S_T0}, s{S_T0}, s{S_T1}
        s_add_u32 s{S_T0}, s{S_T0}, {32*x}
        s_cmp_lt_u32 s{S_T1}, s{S_T2}
        s_cselect_b32 s{S_ROLE}, s{S_T0}, s{S_ROLE}
        s_sub_u32 s{S_T1}, s{S_T1}, s{S_T2}
        """)
    a("s_branch L_elect_done")
```

```python
from asmlib import *
from layout import *
import gen_chain as gc
from gen_chain import (SRD_WS, SRD_X, S_WAVE, S_ROLE, S_LIM, S_CNT, S_STEP, S_T0, S_T1, S_T2, S_T3, S_OUT, WS, XS,
                       SPIN_LIMIT, OOB)
from gen_pre import f32hex, srd, LOG2E
import gen_pre as pre

S_H, S_C, S_RANK, S_FLG = 34, 35, 36, 37
LN, G, L15, L16, IDX, TMP = 1, 2, 3, 4, 5, 6
NEG = "0xf149f2ca"


def WBr(t, ks, n=4):
    return ar(56 * t + 4 * ks, n)


def WAr(t, ks):
    return ar(112 + 56 * t + 4 * ks, 4)


def flagwait(a, vaddr, vthr, vval, sleep=8, full=None):
    top, go = a.newlabel("fw"), a.newlabel("fgo")
    a(f"""
    s_mov_b32 s{S_CNT}, s{S_LIM}
    {top}:
    buffer_load_dword v{vval}, v{vaddr}, {WS}, 0 offen sc1
    s_waitcnt vmcnt(0)
    v_cmp_lt_u32 vcc, v{vthr}, v{vval}
    s_cmp_eq_u64 vcc, {"exec" if full else "-1"}
    s_cbranch_scc1 {go}
    s_sleep {sleep}
    s_sub_u32 s{S_CNT}, s{S_CNT}, 1
    s_cmp_lg_u32 s{S_CNT}, 0
    s_cbranch_scc1 {top}
    s_mov_b32 s{S_LIM}, 1
    {go}:
    """)


def mempoll(a, dst, soff, sleep=4):
    top, done = a.newlabel("mp"), a.newlabel("mpd")
    a(f"s_mov_b32 s{S_CNT}, s{S_LIM}")
    a(f"s_add_u32 s{S_T3}, s{soff}, 4096")
    a.label(top)
    for u in range(7):
        so = soff if u < 4 else S_T3
        a(f"buffer_load_dwordx4 {vr(dst+4*u,4)}, v{L16}, {WS}, s{so} offen offset:{(u&3)*1024} sc1")
    a("s_waitcnt vmcnt(0)")
    r = list(range(dst, dst + 28))
    a(f"v_max3_u32 v{TMP}, v{r[0]}, v{r[1]}, v{r[2]}")
    r = r[3:]
    while len(r) >= 2:
        a(f"v_max3_u32 v{TMP}, v{TMP}, v{r[0]}, v{r[1]}"); r = r[2:]
    a(f"v_max_u32 v{TMP}, v{TMP}, v{r[0]}")
    a(f"""
    v_cmp_eq_u32 vcc, -1, v{TMP}
    s_cbranch_vccz {done}
    s_sleep {sleep}
    s_sub_u32 s{S_CNT}, s{S_CNT}, 1
    s_cmp_lg_u32 s{S_CNT}, 0
    s_cbranch_scc1 {top}
    s_mov_b32 s{S_LIM}, 1
    {done}:
    """)


def xg_reduce(a, op, v, t):
    a(f"v_mov_b32 v{t}, v{v}")
    a(f"v_permlane16_swap_b32 v{v}, v{t}")
    a(f"{op} v{v}, v{v}, v{t}")
    a(f"v_mov_b32 v{t}, v{v}")
    a(f"v_permlane32_swap_b32 v{v}, v{t}")
    a(f"{op} v{v}, v{v}, v{t}")


def full_reduce(a, op, v, t):
    for d in gc.DPPS:
        a(f"{op}_dpp v{v}, v{v}, v{v} {d} row_mask:0xf bank_mask:0xf")
    xg_reduce(a, op, v, t)


def rbf(a, v):
    a(f"v_cvt_pk_bf16_f32 v{v}, v{v}, v{v}")
    a(f"v_and_b32 v{v}, 0xffff0000, v{v}")


def gen_helper(a, diag=False):
    global DIAG
    DIAG = diag
    a.c("helper: rank = role-32")
    gc.evt(a, 1, diag, 8, 9)
    a(f"s_sub_u32 s{S_RANK}, s{S_ROLE}, 32")
    gc.evt(a, 6, diag, 8, 9)
    a(f"""
    s_mul_i32 s{S_H}, s{S_RANK}, 4682
    s_lshr_b32 s{S_H}, s{S_H}, 16
    s_mul_i32 s{S_T0}, s{S_H}, 14
    s_sub_u32 s{S_C}, s{S_RANK}, s{S_T0}
    s_lshl_b32 s{S_FLG}, s{S_RANK}, 6
    s_add_u32 s{S_FLG}, s{S_FLG}, {PROG_OFF}
    s_mov_b32 s{S_LIM}, {SPIN_LIMIT}
    v_and_b32 v{LN}, 63, v0
    v_lshrrev_b32 v{G}, 4, v{LN}
    v_and_b32 v{L15}, 15, v{LN}
    v_lshlrev_b32 v{L16}, 4, v{LN}
    v_and_b32 v8, 1, v0
    v_cmp_eq_u32 vcc, 0, v8
    v_mov_b32 v8, 0xEEEE
    v_mov_b32 v9, 0x4444
    v_cndmask_b32 v{IDX}, v8, v9, vcc
    s_mul_i32 s{S_T0}, s{S_H}, 28
    s_lshl_b32 s{S_T1}, s{S_C}, 1
    s_add_u32 s{S_T0}, s{S_T0}, s{S_T1}
    s_mul_i32 s{S_T0}, s{S_T0}, {14*FR}
    s_add_u32 s{S_T1}, s{S_T0}, {WB_OFF}
    """)
    a(f"s_mov_b32 s45, s{S_T0}")
    gc.fwait(a, f"v_mov_b32 v8, {GO_OFF-FL_OFF}", 8, gc.OPT["hsl"])
    a(f"s_mov_b32 s{S_T0}, s45")
    gc.evt(a, 7, diag, 8, 9)
    a(f"""
    s_mul_i32 s{S_T2}, s{S_WAVE}, {14*FR}
    s_mov_b32 m0, s{S_T2}
    s_add_u32 s{S_T1}, s{S_T1}, s{S_T2}
    s_add_u32 s{S_T0}, s{S_T0}, s{S_T2}
    s_sub_u32 s{S_T0}, s{S_T0}, {28*FR}
    s_cmp_lt_u32 s{S_WAVE}, 2
    s_cselect_b32 s{S_T0}, s{S_T1}, s{S_T0}
    s_mov_b32 s{S_T1}, 14
    H_wl:
    buffer_load_dwordx4 v{L16}, {WS}, s{S_T0} offen lds
    s_add_u32 s{S_T0}, s{S_T0}, 1024
    s_add_u32 m0, m0, 1024
    s_sub_u32 s{S_T1}, s{S_T1}, 1
    s_cmp_lg_u32 s{S_T1}, 0
    s_cbranch_scc1 H_wl
    s_and_b32 s{S_T2}, s{S_RANK}, 31
    s_lshl2_add_u32 s{S_T2}, s{S_T2}, s{S_WAVE}
    s_mul_i32 s{S_T2}, s{S_T2}, {14*FR}
    s_add_u32 s{S_T2}, s{S_T2}, {XF_OFF}
    v_lshlrev_b32 v12, 7, v{LN}
    buffer_load_dword v13, v12, {WS}, s{S_T2} offen
    s_add_u32 s{S_T2}, s{S_T2}, 6144
    buffer_load_dword v14, v12, {WS}, s{S_T2} offen
    s_waitcnt vmcnt(0)
    s_barrier
    """)
    XB, AV, AT, OV = 32, 144, 160, 16
    S_XA, S_XB2, S_VO, S_TO = 45, 46, 47, 48
    a(f"""
    s_mul_i32 s{S_XA}, s{S_WAVE}, {28*FR}
    s_add_u32 s{S_XA}, s{S_XA}, {XF_OFF}
    """)

    def xload(ks, mt):
        f = mt * 14 + ks
        return [f"s_add_u32 s{S_T2}, s{S_XA}, {(f & ~3) * FR}",
                f"buffer_load_dwordx4 {vr(XB+8*ks+4*mt,4)}, v{L16}, {WS}, s{S_T2} offen offset:{(f&3)*FR}"]
    for ks in range(14):
        for mt in range(2):
            for s_ in xload(ks, mt):
                a(s_)
    for f in range(56):
        a(f"ds_read_b128 {ar(4*f,4)}, v{L16} offset:{f*FR}")
    a(f"""
    s_lshl_b32 s{S_T0}, s{S_WAVE}, 4
    s_add_u32 s{S_T0}, s{S_T0}, s{S_H}
    s_mul_i32 s{S_T0}, s{S_T0}, 14
    s_add_u32 s{S_T0}, s{S_T0}, s{S_C}
    s_lshl_b32 s{S_T0}, s{S_T0}, 11
    s_add_u32 s{S_VO}, s{S_T0}, {VX_OFF}
    s_add_u32 s{S_TO}, s{S_T0}, {TX_OFF}
    s_lshl_b32 s{S_T0}, s{S_WAVE}, 2
    v_mov_b32 v7, s{S_T0}
    s_mov_b32 s{S_STEP}, 0
    s_waitcnt vmcnt(0) lgkmcnt(0)
    """)
    gc.evt(a, 2, diag, 8, 9)
    a(f"""
    H_gemm:
    s_add_u32 s{S_XA}, s{S_XA}, {4*28*FR}
    s_cmp_eq_u32 s{S_STEP}, 15
    s_cselect_b32 s{S_XA}, {XF_OFF}, s{S_XA}
    v_mov_b32 v8, s{S_STEP}
    """)
    for ks in range(14):
        a(f"s_waitcnt vmcnt({30 if ks < 13 else 26})")
        z = ks == 0
        for mt in range(2):
            for t in range(2):
                d = AV + 8 * mt + 4 * t
                a(f"v_mfma_f32_16x16x32_bf16 {vr(d,4)}, {vr(XB+8*ks+4*mt,4)}, {WBr(t,ks)}, {'0' if z else vr(d,4)}")
            for t in range(2):
                d = AT + 8 * mt + 4 * t
                a(f"v_mfma_f32_16x16x32_bf16 {vr(d,4)}, {WAr(t,ks)}, {vr(XB+8*ks+4*mt,4)}, {'0' if z else vr(d,4)}")
            for s_ in xload(ks, mt):
                a(s_ if not gc.OPT["g_nold"] else "s_nop 0")
    a("s_mov_b64 exec, 1")
    a(f"buffer_store_dword v8, v7, {WS}, s{S_FLG} offen sc1")
    a("s_mov_b64 exec, -1")
    for t in range(2):
        o = OV + 4 * t
        for mt in range(2):
            d = AV + 8 * mt + 4 * t
            a(f"v_cvt_pk_bf16_f32 v{o+2*mt}, v{d}, v{d+1}")
            a(f"v_cvt_pk_bf16_f32 v{o+2*mt+1}, v{d+2}, v{d+3}")
        a(f"buffer_store_dwordx4 {vr(o,4)}, v{L16}, {WS}, s{S_VO} offen offset:{t*FR}{'' if gc.OPT['g_plain'] else ' sc1'}")
    for mt in range(2):
        o = OV + 8 + 4 * mt
        for t in range(2):
            d = AT + 8 * mt + 4 * t
            a(f"v_cvt_pk_bf16_f32 v{o+2*t}, v{d}, v{d+1}")
            a(f"v_cvt_pk_bf16_f32 v{o+2*t+1}, v{d+2}, v{d+3}")
        a(f"buffer_store_dwordx4 {vr(o,4)}, v{L16}, {WS}, s{S_TO} offen offset:{mt*FR}{'' if gc.OPT['g_plain'] else ' sc1'}")
    a(f"""
    s_add_u32 s{S_VO}, s{S_VO}, {4*VX_STEP}
    s_add_u32 s{S_TO}, s{S_TO}, {4*VX_STEP}
    s_add_u32 s{S_STEP}, s{S_STEP}, 1
    s_cmp_lt_u32 s{S_STEP}, 16
    s_cbranch_scc1 H_gemm
    v_mov_b32 v8, 16
    s_waitcnt vmcnt(0)
    s_mov_b64 exec, 1
    buffer_store_dword v8, v7, {WS}, s{S_FLG} offen sc1
    s_mov_b64 exec, -1
    """)
    gc.evt(a, 3, diag, 8, 9)
    a(f"""
    s_cmp_lt_u32 s{S_RANK}, 28
    s_cbranch_scc0 H_phase2
    """)
    gen_mod(a)
    a.label("H_phase2")
    gc.evt(a, 4, diag, 8, 9)
    a(f"""
    s_cmp_eq_u32 s{S_WAVE}, 0
    s_cbranch_scc1 H_vp
    s_cmp_eq_u32 s{S_WAVE}, 3
    s_cbranch_scc1 H_f2
    """)
    gen_f1(a)
    gen_vp(a)
    gen_f2(a)


def gen_mod(a):
    SG, SU, SD = 48, 52, 56
    S_IDX, S_RM = 60, 61
    a(f"""
    s_load_dwordx4 s[64:67], s[0:1], 72
    s_load_dwordx2 s[68:69], s[0:1], 88
    s_mov_b32 s{S_T0}, {RG_OFF}
    s_mov_b32 s{S_T1}, {RG_OFF+4096}
    """)
    R = 32
    for k in range(8):
        a(f"buffer_load_dwordx4 {vr(R+4*k,4)}, v{L16}, {WS}, s{S_T0 if k < 4 else S_T1} offen offset:{(k&3)*1024}")
    a("s_waitcnt lgkmcnt(0)")
    srd(a, SG, 64, 448 * 3584)
    srd(a, SU, 66, 448 * 3584)
    srd(a, SD, 68, 1792 * 896)
    a("s_waitcnt vmcnt(0)")
    a(f"v_max3_f32 v8, v{R}, v{R+1}, v{R+2}")
    for k in range(3, 31, 2):
        a(f"v_max3_f32 v8, v8, v{R+k}, v{R+k+1}")
    a(f"v_max_f32 v8, v8, v{R+31}")
    full_reduce(a, "v_max_f32", 8, 9)
    a(f"v_lshlrev_b32 v10, 2, v{LN}")
    a(f"v_mov_b32 v11, 0x7fffffff")
    for k in range(31, -1, -1):
        a(f"v_cmp_eq_f32 vcc, v8, v{R+k}")
        a(f"v_add_u32 v12, {256*(k>>2)+(k&3)}, v10")
        a(f"v_cndmask_b32 v11, v11, v12, vcc")
    full_reduce(a, "v_min_u32", 11, 9)
    a(f"""
    v_min_u32 v11, 2047, v11
    v_readfirstlane_b32 s{S_IDX}, v11
    v_readfirstlane_b32 s{S_RM}, v8
    v_lshrrev_b32 v12, 3, v{LN}
    v_and_b32 v13, 7, v{LN}
    v_lshlrev_b32 v14, 1, v12
    v_mul_u32_u24 v15, 3584, v12
    v_lshl_add_u32 v15, v13, 4, v15
    s_mul_i32 s{S_T0}, s{S_IDX}, 896
    s_mul_i32 s{S_T1}, s{S_WAVE}, 224
    s_add_u32 s{S_T0}, s{S_T0}, s{S_T1}
    s_mul_i32 s{S_T1}, s{S_WAVE}, {112*3584}
    s_lshl_b32 s{S_T2}, s{S_RANK}, 7
    s_add_u32 s{S_T1}, s{S_T1}, s{S_T2}
    """)
    XSEL, WG_, WU_, AC = 16, 32, 88, 144
    for i in range(14):
        a(f"buffer_load_ushort v{XSEL+i}, v14, {XS}, s{S_T0} offen offset:{16*i}")
    for i in range(14):
        a(f"buffer_load_dwordx4 {vr(WG_+4*i,4)}, v15, s[{SG}:{SG+3}], s{S_T1} offen")
        a(f"buffer_load_dwordx4 {vr(WU_+4*i,4)}, v15, s[{SU}:{SU+3}], s{S_T1} offen")
        a(f"s_add_u32 s{S_T1}, s{S_T1}, {8*3584}")
    for r in range(16):
        a(f"v_mov_b32 v{AC+r}, 0")
    for i in range(14):
        a(f"s_waitcnt vmcnt({26-2*i})")
        a(f"v_lshlrev_b32 v{XSEL+i}, 16, v{XSEL+i}")
        for m, base in enumerate((WG_, WU_)):
            for q in range(4):
                w = base + 4 * i + q
                a(f"v_lshlrev_b32 v8, 16, v{w}")
                a(f"v_and_b32 v9, 0xffff0000, v{w}")
                a(f"v_fmac_f32 v{AC+8*m+2*q}, v8, v{XSEL+i}")
                a(f"v_fmac_f32 v{AC+8*m+2*q+1}, v9, v{XSEL+i}")
    a(f"""
    s_lshl_b32 s{S_T0}, s{S_WAVE}, 12
    v_lshlrev_b32 v8, 9, v12
    v_lshl_add_u32 v8, v13, 5, v8
    v_add_u32 v8, s{S_T0}, v8
    ds_write_b128 v8, {vr(AC,4)}
    ds_write_b128 v8, {vr(AC+4,4)} offset:16
    ds_write_b128 v8, {vr(AC+8,4)} offset:256
    ds_write_b128 v8, {vr(AC+12,4)} offset:272
    s_lshl_b32 s{S_T0}, s{S_RANK}, 6
    s_lshl_b32 s{S_T1}, s{S_WAVE}, 4
    s_add_u32 s{S_T0}, s{S_T0}, s{S_T1}
    s_mul_i32 s{S_T0}, s{S_T0}, 896
    v_mov_b32 v9, {OOB}
    v_cmp_gt_u32 vcc, 56, v{LN}
    v_cndmask_b32 v9, v9, v{L16}, vcc
    """)
    WD = 32
    for i in range(16):
        a(f"buffer_load_dwordx4 {vr(WD+4*i,4)}, v9, s[{SD}:{SD+3}], s{S_T0} offen")
        a(f"s_add_u32 s{S_T0}, s{S_T0}, 896")
    a(f"""
    s_waitcnt lgkmcnt(0)
    s_barrier
    v_lshlrev_b32 v10, 2, v{LN}
    v_mov_b32 v12, 0
    v_mov_b32 v13, 0
    """)
    P = 100
    for half in range(4):
        for p in range(8):
            a(f"ds_read2_b32 {vr(P+2*p,2)}, v10 offset0:0 offset1:64")
            a(f"v_add_u32 v10, 512, v10")
        a("s_waitcnt lgkmcnt(0)")
        for p in range(8):
            a(f"v_add_f32 v12, v12, v{P+2*p}")
            a(f"v_add_f32 v13, v13, v{P+2*p+1}")
    rbf(a, 12)
    rbf(a, 13)
    a(f"""
    v_mul_f32 v14, {f32hex(-LOG2E)}, v12
    v_exp_f32 v14, v14
    v_add_f32 v14, 1.0, v14
    v_rcp_f32 v14, v14
    v_mul_f32 v12, v12, v14
    """)
    rbf(a, 12)
    a("v_mul_f32 v12, v12, v13")
    rbf(a, 12)
    a(f"s_lshl_b32 s{S_T1}, s{S_WAVE}, 4")
    for r in range(8):
        a(f"v_mov_b32 v{AC+r}, 0")
    for i in range(16):
        a(f"s_add_u32 s{S_T2}, s{S_T1}, {i}")
        a(f"v_readlane_b32 s{S_T0}, v12, s{S_T2}")
        a(f"s_waitcnt vmcnt({15-i})")
        for q in range(4):
            w = WD + 4 * i + q
            a(f"v_lshlrev_b32 v8, 16, v{w}")
            a(f"v_and_b32 v9, 0xffff0000, v{w}")
            a(f"v_fmac_f32 v{AC+2*q}, s{S_T0}, v8")
            a(f"v_fmac_f32 v{AC+2*q+1}, s{S_T0}, v9")
    a(f"""
    s_barrier
    s_lshl_b32 s{S_T0}, s{S_WAVE}, 11
    v_lshlrev_b32 v8, 5, v{LN}
    v_add_u32 v9, s{S_T0}, v8
    ds_write_b128 v9, {vr(AC,4)}
    ds_write_b128 v9, {vr(AC+4,4)} offset:16
    s_waitcnt lgkmcnt(0)
    s_barrier
    s_cmp_lg_u32 s{S_WAVE}, 0
    s_cbranch_scc1 H_mod_done
    """)
    for w in range(1, 4):
        a(f"ds_read_b128 {vr(P+8*w,4)}, v8 offset:{2048*w}")
        a(f"ds_read_b128 {vr(P+8*w+4,4)}, v8 offset:{2048*w+16}")
    a("s_waitcnt lgkmcnt(0)")
    for w in range(1, 4):
        for r in range(8):
            a(f"v_add_f32 v{AC+r}, v{AC+r}, v{P+8*w+r}")
    a(f"""
    v_mov_b32 v9, {OOB}
    v_cmp_gt_u32 vcc, 56, v{LN}
    v_cndmask_b32 v9, v9, v8, vcc
    s_mul_i32 s{S_T0}, s{S_RANK}, 1792
    s_add_u32 s{S_T0}, s{S_T0}, {YM_OFF}
    buffer_store_dwordx4 {vr(AC,4)}, v9, {WS}, s{S_T0} offen sc1
    buffer_store_dwordx4 {vr(AC+4,4)}, v9, {WS}, s{S_T0} offen offset:16 sc1
    v_mov_b32 v10, s{S_IDX}
    v_mov_b32 v11, s{S_RM}
    v_mov_b32 v12, 32
    v_mov_b32 v13, 28
    v_mov_b32 v14, 1
    s_mov_b64 exec, 1
    buffer_store_dwordx2 v[10:11], v12, {WS}, s{S_FLG} offen sc1
    s_waitcnt vmcnt(0)
    buffer_store_dword v14, v13, {WS}, s{S_FLG} offen sc1
    s_mov_b64 exec, -1
    H_mod_done:
    s_barrier
    """)


def gen_vp(a):
    SETS, AC, O = (32, 64), 96, 104
    S_MO, S_VPO, S_MO2, S_PO, S_PO2 = 45, 46, 47, 48, 49

    def loads(dst, s0, s1):
        for u in range(7):
            a(f"buffer_load_dwordx4 {vr(dst+4*u,4)}, v{L16}, {WS}, s{s0 if u < 4 else s1} offen offset:{(u&3)*1024} sc1")

    def check(dst, ok):
        r = list(range(dst, dst + 28))
        a(f"v_max3_u32 v{TMP}, v{r[0]}, v{r[1]}, v{r[2]}")
        r = r[3:]
        while len(r) >= 2:
            a(f"v_max3_u32 v{TMP}, v{TMP}, v{r[0]}, v{r[1]}"); r = r[2:]
        a(f"v_max_u32 v{TMP}, v{TMP}, v{r[0]}")
        a(f"v_cmp_eq_u32 vcc, -1, v{TMP}")
        a(f"s_cbranch_vccz {ok}")

    def flag(sval):
        a(f"v_mov_b32 v8, s{sval}")
        a("s_mov_b64 exec, 1")
        a(f"buffer_store_dword v8, v7, {WS}, s{S_FLG} offen sc1")
        a("s_mov_b64 exec, -1")

    a.label("H_vp")
    a(f"""
    s_mov_b32 s{S_STEP}, 0
    s_mov_b32 s{S_MO}, {MEMR_OFF}
    s_mov_b32 s{S_MO2}, {MEMR_OFF+4096}
    s_lshl_b32 s{S_VPO}, s{S_RANK}, 10
    s_add_u32 s{S_VPO}, s{S_VPO}, {VP_OFF}
    v_mov_b32 v7, 16
    v_mov_b32 v9, {MFLAG_OFF}
    """)
    loads(SETS[0], S_MO, S_MO2)
    a("s_waitcnt vmcnt(0)")
    a.label("H_vp_step")
    for ph in range(2):
        cur, nxt = SETS[ph], SETS[1 - ph]
        a(f"""
        s_mov_b32 s{S_PO}, s{S_MO}
        s_mov_b32 s{S_PO2}, s{S_MO2}
        s_cmp_lt_u32 s{S_STEP}, 63
        s_cselect_b32 s{S_T0}, {MEMS_STEP}, 0
        s_add_u32 s{S_MO}, s{S_MO}, s{S_T0}
        s_add_u32 s{S_MO2}, s{S_MO2}, s{S_T0}
        """)
        loads(nxt, S_MO, S_MO2)
        for r in range(8):
            a(f"v_mov_b32 v{AC+r}, 0")
        a(f"s_sub_u32 s{S_T0}, s{S_STEP}, 1")
        a(f"s_max_i32 s{S_T0}, s{S_T0}, 0")
        a("s_waitcnt vmcnt(9)")
        flag(S_T0)
        check(cur, f"H_vp_go{ph}")
        a("s_waitcnt vmcnt(0)")
        flag(S_STEP)
        a(f"""
        s_mov_b32 s{S_CNT}, s{S_LIM}
        H_vp_l{ph}:
        buffer_load_dword v{TMP}, v9, {WS}, 0 offen
        s_waitcnt vmcnt(0)
        v_cmp_le_u32 vcc, s{S_STEP}, v{TMP}
        s_cbranch_vccnz H_vp_lg{ph}
        s_sleep {gc.OPT["vpsl"]}
        """)
        gc.retry(a, f"H_vp_l{ph}")
        a.label(f"H_vp_lg{ph}")
        a(f"s_mov_b32 s{S_CNT}, s{S_LIM}")
        a.label(f"H_vp_poll{ph}")
        loads(cur, S_PO, S_PO2)
        a("s_waitcnt vmcnt(0)")
        check(cur, f"H_vp_go{ph}")
        a("s_sleep 1")
        gc.retry(a, f"H_vp_poll{ph}")
        a.label(f"H_vp_go{ph}")
        for u in range(7):
            for t in range(2):
                a(f"v_smfmac_f32_16x16x64_bf16 {vr(AC+4*t,4)}, {vr(cur+4*u,4)}, {WBr(t,2*u,8)}, v{IDX}")
        a(f"s_add_u32 s{S_STEP}, s{S_STEP}, 1")
        for t in range(2):
            a(f"v_cvt_pk_bf16_f32 v{O+2*t}, v{AC+4*t}, v{AC+4*t+1}")
            a(f"v_cvt_pk_bf16_f32 v{O+2*t+1}, v{AC+4*t+2}, v{AC+4*t+3}")
        a(f"buffer_store_dwordx4 {vr(O,4)}, v{L16}, {WS}, s{S_VPO} offen sc1")
        a(f"s_add_u32 s{S_VPO}, s{S_VPO}, {224*FR}")
    a(f"""
    s_cmp_lt_u32 s{S_STEP}, 64
    s_cbranch_scc1 H_vp_step
    s_waitcnt vmcnt(0)
    """)
    flag(S_STEP)
    a("s_waitcnt vmcnt(0)")
    gc.evt(a, 5, DIAG, 8, 9)
    a("s_endpgm")


def gen_f1(a):
    TXr, KX, MKr, D, MSK = 16, 72, 184, 240, 8
    MFm = KX
    V_FA, V_LB, V_MA, V_PM, V_FLG = 252, 253, 254, 255, 7
    S_S, S_N, S_QT, S_MO = 45, 46, 47, 48
    a(f"""
    s_sub_u32 s{S_QT}, s{S_WAVE}, 1
    s_mov_b32 s{S_S}, s{S_C}
    s_mov_b32 s{S_N}, 0
    s_lshl_b32 s{S_T0}, s{S_QT}, 4
    v_add_u32 v16, s{S_T0}, v{L15}
    v_lshlrev_b32 v17, 2, v{G}
    v_mov_b32 v18, {NEG}
    """)
    for kt in range(2):
        for r in range(4):
            a(f"v_add_u32 v19, {16*kt+r}, v17")
            a(f"v_cmp_le_u32 vcc, v19, v16")
            a(f"v_cndmask_b32 v{MSK+4*kt+r}, v18, 0, vcc")
    a(f"""
    s_lshl_b32 s{S_T0}, s{S_WAVE}, 13
    v_add_u32 v{V_LB}, s{S_T0}, v{L16}
    v_lshrrev_b32 v16, 1, v{G}
    v_lshlrev_b32 v16, 8, v16
    v_lshrrev_b32 v17, 1, v{L15}
    v_lshl_add_u32 v16, v17, 5, v16
    v_and_b32 v17, 1, v{G}
    v_lshl_add_u32 v16, v17, 3, v16
    v_add_u32 v{V_MA}, s{S_T0}, v16
    s_and_b32 s{S_T0}, s{S_H}, 1
    s_lshl_b32 s{S_T0}, s{S_T0}, 3
    v_add_u32 v{V_PM}, s{S_T0}, v{L16}
    v_min_u32 v16, 13, v{LN}
    s_mul_i32 s{S_T0}, s{S_H}, 14
    v_add_u32 v16, s{S_T0}, v16
    v_lshlrev_b32 v16, 6, v16
    v_add_u32 v{V_FA}, {PROG_OFF}, v16
    s_lshl_b32 s{S_T0}, s{S_QT}, 2
    s_add_u32 s{S_T0}, s{S_T0}, 20
    v_mov_b32 v{V_FLG}, s{S_T0}
    H_f1_step:
    s_and_b32 s{S_T0}, s{S_S}, 3
    s_lshl_b32 s{S_T0}, s{S_T0}, 2
    v_add_u32 v{D}, s{S_T0}, v{V_FA}
    s_lshr_b32 s{S_T0}, s{S_S}, 2
    v_mov_b32 v{D+1}, s{S_T0}
    """)
    flagwait(a, D, D + 1, D + 2)
    a(f"""
    s_lshl_b32 s{S_T0}, s{S_S}, 4
    s_add_u32 s{S_T0}, s{S_T0}, s{S_H}
    s_mul_i32 s{S_T0}, s{S_T0}, {28*FR}
    s_lshl_b32 s{S_T1}, s{S_QT}, 10
    s_add_u32 s{S_T0}, s{S_T0}, s{S_T1}
    s_add_u32 s{S_T0}, s{S_T0}, {TX_OFF}
    s_mul_i32 s{S_T1}, s{S_S}, {28*FR}
    s_add_u32 s{S_T1}, s{S_T1}, {XF_OFF}
    s_add_u32 s{S_T2}, s{S_T1}, {14*FR}
    """)
    for ks in range(14):
        a(f"buffer_load_dwordx4 {vr(TXr+4*ks,4)}, v{L16}, {WS}, s{S_T0} offen offset:{(ks&1)*2048} sc1")
        a(f"buffer_load_dwordx4 {vr(KX+8*ks,4)}, v{L16}, {WS}, s{S_T1} offen offset:{(ks&3)*1024}")
        a(f"buffer_load_dwordx4 {vr(KX+8*ks+4,4)}, v{L16}, {WS}, s{S_T2} offen offset:{(ks&3)*1024}")
        if ks & 1:
            a(f"s_add_u32 s{S_T0}, s{S_T0}, 4096")
        if ks & 3 == 3:
            a(f"s_add_u32 s{S_T1}, s{S_T1}, 4096\ns_add_u32 s{S_T2}, s{S_T2}, 4096")
    for ks in range(14):
        a(f"s_waitcnt vmcnt({39-3*ks})")
        for kt in range(2):
            c_ = vr(MSK + 4 * kt, 4) if ks == 0 else vr(D + 4 * kt, 4)
            a(f"v_mfma_f32_16x16x32_bf16 {vr(D+4*kt,4)}, {vr(KX+8*ks+4*kt,4)}, {vr(TXr+4*ks,4)}, {c_}")
    a(f"s_mul_i32 s{S_MO}, s{S_S}, {MEMS_STEP}")
    a(f"s_add_u32 s{S_MO}, s{S_MO}, {MEMR_OFF}")
    a(f"""
    s_mov_b32 s{S_CNT}, s{S_LIM}
    v_mov_b32 v{MKr}, {MFLAG_OFF}
    H_f1_light:
    buffer_load_dword v{TMP}, v{MKr}, {WS}, 0 offen sc1
    s_waitcnt vmcnt(0)
    v_cmp_le_u32 vcc, s{S_S}, v{TMP}
    s_cbranch_vccnz H_f1_lgo
    s_sleep {gc.OPT["vpsl"]}
    """)
    gc.retry(a, "H_f1_light")
    a.label("H_f1_lgo")
    mempoll(a, MFm, S_MO, sleep=1)
    for u in range(7):
        a(f"ds_write_b128 v{V_LB}, {vr(MFm+4*u,4)} offset:{u*1024}")
    a(f"v_mov_b32 v{TMP}, v{V_MA}")
    for ks in range(14):
        o = 128 * (ks & 1)
        a(f"ds_read2_b32 {vr(MKr+4*ks,2)}, v{TMP} offset0:{o} offset1:{o+4}")
        a(f"ds_read2_b32 {vr(MKr+4*ks+2,2)}, v{TMP} offset0:{o+1} offset1:{o+5}")
        if ks & 1:
            a(f"v_add_u32 v{TMP}, 1024, v{TMP}")
        if ks == 6:
            a("s_waitcnt lgkmcnt(0)")
    for ks in range(14):
        if ks >= 7:
            a(f"s_waitcnt lgkmcnt({2*(13-ks)})")
        c_ = "0" if ks == 0 else vr(D + 8, 4)
        a(f"v_mfma_f32_16x16x32_bf16 {vr(D+8,4)}, {vr(MKr+4*ks,4)}, {vr(TXr+4*ks,4)}, {c_}")
    Mx, T2 = KX, KX + 1
    a(f"""
    s_lshl_b32 s{S_T0}, s{S_S}, 1
    s_add_u32 s{S_T0}, s{S_T0}, s{S_QT}
    s_mul_i32 s{S_T0}, s{S_T0}, {24*FR}
    s_add_u32 s{S_T0}, s{S_T0}, {PX_OFF}
    s_lshl_b32 s{S_T1}, s{S_H}, 10
    s_add_u32 s{S_T1}, s{S_T1}, s{S_T0}
    s_lshr_b32 s{S_T2}, s{S_H}, 1
    s_lshl_b32 s{S_T2}, s{S_T2}, 10
    s_add_u32 s{S_T2}, s{S_T2}, s{S_T0}
    s_add_u32 s{S_T2}, s{S_T2}, {16*FR}
    v_max3_f32 v{Mx}, v{D}, v{D+1}, v{D+2}
    v_max3_f32 v{Mx}, v{Mx}, v{D+3}, v{D+4}
    v_max3_f32 v{Mx}, v{Mx}, v{D+5}, v{D+6}
    v_max3_f32 v{Mx}, v{Mx}, v{D+7}, v{D+8}
    v_max_f32 v{Mx}, v{Mx}, v{D+10}
    """)
    xg_reduce(a, "v_max_f32", Mx, T2)
    vals = list(range(D, D + 8)) + [D + 8, D + 10]
    for v in vals:
        a(f"v_sub_f32 v{v}, v{v}, v{Mx}")
    for v in vals:
        a(f"v_exp_f32 v{v}, v{v}")
    a(f"v_add_f32 v{Mx}, v{vals[0]}, v{vals[1]}")
    for v in vals[2:]:
        a(f"v_add_f32 v{Mx}, v{Mx}, v{v}")
    xg_reduce(a, "v_add_f32", Mx, T2)
    a(f"v_rcp_f32 v{Mx}, v{Mx}")
    for v in vals:
        a(f"v_mul_f32 v{v}, v{v}, v{Mx}")
    O = KX + 4
    for q in range(4):
        a(f"v_cvt_pk_bf16_f32 v{O+q}, v{D+2*q}, v{D+2*q+1}")
    a(f"""
    v_cvt_pk_bf16_f32 v{O+4}, v{D+8}, v{D+8}
    v_cvt_pk_bf16_f32 v{O+5}, v{D+10}, v{D+10}
    buffer_store_dwordx4 {vr(O,4)}, v{L16}, {WS}, s{S_T1} offen sc1
    buffer_store_dwordx2 {vr(O+4,2)}, v{V_PM}, {WS}, s{S_T2} offen sc1
    s_add_u32 s{S_N}, s{S_N}, 1
    v_mov_b32 v{TMP}, s{S_N}
    s_waitcnt vmcnt(0)
    s_mov_b64 exec, 1
    buffer_store_dword v{TMP}, v{V_FLG}, {WS}, s{S_FLG} offen sc1
    s_mov_b64 exec, -1
    s_add_u32 s{S_S}, s{S_S}, 14
    s_cmp_lt_u32 s{S_S}, 64
    s_cbranch_scc1 H_f1_step
    s_waitcnt vmcnt(0)
    """)
    gc.evt(a, 5, DIAG, 8, 9)
    a("s_endpgm")


def gen_f2(a):
    PXX, PXM, VPr, D, XV, GV = 16, 80, 112, 176, 184, 188
    V_F0, V_F1, V_THR, V_VAL, V_OA = 8, 9, 10, 11, 12
    S_U, S_S, S_QT, S_MT, S_IDX, S_RS = 45, 46, 47, 48, 49, 50
    SO = 52
    a.label("H_f2")
    srd(a, SO, S_OUT, 2048 * 896)
    a(f"""
    v_mov_b32 v{V_F0}, {PROG_OFF+28}
    v_mov_b32 v{V_THR}, 0
    """)
    flagwait(a, V_F0, V_THR, V_VAL)
    a(f"""
    v_mov_b32 v{V_F0}, {PROG_OFF+32}
    buffer_load_dwordx2 v[14:15], v{V_F0}, {WS}, 0 offen sc1
    s_and_b32 s{S_QT}, s{S_H}, 1
    s_lshr_b32 s{S_S}, s{S_H}, 1
    s_mov_b32 s{S_U}, 0
    v_mul_u32_u24 v{V_F0}, {14*64}, v{L15}
    v_add_u32 v{V_F0}, {PROG_OFF}, v{V_F0}
    v_mul_u32_u24 v{V_OA}, 896, v{L15}
    v_lshl_add_u32 v{V_OA}, v{G}, 4, v{V_OA}
    s_waitcnt vmcnt(0)
    v_readfirstlane_b32 s{S_IDX}, v14
    v_cvt_pk_bf16_f32 v15, v15, v15
    v_and_b32 v15, 0xffff0000, v15
    v_mul_f32 v15, {f32hex(-LOG2E)}, v15
    v_exp_f32 v15, v15
    v_add_f32 v15, 1.0, v15
    v_rcp_f32 v15, v15
    v_cvt_pk_bf16_f32 v15, v15, v15
    v_and_b32 v15, 0xffff0000, v15
    v_readfirstlane_b32 s{S_RS}, v15
    H_f2_step:
    s_lshl_b32 s{S_MT}, s{S_S}, 1
    s_add_u32 s{S_MT}, s{S_MT}, s{S_QT}
    s_lshl_b32 s{S_T0}, s{S_C}, 6
    s_and_b32 s{S_T1}, s{S_S}, 3
    s_lshl_b32 s{S_T1}, s{S_T1}, 2
    s_add_u32 s{S_T1}, s{S_T1}, s{S_T0}
    v_add_u32 v{V_F1}, s{S_T1}, v{V_F0}
    s_lshr_b32 s{S_T1}, s{S_S}, 2
    v_mov_b32 v{V_THR}, s{S_T1}
    """)
    flagwait(a, V_F1, V_THR, V_VAL)
    a(f"""
    s_mul_i32 s{S_T0}, s{S_S}, {VX_STEP}
    s_lshl_b32 s{S_T1}, s{S_C}, 11
    s_add_u32 s{S_T0}, s{S_T0}, s{S_T1}
    s_add_u32 s{S_T0}, s{S_T0}, {VX_OFF}
    """)
    for h in range(16):
        for t in range(2):
            a(f"buffer_load_dwordx4 {ar(8*h+4*t,4)}, v{L16}, {WS}, s{S_T0} offen offset:{t*FR} sc1")
        a(f"s_add_u32 s{S_T0}, s{S_T0}, {28*FR}")
    a(f"""
    s_mul_i32 s{S_T0}, s{S_MT}, 14
    s_add_u32 s{S_T0}, s{S_T0}, s{S_C}
    s_lshl_b32 s{S_T0}, s{S_T0}, 10
    s_add_u32 s{S_T0}, s{S_T0}, {XF_OFF}
    buffer_load_dwordx4 {vr(XV,4)}, v{L16}, {WS}, s{S_T0} offen
    s_lshl_b32 s{S_T0}, s{S_MT}, 6
    s_add_u32 s{S_T0}, s{S_T0}, {RG_OFF+8192}
    v_lshlrev_b32 v13, 2, v{L15}
    buffer_load_dword v{GV}, v13, {WS}, s{S_T0} offen
    ; lanes 0..15: V' flag (h', c) word 4 > s ; lanes 16..: F1 flag (h', s%14) word 5+qt > s/14
    s_mul_i32 s{S_T1}, s{S_S}, 4682
    s_lshr_b32 s{S_T1}, s{S_T1}, 16
    s_mul_i32 s{S_T2}, s{S_T1}, 14
    s_sub_u32 s{S_T2}, s{S_S}, s{S_T2}
    s_lshl_b32 s{S_T2}, s{S_T2}, 6
    s_lshl_b32 s{S_T3}, s{S_QT}, 2
    s_add_u32 s{S_T2}, s{S_T2}, s{S_T3}
    s_add_u32 s{S_T2}, s{S_T2}, 20
    s_lshl_b32 s{S_T0}, s{S_C}, 6
    s_add_u32 s{S_T0}, s{S_T0}, 16
    v_mov_b32 v13, s{S_T0}
    v_mov_b32 v14, s{S_T2}
    v_mov_b32 v15, s{S_S}
    v_mov_b32 v{V_THR}, s{S_T1}
    v_cmp_gt_u32 vcc, 16, v{LN}
    v_cndmask_b32 v13, v14, v13, vcc
    v_cndmask_b32 v{V_THR}, v{V_THR}, v15, vcc
    v_add_u32 v{V_F1}, v13, v{V_F0}
    """)
    a(f"""
    v_mov_b32 v13, {MFLAG_OFF}
    s_mov_b32 s{S_CNT}, s{S_LIM}
    H_f2_l:
    buffer_load_dword v14, v13, {WS}, 0 offen
    s_waitcnt vmcnt(0)
    v_cmp_le_u32 vcc, s{S_S}, v14
    s_cbranch_vccnz H_f2_lg
    s_sleep 8
    """)
    gc.retry(a, "H_f2_l")
    a.label("H_f2_lg")
    a(f"s_sleep {gc.OPT['f2pre']}")
    a("s_mov_b64 exec, 0xffffffff")
    flagwait(a, V_F1, V_THR, V_VAL, sleep=gc.OPT["f2sl"], full="0xffffffff")
    a("s_mov_b64 exec, -1")
    a(f"""
    s_mul_i32 s{S_T0}, s{S_MT}, {24*FR}
    s_add_u32 s{S_T0}, s{S_T0}, {PX_OFF}
    s_mul_i32 s{S_T1}, s{S_S}, {224*FR}
    s_lshl_b32 s{S_T2}, s{S_C}, 10
    s_add_u32 s{S_T1}, s{S_T1}, s{S_T2}
    s_add_u32 s{S_T1}, s{S_T1}, {VP_OFF}
    """)
    for f in range(24):
        dst = PXX + 4 * f
        a(f"buffer_load_dwordx4 {vr(dst,4)}, v{L16}, {WS}, s{S_T0} offen offset:{(f&3)*FR} sc1")
        if f & 3 == 3:
            a(f"s_add_u32 s{S_T0}, s{S_T0}, 4096")
    for h in range(16):
        a(f"buffer_load_dwordx4 {vr(VPr+4*h,4)}, v{L16}, {WS}, s{S_T1} offen sc1")
        a(f"s_add_u32 s{S_T1}, s{S_T1}, {14*FR}")
    for h in range(16):
        a(f"s_waitcnt vmcnt({39-h})")
        for t in range(2):
            c_ = "0" if h == 0 else vr(D + 4 * t, 4)
            a(f"v_mfma_f32_16x16x32_bf16 {vr(D+4*t,4)}, {ar(8*h+4*t,4)}, {vr(PXX+4*h,4)}, {c_}")
    for hp in range(8):
        b = VPr + 8 * hp
        a(f"s_waitcnt vmcnt({14-2*hp})")
        a(f"v_swap_b32 v{b+2}, v{b+4}")
        a(f"v_swap_b32 v{b+3}, v{b+5}")
        for t in range(2):
            a(f"v_mfma_f32_16x16x32_bf16 {vr(D+4*t,4)}, {vr(b+4*t,4)}, {vr(PXM+4*hp,4)}, {vr(D+4*t,4)}")
    B = PXX
    for r in range(4):
        a(f"v_lshlrev_b32 v{B+2*r}, 16, v{XV+r}")
        a(f"v_and_b32 v{B+2*r+1}, 0xffff0000, v{XV+r}")
    a(f"""
    s_lshr_b32 s{S_T0}, s{S_IDX}, 4
    s_cmp_lg_u32 s{S_T0}, s{S_MT}
    s_cbranch_scc1 H_f2_nomod
    v_min_u32 v13, 27, v{LN}
    v_lshlrev_b32 v13, 6, v13
    v_add_u32 v13, {PROG_OFF+28}, v13
    v_mov_b32 v{V_THR}, 0
    """)
    flagwait(a, 13, V_THR, V_VAL)
    Y, YL = PXM, PXM + 8
    a(f"""
    v_lshlrev_b32 v13, 5, v{G}
    s_lshl_b32 s{S_T0}, s{S_C}, 7
    s_add_u32 s{S_T0}, s{S_T0}, {YM_OFF}
    s_mov_b32 s{S_T1}, 28
    """)
    for r in range(8):
        a(f"v_mov_b32 v{Y+r}, 0")
    a(f"""
    H_f2_ysum:
    buffer_load_dwordx4 {vr(YL,4)}, v13, {WS}, s{S_T0} offen sc1
    buffer_load_dwordx4 {vr(YL+4,4)}, v13, {WS}, s{S_T0} offen offset:16 sc1
    s_add_u32 s{S_T0}, s{S_T0}, 1792
    s_waitcnt vmcnt(0)
    """)
    for r in range(8):
        a(f"v_add_f32 v{Y+r}, v{Y+r}, v{YL+r}")
    a(f"""
    s_sub_u32 s{S_T1}, s{S_T1}, 1
    s_cmp_lg_u32 s{S_T1}, 0
    s_cbranch_scc1 H_f2_ysum
    s_and_b32 s{S_T0}, s{S_IDX}, 15
    v_cmp_eq_u32 vcc, s{S_T0}, v{L15}
    """)
    for r in range(8):
        rbf(a, Y + r)
        a(f"v_mul_f32 v{Y+r}, s{S_RS}, v{Y+r}")
        rbf(a, Y + r)
        a(f"v_add_f32 v{Y+r}, v{Y+r}, v{B+r}")
        rbf(a, Y + r)
        a(f"v_cndmask_b32 v{B+r}, v{B+r}, v{Y+r}, vcc")
    a.label("H_f2_nomod")
    OM = PXM + 16
    a(f"v_sub_f32 v{OM}, 1.0, v{GV}")
    rbf(a, OM)
    O = PXM + 20
    for r in range(4):
        lo, hi = D + r, D + 4 + r
        T = PXM + 24
        a(f"v_cvt_pk_bf16_f32 v{T}, v{lo}, v{hi}")
        a(f"v_lshlrev_b32 v{lo}, 16, v{T}")
        a(f"v_and_b32 v{hi}, 0xffff0000, v{T}")
        a(f"v_mul_f32 v{lo}, v{lo}, v{GV}")
        a(f"v_mul_f32 v{hi}, v{hi}, v{GV}")
        a(f"v_cvt_pk_bf16_f32 v{T}, v{lo}, v{hi}")
        a(f"v_lshlrev_b32 v{lo}, 16, v{T}")
        a(f"v_and_b32 v{hi}, 0xffff0000, v{T}")
        a(f"v_mul_f32 v{B+2*r}, v{B+2*r}, v{OM}")
        a(f"v_mul_f32 v{B+2*r+1}, v{B+2*r+1}, v{OM}")
        a(f"v_cvt_pk_bf16_f32 v{T}, v{B+2*r}, v{B+2*r+1}")
        a(f"v_lshlrev_b32 v{B+2*r}, 16, v{T}")
        a(f"v_and_b32 v{B+2*r+1}, 0xffff0000, v{T}")
        a(f"v_add_f32 v{lo}, v{lo}, v{B+2*r}")
        a(f"v_add_f32 v{hi}, v{hi}, v{B+2*r+1}")
        a(f"v_cvt_pk_bf16_f32 v{O+r}, v{lo}, v{hi}")
    a(f"""
    s_mul_i32 s{S_T0}, s{S_MT}, {16*896}
    s_lshl_b32 s{S_T1}, s{S_C}, 6
    s_add_u32 s{S_T0}, s{S_T0}, s{S_T1}
    buffer_store_dwordx4 {vr(O,4)}, v{V_OA}, s[{SO}:{SO+3}], s{S_T0} offen
    s_add_u32 s{S_S}, s{S_S}, 8
    s_add_u32 s{S_U}, s{S_U}, 1
    s_cmp_lt_u32 s{S_U}, 8
    s_cbranch_scc1 H_f2_step
    s_waitcnt vmcnt(0)
    """)
    gc.evt(a, 5, DIAG, 8, 9)
    a("s_endpgm")
```

```python
from asmlib import *
from layout import *
import math, struct

C1 = math.log2(math.e) / 16.0
LOG2E = math.log2(math.e)
SRD_WS, SRD_X, SRD_DBG, S_WAVE, S_XCC = 16, 20, 24, 28, 44
WSs, XSs, DBGs = "s[16:19]", "s[20:23]", "s[24:27]"


def f32hex(x):
    return "0x%08x" % struct.unpack("<I", struct.pack("<f", x))[0]


def srd(a, d, ptr, size):
    a(f"s_mov_b32 s{d}, s{ptr}\ns_mov_b32 s{d+1}, s{ptr+1}\ns_mov_b32 s{d+2}, {size}\ns_mov_b32 s{d+3}, 0x20000")


def CW_A(h): return 8 * (h >> 1) + 1 + (h & 1)
def CW_B(j): return 8 * j + 3
CW_M = 60
CW_K = 59


DIAG = False


def ev(a, k):
    import gen_chain as gc
    if DIAG:
        a("s_memrealtime s[96:97]\ns_waitcnt lgkmcnt(0)")
        a(f"s_mov_b32 s{90+k}, s96")


def ev_flush(a):
    import gen_chain as gc
    if not DIAG:
        return
    a(f"""
    s_lshl_b32 s98, s2, 2
    s_add_u32 s98, s98, s{S_WAVE}
    s_lshl_b32 s98, s98, 5
    s_add_u32 s98, s98, {gc.EVT_OFF + 32768}
    s_mov_b64 exec, 1
    """)
    for k in range(1, 6):
        a(f"v_mov_b32 v2, s{90+k}\nv_mov_b32 v3, {4*k}\nbuffer_store_dword v2, v3, {WSs}, s98 offen")
    a("s_mov_b64 exec, -1")


def arrive(a, sword, t=2):
    lab = a.newlabel("arr")
    if t == 2:
        ev(a, 4)
        a("s_waitcnt vmcnt(0)")
        ev(a, 5)
        ev_flush(a)
    a(f"""
    s_waitcnt vmcnt(0)
    s_barrier
    s_cmp_lg_u32 s{S_WAVE}, 0
    s_cbranch_scc1 {lab}
    v_mov_b32 v{t}, s{sword}
    v_mov_b32 v{t+1}, 1
    s_mov_b64 exec, 1
    buffer_atomic_add v{t+1}, v{t}, {DBGs}, 0 offen sc1
    s_mov_b64 exec, -1
    {lab}:
    """)


def gen_ab(a, sRANK):
    WSZ_B = 448 * 4096 * 2
    SA_, SB_ = 48, 52
    SAs, SBs = f"s[{SA_}:{SA_+3}]", f"s[{SB_}:{SB_+3}]"
    sW = S_WAVE
    sH, sP, sJ, t0, t1, t2, t3, sBUF, sOUT, sHO, sSC, sKS, sN, sI, sRET = 56, 57, 78, 79, 80, 81, 82, 83, 84, 85, 86, 87, 88, 45, 46
    LN, G, L15 = 1, 2, 3
    BR, ACC, AF = 128, 96, 32
    VB, VT, RA, L16 = 4, 5, 8, 6
    STG = 131072
    ev(a, 1)
    a(f"""
    v_and_b32 v{LN}, 63, v0
    v_lshrrev_b32 v{G}, 4, v{LN}
    v_and_b32 v{L15}, 15, v{LN}
    s_mul_i32 s{t2}, s{sRANK}, 9363
    s_lshr_b32 s{t2}, s{t2}, 16
    s_mul_i32 s{t3}, s{t2}, 7
    s_sub_u32 s{sJ}, s{sRANK}, s{t3}
    s_lshr_b32 s{sH}, s{t2}, 1
    s_and_b32 s{sP}, s{t2}, 1
    v_lshrrev_b32 v6, 5, v{LN}
    v_and_b32 v7, 31, v{LN}
    v_xor_b32 v7, v7, v6
    v_lshlrev_b32 v7, 4, v7
    v_lshl_add_u32 v{VB}, v6, 13, v7
    v_lshlrev_b32 v{L16}, 4, v{LN}
    s_lshl_b32 s{sBUF}, s{sW}, 14
    s_lshl_b32 s{sHO}, s{sH}, 9
    s_lshl_b32 s{sKS}, s{sJ}, 1
    s_add_u32 s{sKS}, s{sKS}, s{sW}
    s_mov_b32 s{SA_+2}, {WSZ_B}
    s_mov_b32 s{SA_+3}, 0x20000
    s_mov_b32 s{SB_+2}, {WSZ_B}
    s_mov_b32 s{SB_+3}, 0x20000
    s_cmp_eq_u32 s{sP}, 0
    s_cselect_b32 s{sSC}, {f32hex(C1)}, 1.0
    s_cselect_b32 s{SA_}, s62, s66
    s_cselect_b32 s{SA_+1}, s63, s67
    s_cselect_b32 s{SB_}, s64, s68
    s_cselect_b32 s{SB_+1}, s65, s69
    s_cbranch_scc0 P_ldWo
    s_lshl_b32 s{t0}, s{sJ}, 19
    s_lshl_b32 s{t1}, s{sW}, 17
    s_add_u32 s{t0}, s{t0}, s{t1}
    s_add_u32 s{t0}, s{t0}, s{sHO}
    s_lshl_b32 s{t1}, s{sW}, 13
    s_add_u32 m0, s{t1}, {STG}
    s_lshl_b32 s{sI}, s{sW}, 3
    s_add_u32 s{sN}, s{sI}, 8
    P_lk:
    s_and_b32 s{t1}, s{sI}, 12
    s_and_b32 s{t2}, s{sI}, 1
    s_lshl1_add_u32 s{t1}, s{t2}, s{t1}
    s_lshl_b32 s{t1}, s{t1}, 4
    v_xor_b32 v{VT}, s{t1}, v{VB}
    s_add_u32 s{sI}, s{sI}, 1
    buffer_load_dwordx4 v{VT}, {SBs}, s{t0} offen lds
    s_add_u32 s{t0}, s{t0}, 16384
    s_add_u32 m0, m0, 1024
    s_cmp_lt_u32 s{sI}, s{sN}
    s_cbranch_scc1 P_lk
    s_branch P_ldA
    P_ldWo:
    v_lshrrev_b32 v12, 3, v{LN}
    v_and_b32 v13, 7, v{LN}
    v_mul_u32_u24 v14, 896, v12
    v_lshl_add_u32 v14, v13, 4, v14
    s_lshl_b32 s{t0}, s{sH}, 8
    s_lshl_b32 s{t1}, s{sW}, 6
    s_add_u32 s{t0}, s{t0}, s{t1}
    s_mul_i32 s{t0}, s{t0}, 896
    s_lshl_b32 s{t2}, s{sJ}, 7
    s_add_u32 s{t0}, s{t0}, s{t2}
    s_mov_b32 s{t1}, {8*896}
    """)
    for i in range(8):
        a(f"buffer_load_dwordx4 {vr(AF+4*i,4)}, v14, {SBs}, s{t0} offen")
        if i < 7:
            a(f"s_add_u32 s{t0}, s{t0}, s{t1}")
    a.label("P_ldA")

    def blk_addr():
        a(f"""
        s_sub_u32 s{t0}, s{sKS}, 14
        s_min_u32 s{t0}, s{t0}, s{sKS}
        s_sub_u32 s{t1}, s{t0}, 14
        s_min_u32 s{t0}, s{t0}, s{t1}
        s_lshl_b32 s{t0}, s{t0}, 18
        s_add_u32 s{t0}, s{t0}, s{sHO}
        s_mov_b32 m0, s{sBUF}
        s_xor_b32 s{sBUF}, s{sBUF}, 65536
        s_add_u32 s{sKS}, s{sKS}, 4
        """)
    blk_addr()
    a(f"""
    s_mov_b32 s{sI}, 0
    P_la0:
    s_and_b32 s{t1}, s{sI}, 12
    s_and_b32 s{t2}, s{sI}, 1
    s_lshl1_add_u32 s{t1}, s{t2}, s{t1}
    s_lshl_b32 s{t1}, s{t1}, 4
    v_xor_b32 v{VT}, s{t1}, v{VB}
    s_add_u32 s{sI}, s{sI}, 1
    buffer_load_dwordx4 v{VT}, {SAs}, s{t0} offen lds
    s_add_u32 s{t0}, s{t0}, 16384
    s_add_u32 m0, m0, 1024
    s_cmp_lt_u32 s{sI}, 16
    s_cbranch_scc1 P_la0
    """)
    a(f"""
    v_lshrrev_b32 v16, 2, v{L15}
    v_lshlrev_b32 v16, 3, v16
    v_and_b32 v17, 3, v{L15}
    v_add_u32 v16, v16, v17
    v_lshlrev_b32 v16, 9, v16
    v_xor_b32 v17, v{G}, v{L15}
    v_lshl_add_u32 v7, v17, 4, v16
    s_cmp_eq_u32 s{sP}, 0
    s_cbranch_scc0 P_stageWo
    v_add_u32 v{RA}, {STG}, v7
    v_xor_b32 v{RA+1}, 64, v{RA}
    v_xor_b32 v{RA+2}, 0x80, v{RA}
    v_xor_b32 v{RA+3}, 0xc0, v{RA}
    s_waitcnt vmcnt(16)
    s_barrier
    """)
    for tl in range(4):
        for es in range(8):
            a(f"ds_read_b128 {vr(BR+32*tl+4*es,4)}, v{RA+(es&3)} offset:{(tl>>1)*16384+(tl&1)*2048+(es>>2)*256}")
    a("s_branch P_bdone")
    a.label("P_stageWo")
    a(f"""
    v_lshlrev_b32 v15, 7, v12
    v_and_b32 v16, 3, v13
    v_lshl_add_u32 v15, v16, 3, v15
    s_lshl_b32 s{t1}, s{sW}, 13
    s_add_u32 s{t1}, s{t1}, {STG}
    v_add_u32 v15, s{t1}, v15
    v_lshrrev_b32 v16, 2, v13
    v_lshlrev_b32 v16, 1, v16
    v_bfe_u32 v17, v12, 1, 1
    v_xor_b32 v16, v16, v17
    v_lshl_add_u32 v20, v16, 5, v15
    v_xor_b32 v21, 32, v20
    v_xor_b32 v22, 64, v20
    v_xor_b32 v23, 0x60, v20
    s_mov_b32 s{t2}, 0x05040100
    s_mov_b32 s{t3}, 0x07060302
    v_lshrrev_b32 v12, 2, v{L15}
    v_lshl_add_u32 v13, v{G}, 3, v12
    v_lshlrev_b32 v13, 7, v13
    v_and_b32 v14, 3, v{L15}
    v_lshl_add_u32 v13, v14, 3, v13
    v_add_u32 v13, {STG}, v13
    v_lshrrev_b32 v12, 1, v12
    v_and_b32 v14, 1, v{G}
    v_lshl_add_u32 v12, v14, 1, v12
    v_lshl_add_u32 v{RA}, v12, 5, v13
    v_xor_b32 v{RA+1}, 32, v{RA}
    v_xor_b32 v{RA+2}, 64, v{RA}
    v_xor_b32 v{RA+3}, 0x60, v{RA}
    s_waitcnt vmcnt(16)
    """)
    for i in range(8):
        d = AF + 4 * i
        a(f"v_perm_b32 v16, v{d+1}, v{d}, s{t2}")
        a(f"v_perm_b32 v17, v{d+3}, v{d+2}, s{t2}")
        a(f"v_perm_b32 v18, v{d+1}, v{d}, s{t3}")
        a(f"v_perm_b32 v19, v{d+3}, v{d+2}, s{t3}")
        a(f"ds_write_b64 v{20+2*(i&1)}, v[16:17] offset:{i*1024}")
        a(f"ds_write_b64 v{21+2*(i&1)}, v[18:19] offset:{i*1024}")
    a("s_waitcnt lgkmcnt(0)")
    a("s_barrier")
    for tl in range(4):
        for es in range(8):
            for hh in range(2):
                a(f"ds_read_b64_tr_b16 {vr(BR+32*tl+4*es+2*hh,2)}, v{RA+tl} offset:{es*4096+hh*512}")
    a.label("P_bdone")
    ev(a, 2)
    a(f"""
    s_lshl_b32 s{t0}, s{sW}, 14
    v_add_u32 v{RA}, s{t0}, v7
    v_xor_b32 v{RA+1}, 64, v{RA}
    v_xor_b32 v{RA+2}, 0x80, v{RA}
    v_xor_b32 v{RA+3}, 0xc0, v{RA}
    s_mul_i32 s{sOUT}, s{sH}, 28
    s_lshl2_add_u32 s{sOUT}, s{sJ}, s{sOUT}
    s_mul_i32 s{sOUT}, s{sOUT}, {14*FR}
    s_mul_i32 s{t0}, s{sP}, {WB_OFF}
    s_add_u32 s{sOUT}, s{sOUT}, s{t0}
    s_lshr_b32 s{sN}, s{sW}, 1
    s_sub_u32 s{sN}, 4, s{sN}
    s_mov_b32 s{sRET}, {14*FR}
    s_mov_b32 s{sI}, 16384
    v_mov_b32 v24, v{VB}
    v_xor_b32 v25, 32, v{VB}
    v_xor_b32 v26, 64, v{VB}
    v_xor_b32 v27, 64, v25
    v_xor_b32 v28, 0x80, v{VB}
    v_xor_b32 v29, 32, v28
    v_xor_b32 v30, 64, v28
    v_xor_b32 v31, 64, v29
    s_waitcnt vmcnt(0)
    P_blk:
    """)
    a(f"""
    s_sub_u32 s{t3}, s{sKS}, 4
    s_sub_u32 s{t0}, s{t3}, 14
    s_min_u32 s{t3}, s{t0}, s{t3}
    s_sub_u32 s{t0}, s{t3}, 14
    s_min_u32 s{t3}, s{t0}, s{t3}
    s_lshl_b32 s{t3}, s{t3}, 10
    s_add_u32 s{t3}, s{t3}, s{sOUT}
    """)
    blk_addr()
    a(f"s_movk_i32 s{t1}, 0x400")
    a("s_waitcnt vmcnt(4)")
    for es in range(8):
        for tt in range(2):
            a(f"ds_read_b128 {vr(AF+8*es+4*tt,4)}, v{RA+(es&3)} offset:{tt*2048+(es>>2)*256}")
    n = 0
    for es in range(8):
        a(f"s_waitcnt lgkmcnt({14-2*es})")
        for tt in range(2):
            for tl in range(4):
                d = ACC + 8 * tl + 4 * tt
                a(f"v_mfma_f32_16x16x32_bf16 {vr(d,4)}, {vr(AF+8*es+4*tt,4)}, {vr(BR+32*tl+4*es,4)}, {'0' if es == 0 else vr(d,4)}")
                if n < 32:
                    i = n >> 1
                    if n & 1 == 0:
                        a(f"buffer_load_dwordx4 v{24+(i>>2)*2+(i&1)}, {SAs}, s{t0} offen lds")
                    else:
                        a(f"s_add_u32 s{t0}, s{t0}, s{sI}")
                        a(f"s_add_u32 m0, m0, s{t1}")
                n += 1
    for e in range(4):
        a(f"v_xor_b32 v{RA+e}, 65536, v{RA+e}")
    a("s_nop 3")
    for tl in range(4):
        d = ACC + 8 * tl
        for r in range(8):
            a(f"v_mul_f32 v{d+r}, s{sSC}, v{d+r}")
        o = AF + 4 * tl
        for q in range(4):
            a(f"v_cvt_pk_bf16_f32 v{o+q}, v{d+2*q}, v{d+2*q+1}")
        a(f"buffer_store_dwordx4 {vr(o,4)}, v{L16}, {WSs}, s{t3} offen sc1")
        a(f"s_add_u32 s{t3}, s{t3}, s{sRET}")
    a(f"""
    s_sub_u32 s{sN}, s{sN}, 1
    s_cmp_lg_u32 s{sN}, 0
    s_cbranch_scc1 P_blk
    s_lshl_b32 s89, s{sRANK}, 6
    """)


def gen_misc(a, sM):
    sW = S_WAVE
    t0, t1, t2, t3, sODD, sCC0, sCCL, sN, sXF = range(78, 87)
    LN, G, L15 = 1, 2, 3
    WL = 65536
    ev(a, 1)
    a(f"""
    v_and_b32 v{LN}, 63, v0
    v_lshrrev_b32 v{G}, 4, v{LN}
    v_and_b32 v{L15}, 15, v{LN}
    v_lshlrev_b32 v4, 4, v{LN}
    s_lshl2_add_u32 s{sXF}, s{sM}, s{sW}
    s_mul_i32 s{t0}, s{sXF}, {16*896}
    s_mul_i32 m0, s{sW}, {16*912}
    s_mov_b32 exec_hi, 0x00ffffff
    s_mov_b32 s{sN}, 16
    M_lx:
    buffer_load_dwordx4 v4, {XSs}, s{t0} offen lds
    s_add_u32 s{t0}, s{t0}, 896
    s_add_u32 m0, m0, 912
    s_sub_u32 s{sN}, s{sN}, 1
    s_cmp_lg_u32 s{sN}, 0
    s_cbranch_scc1 M_lx
    s_cmp_eq_u32 s{sW}, 0
    s_cselect_b32 s48, s74, s76
    s_cselect_b32 s49, s75, s77
    s_mov_b32 s50, 896
    s_mov_b32 s51, 0x20000
    s_cselect_b32 s{t0}, 0, 1024
    s_add_u32 m0, s{t0}, {WL}
    s_nop 0
    buffer_load_dwordx4 v4, s[48:51], 0 offen lds
    s_mov_b64 exec, -1
    v_mov_b32 v8, -1
    v_mov_b32 v9, -1
    v_mov_b32 v10, -1
    v_mov_b32 v11, -1
    """)
    a(f"""
    s_lshl_b32 s{t0}, s{sXF}, 10
    s_add_u32 s{t1}, s{t0}, {MEMS_OFF+MEMS_STEP}
    s_cmp_eq_u32 s{S_XCC}, 0
    s_cbranch_scc0 M_s1b
    M_s1:
    buffer_store_dwordx4 v[8:11], v4, {WSs}, s{t1} offen
    s_add_u32 s{t1}, s{t1}, {128*1024}
    s_cmp_lt_u32 s{t1}, {MEMR_OFF}
    s_cbranch_scc1 M_s1
    s_branch M_s1e
    M_s1b:
    buffer_store_dwordx4 v[8:11], v4, {WSs}, s{t1} offen sc1
    s_add_u32 s{t1}, s{t1}, {128*1024}
    s_cmp_lt_u32 s{t1}, {MEMR_OFF}
    s_cbranch_scc1 M_s1b
    M_s1e:
    s_add_u32 s{t1}, s{t0}, {MEMR_OFF+MEMS_STEP}
    M_s2:
    buffer_store_dwordx4 v[8:11], v4, {WSs}, s{t1} offen sc1
    s_add_u32 s{t1}, s{t1}, {128*1024}
    s_cmp_lt_u32 s{t1}, {SENT_END}
    s_cbranch_scc1 M_s2
    v_mov_b32 v12, 0
    v_lshlrev_b32 v13, 2, v{LN}
    s_lshl_b32 s{t2}, s{sXF}, 7
    s_add_u32 s{t2}, s{t2}, {PROG_OFF}
    s_mov_b32 exec_hi, 0
    buffer_store_dword v12, v13, {WSs}, s{t2} offen sc1
    s_mov_b64 exec, -1
    s_cmp_ge_u32 s{sM}, 7
    s_cbranch_scc1 P_nomem
    s_mov_b32 s52, s60
    s_mov_b32 s53, s61
    s_mov_b32 s54, 7168
    s_mov_b32 s55, 0x20000
    v_bfe_u32 v12, v{LN}, 1, 3
    v_mul_u32_u24 v12, 896, v12
    v_lshl_add_u32 v12, v{G}, 5, v12
    v_and_b32 v14, 1, v{LN}
    v_lshl_add_u32 v12, v14, 2, v12
    s_lshl_b32 s{t0}, s{sM}, 7
    s_lshl3_add_u32 s{t0}, s{sW}, s{t0}
    s_lshl_b32 s{t1}, s{sW}, 2
    v_add_u32 v14, s{t1}, v4
    buffer_load_dword v16, v12, s[52:55], s{t0} offen
    s_lshl_b32 s{t1}, s{sM}, 10
    s_add_u32 s{t1}, s{t1}, {MEMS_OFF}
    s_add_u32 s{t2}, s{t1}, {MEMR_OFF-MEMS_OFF}
    s_waitcnt vmcnt(0)
    buffer_store_dword v16, v14, {WSs}, s{t1} offen sc1
    buffer_store_dword v16, v14, {WSs}, s{t2} offen sc1
    P_nomem:
    """)
    ev(a, 2)
    a("s_waitcnt vmcnt(13)")
    ev(a, 3)
    a(f"""
    s_barrier
    s_and_b32 s{sODD}, s{sW}, 1
    s_mul_i32 s{t0}, s{sW}, 7
    s_add_u32 s{sCC0}, s{t0}, s{sODD}
    s_lshr_b32 s{sCC0}, s{sCC0}, 1
    s_add_u32 s{t1}, s{t0}, 6
    s_cmp_eq_u32 s{sODD}, 1
    s_cselect_b32 s{sCCL}, s{t0}, s{t1}
    s_lshr_b32 s{sCCL}, s{sCCL}, 1
    v_and_b32 v20, 1, v{G}
    v_lshrrev_b32 v21, 1, v{G}
    v_cmp_eq_u32 vcc, 1, v20
    v_add_u32 v22, s{sCC0}, v20
    s_add_u32 s{t0}, s{sCC0}, 2
    v_mov_b32 v23, s{t0}
    v_mov_b32 v24, s{sCCL}
    v_cndmask_b32 v23, v23, v24, vcc
    s_sub_u32 s{t0}, s{sODD}, 1
    s_not_b32 s{t1}, s{t0}
    v_mov_b32 v24, s{t0}
    v_cndmask_b32 v30, -1, v24, vcc
    v_mov_b32 v24, s{t1}
    v_cndmask_b32 v31, -1, v24, vcc
    v_mov_b32 v28, -1
    v_mov_b32 v29, -1
    v_bfe_u32 v25, v{L15}, 1, 1
    v_lshlrev_b32 v25, 4, v25
    v_lshrrev_b32 v26, 2, v{L15}
    v_lshl_add_u32 v25, v26, 2, v25
    v_and_b32 v26, 1, v{L15}
    v_lshl_add_u32 v25, v26, 1, v25
    v_mul_u32_u24 v25, 912, v25
    v_lshl_add_u32 v25, v21, 4, v25
    v_lshl_add_u32 v6, v22, 6, v25
    v_lshl_add_u32 v7, v23, 6, v25
    s_mul_i32 s{t0}, s{sM}, {2*XK_STEP}
    s_lshl_b32 s{t1}, s{sW}, 13
    s_add_u32 s{t0}, s{t0}, s{t1}
    s_add_u32 s{t0}, s{t0}, {XK_OFF}
    s_mov_b32 s{t1}, 4096
    s_mov_b32 s{sN}, 4
    M_xk:
    """)
    base = 32
    for t in range(2):
        for b in range(2):
            o4 = (t * 912 + b * 32) // 4
            a(f"ds_read2_b32 {vr(base+8*t+4*b,2)}, v6 offset0:{o4} offset1:{o4+2}")
            a(f"ds_read2_b32 {vr(base+8*t+4*b+2,2)}, v6 offset0:{o4+1} offset1:{o4+3}")
    a(f"v_add_u32 v6, {32*912}, v6")
    a("v_swap_b32 v6, v7")
    a("s_waitcnt lgkmcnt(0)")
    for r in range(16):
        a(f"v_and_b32 v{base+r}, v{base+r}, v{28+(r&1)}")
    a("v_swap_b32 v28, v30")
    a("v_swap_b32 v29, v31")
    a(f"s_cmp_eq_u32 s{S_XCC}, 0\ns_cbranch_scc0 M_xkb")
    for f in range(4):
        a(f"buffer_store_dwordx4 {vr(base+4*f,4)}, v4, {WSs}, s{t0} offen offset:{f*1024}")
    a("s_branch M_xke\nM_xkb:")
    for f in range(4):
        a(f"buffer_store_dwordx4 {vr(base+4*f,4)}, v4, {WSs}, s{t0} offen offset:{f*1024} sc1")
    a.label("M_xke")
    a(f"""
    s_add_u32 s{t0}, s{t0}, s{t1}
    s_sub_u32 s{t1}, {XK_STEP}, s{t1}
    s_sub_u32 s{sN}, s{sN}, 1
    s_cmp_lg_u32 s{sN}, 0
    s_cbranch_scc1 M_xk
    s_waitcnt vmcnt(0)
    s_barrier
    s_cmp_lg_u32 s{sW}, 0
    s_cbranch_scc1 M_ka
    v_accvgpr_read_b32 v5, a254
    s_lshl_b32 s{t0}, s{sM}, 6
    s_add_u32 s{t0}, s{t0}, {FL_OFF + 224*64 + 4}
    v_mov_b32 v2, 0
    v_add_u32 v5, 1, v5
    s_mov_b64 exec, 1
    buffer_store_dword v5, v2, {WSs}, s{t0} offen sc1
    s_mov_b64 exec, -1
    M_ka:
    v_lshrrev_b32 v{G}, 4, v{LN}
    s_lshl_b32 s{t0}, s{sW}, 4
    v_add_u32 v6, s{t0}, v{L15}
    v_mul_u32_u24 v6, 912, v6
    v_lshl_add_u32 v6, v{G}, 4, v6
    v_lshlrev_b32 v7, 4, v{G}
    v_add_u32 v7, {WL}, v7
    s_mul_i32 s{t0}, s{sXF}, {14*FR}
    s_add_u32 s{t0}, s{t0}, {XF_OFF}
    v_mov_b32 v8, 0
    v_mov_b32 v9, 0
    s_mov_b32 s{sN}, 14
    M_xf:
    ds_read_b128 v[16:19], v6
    ds_read_b128 v[20:23], v7
    ds_read_b128 v[24:27], v7 offset:1024
    v_add_u32 v6, 64, v6
    v_add_u32 v7, 64, v7
    s_waitcnt lgkmcnt(0)
    buffer_store_dwordx4 v[16:19], v4, {WSs}, s{t0} offen sc1
    """)
    for q in range(4):
        a(f"v_dot2_f32_bf16 v8, v{16+q}, v{20+q}, v8")
        a(f"v_dot2_f32_bf16 v9, v{16+q}, v{24+q}, v9")
    a(f"""
    s_add_u32 s{t0}, s{t0}, 1024
    s_sub_u32 s{sN}, s{sN}, 1
    s_cmp_lg_u32 s{sN}, 0
    s_cbranch_scc1 M_xf
    v_mov_b32 v10, v8
    v_mov_b32 v11, v9
    v_permlane16_swap_b32 v8, v10
    v_permlane16_swap_b32 v9, v11
    v_add_f32 v8, v8, v10
    v_add_f32 v9, v9, v11
    v_mov_b32 v10, v8
    v_mov_b32 v11, v9
    v_permlane32_swap_b32 v8, v10
    v_permlane32_swap_b32 v9, v11
    v_add_f32 v8, v8, v10
    v_add_f32 v9, v9, v11
    v_cvt_pk_bf16_f32 v9, v9, v9
    v_and_b32 v9, 0xffff0000, v9
    v_mul_f32 v9, {f32hex(-LOG2E)}, v9
    v_exp_f32 v9, v9
    v_add_f32 v9, 1.0, v9
    v_rcp_f32 v9, v9
    v_cvt_pk_bf16_f32 v9, v9, v9
    v_and_b32 v9, 0xffff0000, v9
    s_lshl_b32 s{t2}, s{sXF}, 6
    s_add_u32 s{t2}, s{t2}, {RG_OFF}
    s_mov_b64 exec, 0xffff
    buffer_store_dword v8, v13, {WSs}, s{t2} offen sc1
    s_add_u32 s{t2}, s{t2}, 8192
    buffer_store_dword v9, v13, {WSs}, s{t2} offen sc1
    s_mov_b64 exec, -1
    s_lshl_b32 s89, s{sM}, 6
    s_add_u32 s89, s89, {224*64}
    """)
```

```python
D, H, M, SEG, NSEG = 448, 16, 8, 32, 64
FR = 1024
WA_OFF = 0x0
WSZ = 16 * 28 * 14 * FR
WB_OFF = WSZ
VX_OFF = 2 * WSZ
VXSZ = 64 * 16 * 14 * 2 * FR
VX_STEP = 16 * 28 * FR
TX_OFF = VX_OFF + VXSZ
MEMS_OFF = TX_OFF + VXSZ
MEMS_STEP = 7 * FR
PS_OFF = MEMS_OFF + 64 * MEMS_STEP
PS_W = 3 * FR
PS_STEP = 4 * PS_W
MEMR_OFF = PS_OFF + 64 * PS_STEP
SENT_END = MEMR_OFF + 64 * MEMS_STEP
PROG_OFF = SENT_END
PROG_SZ = 256 * 64
MFLAG_OFF = PROG_OFF + 255 * 64
XK_OFF = PROG_OFF + PROG_SZ
XK_STEP = 32 * FR
XF_OFF = XK_OFF + 64 * XK_STEP
RG_OFF = XF_OFF + 128 * 14 * FR
VP_OFF = RG_OFF + 16384
PX_OFF = VP_OFF + 64 * 224 * FR
PX_U = 1536
YM_OFF = PX_OFF + 64 * 2 * 16 * PX_U
FL_OFF = YM_OFF + 65536
EP_OFF = FL_OFF + 256 * 64
GO_OFF = EP_OFF + 128
STAMP_OFF = FL_OFF + 32768
WS_USED = STAMP_OFF + (1 << 20)


def colA(tile, m):
    return 32 * (tile >> 1) + 8 * (m >> 2) + 4 * (tile & 1) + (m & 3)


def colB(tile, m):
    return 32 * (tile >> 1) + 2 * m + (tile & 1)


def xkey_of_slot(gb, s):
    return 4 * gb + s if s < 4 else 16 + 4 * gb + (s - 4)


def skey(t, n):
    return 16 * ((n >> 1) & 1) + 4 * (n >> 2) + 2 * (n & 1) + t


def xk_col(w, sg, beta, gb):
    odd = w & 1
    cc0 = (7 * w + odd) >> 1
    ccl = (7 * w if odd else 7 * w + 6) >> 1
    if sg == 0:
        return 32 * (cc0 + (gb & 1)) + 8 * (2 * beta + (gb >> 1))
    if gb & 1:
        return 32 * ccl + 8 * (2 * beta + (gb >> 1))
    return 32 * (cc0 + 2) + 8 * (2 * beta + (gb >> 1))
```

```python
import sys
from asmlib import *
from layout import *
import gen_chain as gc

HDR = open("gated_mix__memory_aug_recurrent_mem_tr__moe_arch_mod__prompt.s.ref").read().split("; Override launch")[0]

def kd(name, vgpr, accum, sgpr=102):
    return f""".p2align 6
.amdhsa_kernel {name}
  .amdhsa_next_free_vgpr {vgpr}
  .amdhsa_next_free_sgpr {sgpr}
  .amdhsa_accum_offset {accum}
  .amdhsa_group_segment_fixed_size 0
  .amdhsa_kernarg_size 128
  .amdhsa_user_sgpr_count 2
  .amdhsa_user_sgpr_kernarg_segment_ptr 1
  .amdhsa_system_sgpr_workgroup_id_x 1
.end_amdhsa_kernel
"""

def kstart(a, name):
    a.raw(f".globl {name}\n.p2align 8\n.type {name},@function\n{name}:")
    a.hist = []

KN = "gated_mix__memory_aug_recurrent_mem_tr__moe_arch_mod__prompt_kernel"

def build(diag=False, force_fb=False, aslist=False):
    import gen_help as gh
    import gen_pre
    gen_pre.DIAG = diag
    a = Asm()
    kstart(a, KN)
    gc.gen_main_prologue(a, force_fb, diag)
    gh.gen_helper(a, diag)
    a.label("L_exit")
    a("s_endpgm")
    gc.gen_T(a, diag)
    gc.gen_V(a, diag)
    gc.gen_warm(a)
    gc.gen_overflow(a)
    a.raw("L_code_end:")
    a.raw(f".set CODE_BYTES, L_code_end-{KN}")
    hdr = HDR + (f"; @launch kernel={KN} " if aslist else "; @launch ") + "grid=(256,1,1) block=(256,1,1) lds=163840\n"
    txt = hdr + '.amdgcn_target "amdgcn-amd-amdhsa--gfx950"\n.text\n' + a.text() + '.section .rodata,"a"\n' + kd(KN, 512, 256)
    return txt, a

if __name__ == "__main__":
    for kv in sys.argv[2:]:
        if "=" in kv:
            k, v = kv.split("="); gc.OPT[k] = int(v)
    txt, a = build(diag="diag" in sys.argv, force_fb="fb" in sys.argv, aslist="final" not in sys.argv)
    open(sys.argv[1], "w").write(txt)
    print("pads:", a.pads, "lines", len(a.lines))
    if "v" in sys.argv:
        for ln, p, t in a.padlog: print("  pad", p, "before", t)
```

```python
from asmlib import *
from layout import *
import gen_pre as gpre

S_X, S_OUT, S_DBG, S_WS = 4, 8, 10, 12
SRD_WS, SRD_X, SRD_DBG = 16, 20, 24
S_WAVE, S_ROLE, S_FB, S_LIM, S_CNT, S_STEP = 28, 29, 30, 31, 32, 33
S_K = 34
S_T0, S_T1, S_T2, S_T3 = 41, 42, 43, 44
S_MEMOFF, S_PSOFF = 45, 46
S_XO = 47
S_SLP, S_SL2 = 48, 49
S_RDY, S_MN = 56, 57
S_XB = 58
S_EP = 59
S_STP = 60
S_CNTS = 64
S_STB = 87
SPIN_LIMIT = 200000
OPT = dict(sleepT=0, sleepV=0, nox=0, sleepVm=0, memtime=0, novx=0, lat=0, nowarm=0, lead=3, wide=0, adapt=0, nomn=1, vdelay=0, lo=1, hi=2, nvx=0, rsleep=8, nb=10, w64=1, wfirst=0, wgap=2, evtonly=0, lightT=0, lightV=0, tstride=7, g_nold=0, g_plain=0, clk=0, csl=8, tlb=0, xfwarm=1, hsl=8, vpsl=2, direct=0, f2pre=16, f2sl=4, ovl=1, gfl=5, pw=1)
WS = f"s[{SRD_WS}:{SRD_WS+3}]"
XS = f"s[{SRD_X}:{SRD_X+3}]"
DBG = f"s[{SRD_DBG}:{SRD_DBG+3}]"
OOB = 0x7FFFFFF0

T_TR, T_PART = 8192, 20480
V_PART, V_WL = 8192, 16384
NWL = 12

V_IDX, V_FA, V_TMP = 1, 2, 19
MF, ACC = 20, 48
LN, G4, L15 = 40, 41, 42


def common_setup(a):
    a(f"""
    v_and_b32 v{LN}, 63, v0
    v_lshrrev_b32 v{G4}, 4, v{LN}
    v_and_b32 v{L15}, 15, v{LN}
    v_and_b32 v20, 1, v0
    v_cmp_eq_u32 vcc, 0, v20
    v_mov_b32 v20, 0xEEEE
    v_mov_b32 v21, 0x4444
    v_cndmask_b32 v{V_IDX}, v20, v21, vcc
    s_lshl_b32 s{S_T0}, s{S_WAVE}, 1
    """)
    for u in range(7):
        a(f"""
        s_add_u32 s{S_T1}, s{S_T0}, {u}
        s_sub_u32 s{S_T2}, s{S_T1}, 7
        s_cmp_ge_u32 s{S_T1}, 7
        s_cselect_b32 s{S_K+u}, s{S_T2}, s{S_T1}
        s_lshl_b32 s{S_T1}, s{S_K+u}, 10
        v_lshl_add_u32 v{V_FA+u}, v{LN}, 4, s{S_T1}
        """)
    a(f"s_mov_b32 s{S_LIM}, {SPIN_LIMIT}")
    a(f"s_mov_b32 s{S_STEP}, 0")
    a(f"s_mov_b32 s{S_MEMOFF}, {MEMS_OFF}")
    a(f"s_mov_b32 s{S_PSOFF}, {PS_OFF}")


def poll(a, loads, regs, depth2=True, sleep=0):
    n = len(loads)
    top, done = a.newlabel("poll"), a.newlabel("polled")
    a(f"s_mov_b32 s{S_CNT}, s{S_LIM}")
    if depth2:
        for l in loads:
            a(l)
    a.label(top)
    for l in loads:
        a(l)
    a(f"s_waitcnt vmcnt({n if depth2 else 0})")
    r = list(regs)
    a(f"v_max3_u32 v{V_TMP}, v{r[0]}, v{r[1]}, v{r[2]}")
    r = r[3:]
    while len(r) >= 2:
        a(f"v_max3_u32 v{V_TMP}, v{V_TMP}, v{r[0]}, v{r[1]}"); r = r[2:]
    if r:
        a(f"v_max_u32 v{V_TMP}, v{V_TMP}, v{r[0]}")
    a(f"v_cmp_eq_u32 vcc, -1, v{V_TMP}")
    a(f"s_cbranch_vccz {done}")
    if sleep:
        a(f"s_sleep {sleep}")
    a(f"""
    s_sub_u32 s{S_CNT}, s{S_CNT}, 1
    s_cmp_lg_u32 s{S_CNT}, 0
    s_cbranch_scc1 {top}
    s_mov_b32 s{S_LIM}, 1
    """)
    a.label(done)


def chk4(a, r, ok):
    a(f"v_max3_u32 v{V_TMP}, v{r}, v{r+1}, v{r+2}")
    a(f"v_max_u32 v{V_TMP}, v{V_TMP}, v{r+3}")
    a(f"v_cmp_eq_u32 vcc, -1, v{V_TMP}")
    a(f"s_cbranch_vccz {ok}")


def light(a, load, reg, name):
    a(f"s_mov_b32 s{S_CNT}, s{S_LIM}")
    a(load)
    a.label(name)
    a(load)
    a("s_waitcnt vmcnt(1)")
    a(f"v_cmp_ne_u32 vcc, -1, v{reg}")
    a(f"s_cbranch_vccnz {name}_go")
    retry(a, name)
    a.label(name + "_go")


def retry(a, top):
    a(f"""
    s_sub_u32 s{S_CNT}, s{S_CNT}, 1
    s_cmp_lg_u32 s{S_CNT}, 0
    s_cbranch_scc1 {top}
    s_mov_b32 s{S_LIM}, 1
    """)


def backoff(a, sreg):
    top, done = a.newlabel("bo"), a.newlabel("bod")
    a(f"""
    s_mov_b32 s{S_T0}, s{sreg}
    {top}:
    s_cmp_eq_u32 s{S_T0}, 0
    s_cbranch_scc1 {done}
    s_sleep 1
    s_sub_u32 s{S_T0}, s{S_T0}, 1
    s_branch {top}
    {done}:
    """)


def adapt(a, sreg, saved):
    lo, hi = OPT["lo"], OPT["hi"]
    a(f"""
    s_sub_u32 s{S_T0}, s{S_LIM}, s{saved}
    s_sub_u32 s{S_T1}, s{sreg}, 1
    s_max_i32 s{S_T1}, s{S_T1}, 0
    s_cmp_lt_u32 s{S_T0}, {lo}
    s_cselect_b32 s{sreg}, s{S_T1}, s{sreg}
    s_sub_u32 s{S_T1}, s{S_T0}, {hi}
    s_add_u32 s{S_T1}, s{S_T1}, s{sreg}
    s_min_u32 s{S_T1}, s{S_T1}, 48
    s_cmp_gt_u32 s{S_T0}, {hi}
    s_cselect_b32 s{sreg}, s{S_T1}, s{sreg}
    """)


def stamp(a, k, diag):
    if diag and not OPT["evtonly"]:
        a(f"{'s_memtime' if OPT['memtime'] else 's_memrealtime'} s[{S_STP+2*k}:{S_STP+2*k+1}]")


def stamp_setup(a, diag):
    if diag:
        a(f"s_lshl_b32 s{S_STB}, s{S_ROLE}, 2\ns_add_u32 s{S_STB}, s{S_STB}, s{S_WAVE}\ns_lshl_b32 s{S_STB}, s{S_STB}, 11\ns_add_u32 s{S_STB}, s{S_STB}, {STAMP_OFF}")


def stamp_store(a, n, diag, t0, t1):
    if not diag or OPT["evtonly"]:
        return
    a("s_waitcnt lgkmcnt(0)")
    a(f"s_lshl_b32 s{S_T0}, s{S_STEP}, 5")
    a(f"s_add_u32 s{S_T0}, s{S_T0}, s{S_STB}")
    a("s_mov_b64 exec, 1")
    for k in range(n):
        a(f"v_mov_b32 v{t0}, s{S_STP+2*k}")
        a(f"v_mov_b32 v{t1}, {4*k}")
        a(f"buffer_store_dword v{t0}, v{t1}, {WS}, s{S_T0} offen")
    a("s_mov_b64 exec, -1")


EVT_OFF = STAMP_OFF + (1 << 19)


def evt(a, k, diag, t0, t1, role=None):
    if not diag:
        return
    a(f"""
    s_memrealtime s[96:97]
    s_lshl_b32 s98, s{S_ROLE if role is None else role}, 2
    s_add_u32 s98, s98, s{S_WAVE}
    s_lshl_b32 s98, s98, 5
    s_add_u32 s98, s98, {EVT_OFF + 4*k}
    s_waitcnt lgkmcnt(0)
    v_mov_b32 v{t0}, s96
    v_mov_b32 v{t1}, 0
    s_mov_b64 exec, 1
    buffer_store_dword v{t0}, v{t1}, {WS}, s98 offen
    s_mov_b64 exec, -1
    s_waitcnt vmcnt(0)
    """)


def smf(acc, A, B):
    return f"v_smfmac_f32_16x16x64_bf16 {vr(acc,4)}, {vr(A,4)}, {B}, v{V_IDX}"


DPPS = ["quad_perm:[1,0,3,2]", "quad_perm:[2,3,0,1]", "row_half_mirror", "row_mirror"]


def mem_polls():
    return [f"buffer_load_dwordx4 {vr(MF+4*u,4)}, v{V_FA+u}, {WS}, s{S_MEMOFF} offen sc1" for u in range(2)]


def gen_T(a, diag=False):
    SA, XK = 76, 88
    (V_M0, V_M1, V_MK0, V_MK1, V_TW, V_TRD, V_PW, V_PR, V_PA0, V_PA1) = range(9, 19)
    V_MASK = 0

    def W(jj, u):
        o = (u * 7 + jj) if u < 2 else 14 + jj * 5 + (u - 2)
        return ar(8 * o, 8) if o < 32 else vr(120 + 8 * (o - 32), 8)

    a.label("L_role_T")
    a.c("T role: head = S_ROLE")
    evt(a, 1, diag, 20, 21)
    common_setup(a)
    h = S_ROLE
    S_ODD, S_TAU0, S_TAUL, S_CC0, S_CCL = 80, 81, 82, 83, 84
    a(f"""
    s_and_b32 s{S_ODD}, s{S_WAVE}, 1
    s_mul_i32 s{S_T0}, s{S_WAVE}, 7
    s_add_u32 s{S_TAU0}, s{S_T0}, s{S_ODD}
    s_lshr_b32 s{S_CC0}, s{S_TAU0}, 1
    s_add_u32 s{S_T1}, s{S_T0}, 6
    s_cmp_eq_u32 s{S_ODD}, 1
    s_cselect_b32 s{S_TAUL}, s{S_T0}, s{S_T1}
    s_lshr_b32 s{S_CCL}, s{S_TAUL}, 1
    v_lshlrev_b32 v43, 4, v{LN}
    v_sub_u32 v43, 0, v43
    s_mul_i32 s{S_T3}, s{h}, {28*14*FR}
    """)
    fwait(a, f"""
    s_mul_i32 s{S_T1}, s{S_WAVE}, 7
    s_add_u32 s{S_T2}, s{S_T1}, 6
    s_lshr_b32 s{S_T1}, s{S_T1}, 2
    s_lshr_b32 s{S_T2}, s{S_T2}, 2
    s_lshl1_add_u32 s{S_T2}, s{S_T2}, 1
    v_lshrrev_b32 v20, 2, v{LN}
    v_lshl_add_u32 v20, s{S_T1}, 1, v20
    v_min_u32 v20, s{S_T2}, v20
    s_mul_i32 s{S_T1}, s{h}, 14
    v_add_u32 v20, s{S_T1}, v20
    v_lshlrev_b32 v20, 6, v20
    v_and_b32 v21, 3, v{LN}
    v_lshl_add_u32 v20, v21, 2, v20
    """, 20, OPT["csl"], perwave=bool(OPT["pw"])) if OPT["pw"] else fwait(a, f"s_mul_i32 s{S_T1}, s{h}, {14*64}\nv_min_u32 v20, 55, v{LN}\nv_and_b32 v21, 3, v20\nv_lshrrev_b32 v20, 2, v20\nv_lshlrev_b32 v20, 6, v20\nv_lshl_add_u32 v20, v21, 2, v20\nv_add_u32 v20, s{S_T1}, v20", 20, OPT["csl"])
    evt(a, 4, diag, 20, 21)
    a.c("weights -> registers")
    for u in range(7):
        a(f"v_lshl_add_u32 v{ACC+u}, v{V_FA+u}, 1, v43")
    a(f"s_mul_i32 s{S_T0}, s{S_TAU0}, {14*FR}")
    a(f"s_add_u32 s{S_T0}, s{S_T0}, s{S_T3}")
    a(f"s_mov_b32 s{S_T1}, {14*FR}")
    for jj in range(7):
        if jj == 6:
            a(f"s_mul_i32 s{S_T0}, s{S_TAUL}, {14*FR}")
            a(f"s_add_u32 s{S_T0}, s{S_T0}, s{S_T3}")
        for u in range(7):
            w = W(jj, u)
            k, base = w[0], int(w[2:].split(":")[0])
            a(f"buffer_load_dwordx4 {k}[{base}:{base+3}], v{ACC+u}, {WS}, s{S_T0} offen")
            a(f"buffer_load_dwordx4 {k}[{base+4}:{base+7}], v{ACC+u}, {WS}, s{S_T0} offen offset:1024")
        if jj < 5:
            a(f"s_add_u32 s{S_T0}, s{S_T0}, s{S_T1}")
    a.c("address registers")
    a(f"""
    v_and_b32 v20, 1, v{G4}
    v_lshrrev_b32 v21, 1, v{G4}
    v_cmp_eq_u32 vcc, 1, v20
    v_add_u32 v22, s{S_CC0}, v20
    s_add_u32 s{S_T0}, s{S_CC0}, 2
    v_mov_b32 v23, s{S_T0}
    v_mov_b32 v24, s{S_CCL}
    v_cndmask_b32 v23, v23, v24, vcc
    s_sub_u32 s{S_T0}, s{S_ODD}, 1
    s_not_b32 s{S_T1}, s{S_T0}
    v_mov_b32 v24, s{S_T0}
    v_cndmask_b32 v{V_M0}, -1, v24, vcc
    v_mov_b32 v24, s{S_T1}
    v_cndmask_b32 v{V_M1}, -1, v24, vcc
    v_and_b32 v25, 7, v{L15}
    v_lshlrev_b32 v25, 5, v25
    v_lshl_add_u32 v25, v21, 3, v25
    v_lshl_add_u32 v{V_MK0}, v22, 9, v25
    v_lshl_add_u32 v{V_MK1}, v23, 9, v25
    s_mul_i32 s{S_T2}, s{S_WAVE}, 2560
    s_add_u32 s{S_T2}, s{S_T2}, {T_TR}
    v_lshlrev_b32 v25, 3, v{LN}
    v_lshl_add_u32 v25, v21, 6, v25
    v_add_u32 v{V_TW}, s{S_T2}, v25
    v_and_b32 v25, 3, v{L15}
    v_lshrrev_b32 v26, 1, v25
    v_lshlrev_b32 v25, 7, v25
    v_lshl_add_u32 v25, v26, 6, v25
    v_lshrrev_b32 v26, 2, v{LN}
    v_lshl_add_u32 v25, v26, 3, v25
    v_add_u32 v{V_TRD}, s{S_T2}, v25
    s_lshl_b32 s{S_T2}, s{S_WAVE}, 11
    s_add_u32 s{S_T2}, s{S_T2}, {T_PART}
    v_lshlrev_b32 v25, 9, v{G4}
    v_lshl_add_u32 v25, v{L15}, 4, v25
    v_add_u32 v{V_PW}, s{S_T2}, v25
    s_lshl_b32 s{S_T2}, s{S_WAVE}, 9
    s_add_u32 s{S_T2}, s{S_T2}, {T_PART}
    v_and_b32 v25, 31, v{LN}
    v_lshl_add_u32 v{V_PR}, v25, 4, s{S_T2}
    s_lshl_b32 s{S_T0}, s{S_WAVE}, 1
    v_add_u32 v26, s{S_T0}, v20
    s_and_b32 s85, s{h}, 1
    s_bfe_u32 s86, s{h}, 0x10001
    s_lshr_b32 s{S_T0}, s{h}, 2
    s_mul_i32 s{S_T0}, s{S_T0}, {PS_W}
    s_lshl_b32 s{S_T1}, s86, 10
    s_add_u32 s{S_T1}, s{S_T1}, s{S_T0}
    s_lshl_b32 s{S_T2}, s85, 9
    s_add_u32 s{S_T1}, s{S_T1}, s{S_T2}
    v_lshrrev_b32 v27, 3, v{L15}
    v_lshlrev_b32 v27, 8, v27
    v_lshl_add_u32 v27, v26, 5, v27
    v_and_b32 v28, 1, v{L15}
    v_lshl_add_u32 v27, v28, 4, v27
    v_bfe_u32 v29, v{L15}, 1, 2
    v_lshl_add_u32 v27, v29, 2, v27
    v_add_u32 v27, s{S_T1}, v27
    s_add_u32 s{S_T1}, s{S_T0}, 2048
    s_lshl_b32 s{S_T2}, s86, 9
    s_add_u32 s{S_T1}, s{S_T1}, s{S_T2}
    s_lshl_b32 s{S_T2}, s85, 2
    s_add_u32 s{S_T1}, s{S_T1}, s{S_T2}
    v_bfe_u32 v29, v{L15}, 2, 1
    v_lshlrev_b32 v29, 8, v29
    v_lshl_add_u32 v29, v26, 5, v29
    v_lshl_add_u32 v29, v28, 4, v29
    v_bfe_u32 v30, v{L15}, 1, 1
    v_lshl_add_u32 v29, v30, 3, v29
    v_add_u32 v29, s{S_T1}, v29
    v_mov_b32 v30, {OOB}
    v_cmp_gt_u32 vcc, 32, v{LN}
    v_cndmask_b32 v{V_PA0}, v30, v27, vcc
    v_cndmask_b32 v29, v30, v29, vcc
    v_cmp_gt_u32 vcc, 8, v{L15}
    v_cndmask_b32 v{V_PA1}, v30, v29, vcc
    v_mov_b32 v30, 0xf149f2ca
    v_cndmask_b32 v{V_MASK}, v30, 0, vcc
    s_lshl_b32 s{S_XO}, s{S_WAVE}, 13
    s_add_u32 s{S_XO}, s{S_XO}, {XK_OFF}
    s_lshl_b32 s{S_T0}, s{S_K}, 10
    s_sub_u32 s{S_XO}, s{S_XO}, s{S_T0}
    s_mov_b32 s{S_SLP}, 0
    """)
    stamp_setup(a, diag)

    def xloads():
        for sg in range(2):
            for f in range(4):
                a(f"buffer_load_dwordx4 {vr(XK+16*sg+4*f,4)}, v{V_FA}, {WS}, s{S_XO} offen offset:{f*1024}")
            a(f"s_add_u32 s{S_XO}, s{S_XO}, {4096 if sg == 0 else XK_STEP-4096}")

    def zero():
        for r in range(28):
            a(f"v_mov_b32 v{ACC+r}, 0")
        for r in range(12):
            a(f"v_mov_b32 v{SA+r}, " + (f"v{V_MASK}" if r in (8, 10) else "0"))

    kwait(a, 20)
    chain_mode(a, 20, 21)
    fb_fixup(a, 20)
    xloads()
    zero()
    a("s_waitcnt vmcnt(0) lgkmcnt(0)")
    evt(a, 2, diag, 20, 21)
    a("s_barrier")

    acc = lambda j: ACC + 4 * j
    a.label("L_T_step")
    NB = OPT["nb"]
    own = [smf(acc(j), MF + 4 * u, W(j, u)) for u in range(2) for j in range(7)]
    rd = [f"ds_read_b128 {vr(MF+4*u,4)}, v{V_FA+u}" for u in range(2, 7)]
    wr = [f"ds_write_b64 v{V_FA+u}, {vr(MF+4*u+2*k,2)} offset:{8*k}" for u in range(2) for k in range(2)]
    L0, L1 = mem_polls()
    if OPT["lightT"]:
        light(a, L0, MF, "L_T_light")
    a(f"s_mov_b32 s{S_CNT}, s{S_LIM}")
    a(L0); a(L1)
    a.label("L_T_pollA")
    a(L0); a(L1)
    a("s_waitcnt vmcnt(3)")
    chk4(a, MF, "polled_T")
    retry(a, "L_T_pollA")
    a.label("polled_T")
    stamp(a, 0, diag)
    a(own[0]); a(wr[0]); a(own[1]); a(wr[1])
    a("s_waitcnt vmcnt(2)")
    a(own[2])
    chk4(a, MF + 4, "L_T_f1ok")
    a(f"s_mov_b32 s{S_CNT}, s{S_LIM}")
    a.label("L_T_pollB")
    a(L1)
    a("s_waitcnt vmcnt(1)")
    chk4(a, MF + 4, "L_T_f1ok")
    retry(a, "L_T_pollB")
    a.label("L_T_f1ok")
    wr = wr[2:]
    for k in range(3, 14):
        if k == NB:
            a("s_waitcnt lgkmcnt(0)")
            a("s_barrier")
            a(rd.pop(0))
        a(own[k])
        if wr:
            a(wr.pop(0))
        if k >= NB and rd:
            a(rd.pop(0))
    for s_ in rd:
        a(s_)

    MK0, MK1 = MF, acc(2)
    TB0, TB1 = acc(0), acc(1)

    def mkreads(dst, addr):
        return [f"ds_read_b64 {vr(dst+4*b+2*d,2)}, v{addr} offset:{256*b+16*d}" for b in range(2) for d in range(2)]

    def add2(A_):
        return [f"v_add_f32 v{A_}, v{A_}, v{A_+1}", f"v_add_f32 v{A_+2}, v{A_+2}, v{A_+3}"]

    def cvt(p):
        A_, B_ = acc(2 * p), acc(2 * p + 1)
        return [f"v_cvt_pk_bf16_f32 v{B_+3}, v{A_+2}, v{B_+2}", f"v_cvt_pk_bf16_f32 v{B_+2}, v{A_}, v{B_}"]

    def trans(p, wreg, dst):
        return [f"ds_write_b64 v{V_TW}, {vr(wreg,2)} offset:{640*p}", f"ds_read_b64_tr_b16 {vr(dst,2)}, v{V_TRD} offset:{640*p}"]

    def sstep(sg, tb, mk):
        B = [vr(XK + 16 * sg, 8), vr(XK + 16 * sg + 8, 8), vr(mk, 8)]
        return [smf(SA + 4 * t, tb, B[t]) for t in range(3)]

    pre = {n: [] for n in range(35)}
    side = {n: [] for n in range(35)}
    for u in range(5):
        pre[u].append(f"s_waitcnt lgkmcnt({4-u})")
    mk = mkreads(MK0, V_MK0)
    side[5] += ["s_waitcnt vmcnt(0)", mk[0]]
    side[6] += [mk[1]]; side[7] += [mk[2]]; side[10] += [mk[3]]
    for p in range(3):
        n0 = 10 * p
        x = add2(acc(2 * p)); side[n0 + 8].append(x[0]); side[n0 + 9].append(x[1])
        x = add2(acc(2 * p + 1)); side[n0 + 13].append(x[0]); side[n0 + 14].append(x[1])
        if p < 2:
            x = cvt(p); side[n0 + 15].append(x[0]); side[n0 + 16].append(x[1])
            x = trans(p, acc(2 * p + 1) + 2, TB0 + 2 * p); side[n0 + 17].append(x[0]); side[n0 + 18].append(x[1])
    mk = mkreads(MK1, V_MK1)
    side[29] += mk[0:2]
    side[30] += mk[2:4]
    n = 0
    for jj in range(7):
        for u in range(2, 7):
            for s_ in pre[n]:
                a(s_)
            a(smf(acc(jj), MF + 4 * u, W(jj, u)))
            for s_ in side[n]:
                a(s_)
            n += 1
    for s_ in cvt(2) + trans(2, acc(5) + 2, TB1):
        a(s_)
    s0 = sstep(0, TB0, MK0)
    L = acc(6)
    for s_ in add2(L):
        a(s_)
    a(f"v_cvt_pk_bf16_f32 v{L+3}, v{L+2}, v{L+2}")
    a(f"v_cvt_pk_bf16_f32 v{L+2}, v{L}, v{L}")
    for s_ in trans(3, L + 2, TB1 + 2):
        a(s_)
    a("s_waitcnt lgkmcnt(4)")
    for k, s_ in enumerate(s0):
        a(s_)
        for r in range(3 * k, min(3 * k + 3, 8)):
            a(f"v_and_b32 v{MK1+r}, v{MK1+r}, v{V_M0+(r&1)}")
    a("s_waitcnt lgkmcnt(0)")
    for s_ in sstep(1, TB1, MK1):
        a(s_)
    stamp(a, 1, diag)
    Q0, Q1 = acc(4), acc(5)
    for t in range(3):
        a(f"v_add_f32 v{Q0+t}, v{SA+4*t}, v{SA+4*t+1}")
        a(f"v_add_f32 v{Q1+t}, v{SA+4*t+2}, v{SA+4*t+3}")
    a(f"ds_write_b96 v{V_PW}, {vr(Q0,3)}")
    a(f"ds_write_b96 v{V_PW}, {vr(Q1,3)} offset:256")
    a("s_waitcnt lgkmcnt(0)")
    a("s_barrier")
    R = ACC
    for w in range(4):
        a(f"ds_read_b128 {vr(R+4*w,4)}, v{V_PR} offset:{2048*w}")
    a(f"""
    s_waitcnt lgkmcnt(2)
    v_pk_add_f32 {vr(R,2)}, {vr(R,2)}, {vr(R+4,2)}
    v_add_f32 v{R+2}, v{R+2}, v{R+6}
    s_waitcnt lgkmcnt(0)
    v_pk_add_f32 {vr(R+8,2)}, {vr(R+8,2)}, {vr(R+12,2)}
    v_add_f32 v{R+10}, v{R+10}, v{R+14}
    v_pk_add_f32 {vr(R,2)}, {vr(R,2)}, {vr(R+8,2)}
    v_add_f32 v{R+2}, v{R+2}, v{R+10}
    v_max3_f32 v{R+4}, v{R}, v{R+1}, v{R+2}
    """)
    if OPT["ovl"]:
        M = R + 8
        a(f"v_sub_f32 v{R}, v{R}, v{R+4}")
        a(f"v_sub_f32 v{R+1}, v{R+1}, v{R+4}")
        a(f"v_max_f32_dpp v{M}, v{R+4}, v{R+4} {DPPS[0]} row_mask:0xf bank_mask:0xf")
        a(f"v_sub_f32 v{R+2}, v{R+2}, v{R+4}")
        a(f"v_exp_f32 v{R}, v{R}")
        a(f"v_max_f32_dpp v{M}, v{M}, v{M} {DPPS[1]} row_mask:0xf bank_mask:0xf")
        a(f"v_exp_f32 v{R+1}, v{R+1}")
        a(f"v_exp_f32 v{R+2}, v{R+2}")
        a(f"v_max_f32_dpp v{M}, v{M}, v{M} {DPPS[2]} row_mask:0xf bank_mask:0xf")
        a(f"v_add_f32 v{R+5}, v{R}, v{R+1}")
        a(f"v_add_f32 v{R+5}, v{R+5}, v{R+2}")
        a(f"v_max_f32_dpp v{M}, v{M}, v{M} {DPPS[3]} row_mask:0xf bank_mask:0xf")
        a(f"v_sub_f32 v{M}, v{R+4}, v{M}")
        a(f"v_exp_f32 v{M}, v{M}")
        a(f"v_mul_f32 v{R+5}, v{R+5}, v{M}")
        fill = [f"v_mul_f32 v{R+r}, v{R+r}, v{M}" for r in range(3)]
        for k, d in enumerate(DPPS):
            if k < 3:
                a(fill[k])
            a(f"v_add_f32_dpp v{R+5}, v{R+5}, v{R+5} {d} row_mask:0xf bank_mask:0xf")
    else:
        for d in DPPS:
            a(f"v_max_f32_dpp v{R+4}, v{R+4}, v{R+4} {d} row_mask:0xf bank_mask:0xf")
        for r in range(3):
            a(f"v_sub_f32 v{R+r}, v{R+r}, v{R+4}")
        for r in range(3):
            a(f"v_exp_f32 v{R+r}, v{R+r}")
        a(f"v_add_f32 v{R+5}, v{R}, v{R+1}")
        a(f"v_add_f32 v{R+5}, v{R+5}, v{R+2}")
        for d in DPPS:
            a(f"v_add_f32_dpp v{R+5}, v{R+5}, v{R+5} {d} row_mask:0xf bank_mask:0xf")
    a(f"v_rcp_f32 v{R+5}, v{R+5}")
    a(f"""
    v_mul_f32 v{R}, v{R}, v{R+5}
    v_mul_f32 v{R+1}, v{R+1}, v{R+5}
    v_cvt_pk_bf16_f32 v{R+6}, v{R}, v{R+1}
    buffer_store_dword v{R+6}, v{V_PA0}, {WS}, s{S_PSOFF} offen
    v_mul_f32 v{R+2}, v{R+2}, v{R+5}
    v_cvt_pk_bf16_f32 v{R+7}, v{R+2}, v{R+2}
    buffer_store_dword v{R+7}, v{V_PA1}, {WS}, s{S_PSOFF} offen
    s_cmp_eq_u32 s{S_FB}, 0
    s_cbranch_scc1 L_T_nofb
    buffer_store_dword v{R+6}, v{V_PA0}, {WS}, s{S_PSOFF} offen sc1
    buffer_store_dword v{R+7}, v{V_PA1}, {WS}, s{S_PSOFF} offen sc1
    L_T_nofb:
    """)
    stamp(a, 2, diag)
    if OPT["lat"]:
        a("s_waitcnt vmcnt(0) lgkmcnt(0)")
        stamp(a, 3, diag)
    if OPT["clk"] and diag:
        a(f"s_memtime s[{S_STP+6}:{S_STP+7}]")
        a(f"s_memrealtime s[{S_STP+8}:{S_STP+9}]")
    if not OPT["nox"]:
        xloads()
    if OPT["lat"]:
        a("s_waitcnt vmcnt(0)")
        stamp(a, 4, diag)
    stamp_store(a, 5, diag, R + 8, R + 9)
    zero()
    if OPT["sleepT"]:
        a(f"s_sleep {OPT['sleepT']}")
    if OPT["adapt"]:
        adapt(a, S_SLP, S_SL2)
        backoff(a, S_SLP)
    a(f"""
    s_add_u32 s{S_MEMOFF}, s{S_MEMOFF}, {MEMS_STEP}
    s_add_u32 s{S_PSOFF}, s{S_PSOFF}, {PS_STEP}
    s_add_u32 s{S_STEP}, s{S_STEP}, 1
    s_cmp_lt_u32 s{S_STEP}, 63
    s_cbranch_scc1 L_T_step
    s_cmp_lg_u32 s{S_ROLE}, 0
    s_cbranch_scc1 L_T_end
    v_mov_b32 v20, {EP_OFF}
    v_mov_b32 v21, s{S_EP}
    s_mov_b64 exec, 1
    buffer_store_dword v21, v20, {WS}, 0 offen sc1
    s_mov_b64 exec, -1
    L_T_end:
    s_waitcnt vmcnt(0)
    """)
    evt(a, 3, diag, 20, 21)
    a("s_endpgm")


def gen_V(a, diag=False):
    VXB, VPB, PF, WLB = 80, 112, 128, 140
    YA = ACC
    V_L16, V_PQ, V_PW, V_PR, V_MS, V_MN, V_WLA, V_FL = range(9, 17)
    NREG = 56 - NWL

    def order(un, u):
        return (u * 8 + un) if u < 2 else 16 + un * 5 + (u - 2)

    def ldsk(o):
        n = o - 16
        return n // 3 - 1 if (n >= 5 and n % 3 == 2) else None

    def Wreg(o):
        r = o - sum(1 for q in range(o) if ldsk(q) is not None)
        assert r < NREG
        return ar(8 * r, 8) if r < 32 else vr(160 + 8 * (r - 32), 8)

    a.label("L_role_V")
    a.c("V role: column slice c = S_ROLE-16; unit un = 2*hl + t")
    evt(a, 1, diag, 20, 21)
    common_setup(a)
    S_C = 80
    a(f"""
    s_sub_u32 s{S_C}, s{S_ROLE}, 16
    v_lshlrev_b32 v{V_L16}, 4, v{LN}
    s_mul_i32 s{S_XB}, s{S_WAVE}, {NWL*2048}
    s_add_u32 s{S_XB}, s{S_XB}, {V_WL}
    v_add_u32 v{V_WLA}, s{S_XB}, v{V_L16}
    s_lshl_b32 s{S_T3}, s{S_WAVE}, 2
    s_mul_i32 s{S_T3}, s{S_T3}, {28*14*FR}
    s_mul_i32 s{S_T0}, s{S_C}, {2*14*FR}
    s_add_u32 s{S_T3}, s{S_T3}, s{S_T0}
    s_add_u32 s{S_T3}, s{S_T3}, {WB_OFF}
    """)
    fwait(a, f"""
    s_and_b32 s{S_T1}, s{S_C}, 14
    s_mul_i32 s{S_T2}, s{S_WAVE}, 56
    s_add_u32 s{S_T1}, s{S_T1}, s{S_T2}
    v_and_b32 v20, 3, v{LN}
    v_mul_u32_u24 v20, 14, v20
    v_bfe_u32 v21, v{LN}, 2, 1
    v_add3_u32 v20, v20, v21, s{S_T1}
    v_lshlrev_b32 v20, 6, v20
    v_add_u32 v20, 16, v20
    """, 20, OPT["csl"], perwave=True) if OPT["pw"] else fwait(a, f"s_and_b32 s{S_T1}, s{S_C}, 14\nv_mul_u32_u24 v20, 14, v{L15}\nv_and_b32 v21, 1, v{G4}\nv_add3_u32 v20, v20, v21, s{S_T1}\nv_lshlrev_b32 v20, 6, v20\nv_add_u32 v20, 16, v20", 20, OPT["csl"])
    evt(a, 4, diag, 20, 21)
    a(f"v_sub_u32 v43, 0, v{V_L16}")
    for u in range(7):
        a(f"v_lshl_add_u32 v{ACC+u}, v{V_FA+u}, 1, v43")
    a(f"s_mov_b32 m0, s{S_XB}")
    for un in range(8):
        hl, t = un >> 1, un & 1
        a(f"s_add_u32 s{S_T0}, s{S_T3}, {(hl*28+t)*14*FR}")
        for u in range(7):
            o = order(un, u)
            if ldsk(o) is None:
                w = Wreg(o)
                k, base = w[0], int(w[2:].split(":")[0])
                a(f"buffer_load_dwordx4 {k}[{base}:{base+3}], v{ACC+u}, {WS}, s{S_T0} offen")
                a(f"buffer_load_dwordx4 {k}[{base+4}:{base+7}], v{ACC+u}, {WS}, s{S_T0} offen offset:1024")
            else:
                a(f"buffer_load_dwordx4 v{ACC+u}, {WS}, s{S_T0} offen lds")
                a(f"buffer_load_dwordx4 v{ACC+u}, {WS}, s{S_T0} offen offset:1024 lds")
                a(f"s_add_u32 m0, m0, 2048")
    a(f"""
    s_mul_i32 s{S_T0}, s{S_WAVE}, {PS_W}
    v_add_u32 v{V_PQ}, s{S_T0}, v{V_L16}
    s_lshl_b32 s{S_T0}, s{S_WAVE}, 10
    s_add_u32 s{S_T0}, s{S_T0}, {V_PART}
    v_add_u32 v{V_PW}, s{S_T0}, v{V_L16}
    v_and_b32 v20, 1, v{G4}
    v_lshlrev_b32 v21, 4, v{L15}
    v_lshl_add_u32 v21, v20, 3, v21
    s_lshl_b32 s{S_T0}, s{S_WAVE}, 8
    s_add_u32 s{S_T0}, s{S_T0}, {V_PART}
    v_add_u32 v{V_PR}, s{S_T0}, v21
    s_lshl_b32 s{S_T0}, s{S_WAVE}, 1
    v_add_u32 v22, s{S_T0}, v20
    v_lshrrev_b32 v23, 3, v{L15}
    v_lshlrev_b32 v23, 8, v23
    v_lshl_add_u32 v23, v22, 5, v23
    v_and_b32 v24, 1, v{L15}
    v_lshl_add_u32 v23, v24, 4, v23
    v_bfe_u32 v24, v{L15}, 1, 2
    v_lshl_add_u32 v23, v24, 2, v23
    s_lshl_b32 s{S_T0}, s{S_C}, 9
    v_add_u32 v23, s{S_T0}, v23
    v_mul_u32_u24 v24, 896, v22
    v_lshl_add_u32 v24, v{L15}, 2, v24
    s_lshl_b32 s{S_T0}, s{S_C}, 6
    v_add_u32 v24, s{S_T0}, v24
    v_mov_b32 v25, {OOB}
    v_cmp_gt_u32 vcc, 32, v{LN}
    v_cndmask_b32 v{V_MS}, v25, v23, vcc
    v_cndmask_b32 v{V_MN}, v25, v24, vcc
    v_and_b32 v24, 3, v{LN}
    s_lshl_b32 s{S_T0}, s{S_WAVE}, 2
    v_add_u32 v24, s{S_T0}, v24
    v_mul_u32_u24 v24, 14, v24
    v_add_u32 v24, s{S_C}, v24
    v_lshlrev_b32 v24, 6, v24
    v_add_u32 v{V_FL}, {PROG_OFF}, v24
    s_mov_b32 s{S_RDY}, 0
    v_mov_b32 v156, 0
    v_mov_b32 v157, 0
    v_mov_b32 v158, 0
    v_mov_b32 v159, 0
    s_mov_b32 s{S_SLP}, 0
    s_mov_b32 s{S_MN}, {0}
    s_lshl_b32 s{S_T0}, s{S_WAVE}, 2
    s_mul_i32 s{S_T0}, s{S_T0}, {28*FR}
    s_lshl_b32 s{S_T1}, s{S_C}, 11
    s_add_u32 s{S_T0}, s{S_T0}, s{S_T1}
    s_add_u32 s{S_XO}, s{S_T0}, {VX_OFF}
    """)
    stamp_setup(a, diag)
    for r in range(32):
        a(f"v_mov_b32 v{ACC+r}, 0")
    kwait(a, 20)
    chain_mode(a, 20, 21)
    fb_fixup(a, 20)
    a("s_waitcnt vmcnt(0) lgkmcnt(0)")
    evt(a, 2, diag, 20, 21)
    a("s_barrier")

    acc = lambda un: ACC + 4 * un
    a.label("L_V_step")
    poll(a, mem_polls(), range(MF, MF + 8), depth2=False, sleep=OPT["sleepVm"])
    stamp(a, 0, diag)
    FG = 156
    a(f"""
    s_cmp_ge_u32 s{S_RDY}, 64
    s_cbranch_scc1 L_V_vxok
    s_mov_b32 s{S_CNT}, s{S_LIM}
    L_V_vxchk:
    v_min3_u32 v{V_TMP}, v{FG}, v{FG+1}, v{FG+2}
    v_min_u32 v{V_TMP}, v{V_TMP}, v{FG+3}
    v_readlane_b32 s{S_T0}, v{V_TMP}, 0
    v_readlane_b32 s{S_T1}, v{V_TMP}, 1
    v_readlane_b32 s{S_T2}, v{V_TMP}, 2
    v_readlane_b32 s{S_T3}, v{V_TMP}, 3
    buffer_load_dwordx4 {vr(FG,4)}, v{V_FL}, {WS}, 0 offen sc1
    s_min_u32 s{S_T0}, s{S_T0}, s{S_T1}
    s_min_u32 s{S_T2}, s{S_T2}, s{S_T3}
    s_min_u32 s{S_RDY}, s{S_T0}, s{S_T2}
    s_lshl_b32 s{S_RDY}, s{S_RDY}, 2
    s_cmp_lt_u32 s{S_STEP}, s{S_RDY}
    s_cbranch_scc1 L_V_vxok
    s_waitcnt vmcnt(0)
    s_sub_u32 s{S_CNT}, s{S_CNT}, 1
    s_cmp_lg_u32 s{S_CNT}, 0
    s_cbranch_scc1 L_V_vxchk
    s_mov_b32 s{S_LIM}, 1
    L_V_vxok:
    """)
    vx = []
    for hl in range(4):
        vx.append([f"s_add_u32 s{S_T0}, s{S_XO}, {hl*28*FR}",
                   f"buffer_load_dwordx4 {vr(VXB+4*hl,4)}, v{V_L16}, {WS}, s{S_T0} offen sc1"])
        vx.append([f"buffer_load_dwordx4 {vr(VXB+16+4*hl,4)}, v{V_L16}, {WS}, s{S_T0} offen offset:1024 sc1"])
    if OPT["novx"]:
        vx = [["s_nop 0"] for _ in vx]
    own = [smf(acc(un), MF + 4 * u, Wreg(order(un, u))) for u in range(2) for un in range(8)]
    rd = [f"ds_read_b128 {vr(MF+4*u,4)}, v{V_FA+u}" for u in range(2, 7)]
    wr = [f"ds_write_b64 v{V_FA+u}, {vr(MF+4*u+2*k,2)} offset:{8*k}" for u in range(2) for k in range(2)]
    for k in range(16):
        if k == 10:
            a("s_waitcnt lgkmcnt(0)")
            a("s_barrier")
            a(rd.pop(0))
        a(own[k])
        if k < 4:
            a(wr[k])
        elif k < 10:
            for s_ in vx.pop(0):
                a(s_)
        elif rd:
            a(rd.pop(0))
        else:
            for s_ in vx.pop(0):
                a(s_)
    a(f"s_add_u32 s{S_XO}, s{S_XO}, {VX_STEP}")

    def wlread(k):
        b = WLB + 8 * (k & 1)
        return [f"ds_read_b128 {vr(b,4)}, v{V_WLA} offset:{k*2048}", f"ds_read_b128 {vr(b+4,4)}, v{V_WLA} offset:{k*2048+1024}"]

    def cvt(un):
        hl, t = un >> 1, un & 1
        A_ = acc(un)
        return [f"v_cvt_pk_bf16_f32 v{VPB+8*t+2*hl}, v{A_}, v{A_+1}", f"v_cvt_pk_bf16_f32 v{VPB+8*t+2*hl+1}, v{A_+2}, v{A_+3}"]

    side = {n: [] for n in range(41)}
    pre = {n: [] for n in range(40)}
    x = wlread(0) + wlread(1)
    for k in range(4):
        side[k].append(x[k])
    for u in range(5):
        pre[u].append(f"s_waitcnt lgkmcnt({4 if u < 4 else 4})" if u >= 1 else "s_waitcnt lgkmcnt(4)")
    for un in range(7):
        x = cvt(un)
        side[5 * un + 9].append(x[0]); side[5 * un + 10].append(x[1])
    for r in range(8):
        side[21 + 2 * r].append(f"v_mov_b32 v{YA+r}, 0")
    n = 0
    for un in range(8):
        for u in range(2, 7):
            o = order(un, u)
            for s_ in pre[n]:
                a(s_)
            if ldsk(o) is None:
                a(smf(acc(un), MF + 4 * u, Wreg(o)))
            else:
                k = ldsk(o)
                a(f"s_waitcnt lgkmcnt({2 if k + 1 < NWL else 0})")
                a(smf(acc(un), MF + 4 * u, vr(WLB + 8 * (k & 1), 8)))
                if k + 2 < NWL:
                    x = wlread(k + 2)
                    side[n].insert(0, x[0]); side[n + 1].insert(0, x[1])
            for s_ in side[n]:
                a(s_)
            n += 1
    for s_ in side[40] + cvt(7):
        a(s_)
    stamp(a, 1, diag)
    if OPT["sleepV"]:
        a(f"s_sleep {OPT['sleepV']}")
    if OPT["adapt"]:
        backoff(a, S_SLP)
    P = [f"buffer_load_dwordx4 {vr(PF+4*q,4)}, v{V_PQ}, {WS}, s{S_PSOFF} offen offset:{1024*q} sc1" for q in range(3)]
    ys = [[smf(YA + 4 * t, PF + 4 * q, vr(VXB + 16 * t + 8 * q, 8) if q < 2 else vr(VPB + 8 * t, 8)) for t in range(2)] for q in range(3)]
    if OPT["lightV"]:
        light(a, P[2], PF + 8, "L_V_light")
    a(f"s_mov_b32 s{S_CNT}, s{S_LIM}")
    for l in P:
        a(l)
    a.label("L_V_pollA")
    for l in P:
        a(l)
    a("s_waitcnt vmcnt(5)")
    chk4(a, PF, "polled_V")
    retry(a, "L_V_pollA")
    a.label("polled_V")
    a(ys[0][0]); a(ys[0][1])
    a("s_waitcnt vmcnt(4)")
    chk4(a, PF + 4, "L_V_c0")
    a(f"s_mov_b32 s{S_CNT}, s{S_LIM}")
    a.label("L_V_pollB")
    a(P[1]); a(P[2])
    a("s_waitcnt vmcnt(3)")
    chk4(a, PF + 4, "L_V_cb")
    retry(a, "L_V_pollB")
    a.label("L_V_cb")
    a(ys[1][0]); a(ys[1][1])
    a("s_waitcnt vmcnt(2)")
    a("s_branch L_V_cchk")
    a.label("L_V_c0")
    a(ys[1][0]); a(ys[1][1])
    a("s_waitcnt vmcnt(3)")
    a.label("L_V_cchk")
    chk4(a, PF + 8, "L_V_pok")
    a(f"s_mov_b32 s{S_CNT}, s{S_LIM}")
    a.label("L_V_pollC")
    a(P[2])
    a("s_waitcnt vmcnt(1)")
    chk4(a, PF + 8, "L_V_pok")
    retry(a, "L_V_pollC")
    a.label("L_V_pok")
    a(ys[2][0]); a(ys[2][1])
    stamp(a, 2, diag)
    Y = ACC + 8
    a(f"""
    s_add_u32 s{S_MEMOFF}, s{S_MEMOFF}, {MEMS_STEP}
    v_add_f32 v{Y}, v{YA}, v{YA+1}
    v_add_f32 v{Y+2}, v{YA+2}, v{YA+3}
    v_add_f32 v{Y+1}, v{YA+4}, v{YA+5}
    v_add_f32 v{Y+3}, v{YA+6}, v{YA+7}
    ds_write_b128 v{V_PW}, {vr(Y,4)}
    s_waitcnt lgkmcnt(0)
    s_barrier
    """)
    R = ACC + 12
    for w in range(4):
        a(f"ds_read_b64 {vr(R+2*w,2)}, v{V_PR} offset:{1024*w}")
    a(f"""
    s_waitcnt lgkmcnt(2)
    v_pk_add_f32 {vr(R,2)}, {vr(R,2)}, {vr(R+2,2)}
    s_waitcnt lgkmcnt(0)
    v_pk_add_f32 {vr(R+4,2)}, {vr(R+4,2)}, {vr(R+6,2)}
    v_pk_add_f32 {vr(R,2)}, {vr(R,2)}, {vr(R+4,2)}
    v_cvt_pk_bf16_f32 v{R+2}, v{R}, v{R+1}
    buffer_store_dword v{R+2}, v{V_MS}, {WS}, s{S_MEMOFF} offen
    {"" if OPT["nomn"] else f"buffer_store_dword v{R+2}, v{V_MN}, {WS}, s{S_MN} offen sc1"}
    s_cmp_lg_u32 s{S_STEP}, {62 if OPT["direct"] else 99}
    s_cbranch_scc1 L_V_nodir
    s_add_u32 s{S_T0}, s{S_MEMOFF}, {MEMR_OFF-MEMS_OFF}
    buffer_store_dword v{R+2}, v{V_MS}, {WS}, s{S_T0} offen sc1
    L_V_nodir:
    s_cmp_eq_u32 s{S_FB}, 0
    s_cbranch_scc1 L_V_nofb
    buffer_store_dword v{R+2}, v{V_MS}, {WS}, s{S_MEMOFF} offen sc1
    L_V_nofb:
    """)
    stamp(a, 3, diag)
    if OPT["adapt"]:
        adapt(a, S_SLP, S_CNT)
    if OPT["vdelay"]:
        a(f"s_sleep {OPT['vdelay']}")
    stamp_store(a, 6, diag, R + 4, R + 5)
    for r in range(32):
        if ACC + r != R + 2:
            a(f"v_mov_b32 v{ACC+r}, 0")
    a(f"v_mov_b32 v{R+2}, 0")
    a(f"""
    s_add_u32 s{S_MN}, s{S_MN}, 0
    s_add_u32 s{S_PSOFF}, s{S_PSOFF}, {PS_STEP}
    s_add_u32 s{S_STEP}, s{S_STEP}, 1
    s_cmp_lt_u32 s{S_STEP}, 63
    s_cbranch_scc1 L_V_step
    s_waitcnt vmcnt(0)
    """)
    evt(a, 3, diag, 20, 21)
    a("s_endpgm")


def gen_warm(a):
    LEAD = OPT["lead"]
    a.label("L_role_W")
    a(f"v_and_b32 v{LN}, 63, v0")
    kwait(a, 20)
    chain_mode(a, 20, 21)
    fb_fixup(a, 20)
    a(f"""
    v_and_b32 v{LN}, 63, v0
    s_mov_b32 s{S_LIM}, {SPIN_LIMIT}
    s_mov_b32 s{S_MEMOFF}, {MEMS_OFF+MEMS_STEP}
    s_cmp_eq_u32 s{S_ROLE}, 31
    s_cbranch_scc1 L_W_warm
    s_lshl_b32 s{S_T0}, s{S_WAVE}, 11
    s_min_u32 s{S_T0}, s{S_T0}, 5120
    v_lshl_add_u32 v6, v{LN}, 4, s{S_T0}
    s_mov_b32 s{S_STEP}, 1
    v_mov_b32 v8, {MFLAG_OFF}
    L_R_step:
    s_mov_b32 s{S_CNT}, s{S_LIM}
    L_R_poll:
    buffer_load_dwordx4 v[20:23], v6, {WS}, s{S_MEMOFF} offen sc1
    buffer_load_dwordx4 v[24:27], v6, {WS}, s{S_MEMOFF} offen offset:1024 sc1
    s_waitcnt vmcnt(0)
    v_max3_u32 v5, v20, v21, v22
    v_max3_u32 v5, v5, v23, v24
    v_max3_u32 v5, v5, v25, v26
    v_max_u32 v5, v5, v27
    v_cmp_eq_u32 vcc, -1, v5
    s_cbranch_vccz L_R_go
    s_sleep 2
    s_sub_u32 s{S_CNT}, s{S_CNT}, 1
    s_cmp_lg_u32 s{S_CNT}, 0
    s_cbranch_scc1 L_R_poll
    s_mov_b32 s{S_LIM}, 1
    L_R_go:
    s_add_u32 s{S_T0}, s{S_MEMOFF}, {MEMR_OFF-MEMS_OFF}
    buffer_store_dwordx4 v[20:23], v6, {WS}, s{S_T0} offen sc1
    buffer_store_dwordx4 v[24:27], v6, {WS}, s{S_T0} offen offset:1024 sc1
    s_add_u32 s{S_MEMOFF}, s{S_MEMOFF}, {MEMS_STEP}
    v_mov_b32 v7, s{S_STEP}
    s_waitcnt vmcnt(0)
    s_barrier
    s_cmp_lg_u32 s{S_WAVE}, 0
    s_cbranch_scc1 L_R_nf
    s_mov_b64 exec, 1
    buffer_store_dword v7, v8, {WS}, 0 offen sc1
    s_mov_b64 exec, -1
    L_R_nf:
    s_sleep {OPT["rsleep"]}
    s_add_u32 s{S_STEP}, s{S_STEP}, 1
    s_cmp_lt_u32 s{S_STEP}, 64
    s_cbranch_scc1 L_R_step
    s_waitcnt vmcnt(0)
    """)
    evt(a, 5, gpre.DIAG, 20, 21)
    a(f"""
    s_endpgm
    L_W_warm:
    """)
    for k in range(4):
        fwait(a, f"v_lshlrev_b32 v20, 6, v{LN}\nv_add_u32 v20, {4096*k+16}, v20", 20)
    a(f"""
    v_mov_b32 v20, {GO_OFF}
    v_mov_b32 v21, s{S_EP}
    s_mov_b64 exec, 1
    buffer_store_dword v21, v20, {WS}, 0 offen sc1
    s_mov_b64 exec, -1
    v_lshlrev_b32 v2, 7, v{LN}
    v_mov_b32 v9, 0
    s_lshl_b32 s80, s{S_WAVE}, 13
    s_add_u32 s80, s80, {XK_OFF}
    s_sub_u32 s{S_T0}, s{S_WAVE}, 1
    s_mul_i32 s81, s{S_T0}, 6144
    s_add_u32 s81, s81, {PS_OFF}
    s_mov_b32 s82, {PS_STEP}
    s_cmp_eq_u32 s{S_WAVE}, 0
    s_cselect_b32 s81, {MEMS_OFF}, s81
    s_cselect_b32 s82, {MEMS_STEP}, s82
    s_cmp_eq_u32 s{S_WAVE}, 3
    s_cselect_b32 s81, {OOB}, s81
    s_cselect_b32 s82, 0, s82
    s_mov_b32 s{S_STEP}, 0
    L_W_step:
    s_cmp_lt_u32 s{S_STEP}, {LEAD+1}
    s_cbranch_scc1 L_W_paced
    s_mov_b32 s{S_CNT}, s{S_LIM}
    L_W_pace:
    buffer_load_dword v5, v9, {WS}, s{S_MEMOFF} offen sc1
    s_waitcnt vmcnt(0)
    v_cmp_eq_u32 vcc, -1, v5
    s_cbranch_vccz L_W_paced2
    s_sleep 4
    s_sub_u32 s{S_CNT}, s{S_CNT}, 1
    s_cmp_lg_u32 s{S_CNT}, 0
    s_cbranch_scc1 L_W_pace
    s_mov_b32 s{S_LIM}, 1
    L_W_paced2:
    s_add_u32 s{S_MEMOFF}, s{S_MEMOFF}, {MEMS_STEP}
    L_W_paced:
    buffer_load_dword v8, v2, {WS}, s80 offen
    buffer_load_dword v10, v2, {WS}, s81 offen sc1
    s_add_u32 s80, s80, {XK_STEP}
    s_add_u32 s81, s81, s82
    s_add_u32 s{S_STEP}, s{S_STEP}, 1
    s_cmp_lt_u32 s{S_STEP}, 64
    s_cbranch_scc1 L_W_step
    s_waitcnt vmcnt(0)
    s_endpgm
    """)


def cnt_addr(a, v, ln):
    a(f"""
    v_and_b32 v{v}, 15, v{ln}
    v_cmp_eq_u32 vcc, 8, v{v}
    v_lshlrev_b32 v{v}, 5, v{v}
    v_min_u32 v{v}, 252, v{v}
    v_cndmask_b32 v{v}, v{v}, 28, vcc
    """)


def wait_all(a):
    top, done = a.newlabel("wa"), a.newlabel("wad")
    cnt_addr(a, 4, 0)
    a(f"""
    s_mov_b32 s{S_CNT}, {SPIN_LIMIT}
    {top}:
    buffer_load_dword v5, v4, {DBG}, 0 offen sc1
    s_waitcnt vmcnt(0)
    s_mov_b32 s{S_T0}, 0
    """)
    for x in range(9):
        a(f"v_readlane_b32 s{S_CNTS+x}, v5, {x}")
    for x in range(9):
        a(f"s_add_u32 s{S_T0}, s{S_T0}, s{S_CNTS+x}")
    a(f"""
    s_cmp_ge_u32 s{S_T0}, 256
    s_cbranch_scc1 {done}
    s_sleep 2
    s_sub_u32 s{S_CNT}, s{S_CNT}, 1
    s_cmp_lg_u32 s{S_CNT}, 0
    s_cbranch_scc1 {top}
    {done}:
    """)


def chain_mode(a, t0, t1):
    top, done = a.newlabel("cm"), a.newlabel("cmd")
    cnt_addr(a, t0, LN)
    a(f"""
    s_mov_b32 s{S_CNT}, {SPIN_LIMIT}
    {top}:
    buffer_load_dword v{t1}, v{t0}, {DBG}, 0 offen sc1
    s_waitcnt vmcnt(0)
    v_readlane_b32 s{S_T0}, v{t1}, 0
    s_mov_b32 s{S_FB}, 0
    s_cmp_ge_u32 s{S_T0}, {32 if NSLOT == 32 else 9999}
    s_cbranch_scc1 {done}
    s_mov_b32 s{S_FB}, 1
    """)
    for x in range(1, 9):
        a(f"v_readlane_b32 s{S_T2}, v{t1}, {x}")
        a(f"s_add_u32 s{S_T0}, s{S_T0}, s{S_T2}")
    a(f"""
    s_cmp_ge_u32 s{S_T0}, 256
    s_cbranch_scc1 {done}
    s_sleep 2
    s_sub_u32 s{S_CNT}, s{S_CNT}, 1
    s_cmp_lg_u32 s{S_CNT}, 0
    s_cbranch_scc1 {top}
    {done}:
    """)


def fb_fixup(a, t):
    lab = a.newlabel("nofix")
    a(f"""
    s_cmp_eq_u32 s{S_FB}, 0
    s_cbranch_scc1 {lab}
    buffer_wbl2 sc1
    s_waitcnt vmcnt(0)
    s_mov_b32 s89, {4*61}
    """)
    gpre.arrive(a, 89, t)
    cwait(a, [(4 * 61, 32)], t)
    a.label(lab)


def cwait(a, conds, t, sleep=16):
    top, done = a.newlabel("cw"), a.newlabel("cwd")
    off = lambda o: f"s{o[1:]}" if isinstance(o, str) else str(o)
    a(f"s_cmp_lg_u32 s{S_WAVE}, 0")
    a(f"s_cbranch_scc1 {done}")
    a(f"v_mov_b32 v{t}, {off(conds[0][0])}")
    a(f"v_mov_b32 v{t+1}, {conds[0][1]}")
    for k, (o, th) in enumerate(conds[1:], 1):
        if not isinstance(o, str):
            a(f"s_mov_b32 s{S_T0}, {o}")
            o = f"s{S_T0}"
        a(f"v_writelane_b32 v{t}, {o}, {k}")
        a(f"v_writelane_b32 v{t+1}, {th}, {k}")
    a(f"""
    s_mov_b32 s{S_CNT}, {SPIN_LIMIT}
    s_mov_b64 exec, 7
    {top}:
    buffer_load_dword v{t+2}, v{t}, {DBG}, 0 offen sc1
    s_waitcnt vmcnt(0)
    v_cmp_le_u32 vcc, v{t+1}, v{t+2}
    s_cmp_eq_u64 vcc, 7
    s_cbranch_scc1 {done}
    s_sleep {sleep}
    s_sub_u32 s{S_CNT}, s{S_CNT}, 1
    s_cmp_lg_u32 s{S_CNT}, 0
    s_cbranch_scc1 {top}
    {done}:
    s_mov_b64 exec, -1
    s_barrier
    """)


def fwait(a, addr_code, t, sleep=4, perwave=False):
    top, done = a.newlabel("fl"), a.newlabel("fld")
    if not perwave:
        a(f"s_cmp_lg_u32 s{S_WAVE}, 0")
        a(f"s_cbranch_scc1 {done}")
    a(addr_code)
    a(f"""
    s_mov_b32 s{S_CNT}, {SPIN_LIMIT}
    s_mov_b32 s{S_T0}, {FL_OFF}
    {top}:
    buffer_load_dword v{t+1}, v{t}, {WS}, s{S_T0} offen sc1
    s_waitcnt vmcnt(0)
    v_cmp_eq_u32 vcc, s{S_EP}, v{t+1}
    s_cmp_eq_u64 vcc, -1
    s_cbranch_scc1 {done}
    s_sleep {sleep}
    s_sub_u32 s{S_CNT}, s{S_CNT}, 1
    s_cmp_lg_u32 s{S_CNT}, 0
    s_cbranch_scc1 {top}
    {done}:
    {"" if perwave else "s_barrier"}
    """)


def kwait(a, t):
    fwait(a, f"v_and_b32 v{t}, 31, v{LN}\nv_lshlrev_b32 v{t}, 6, v{t}\nv_add_u32 v{t}, {224*64+20}, v{t}", t)


def cw_a_off(a, dst, sh):
    a(f"""
    s_lshr_b32 s{dst}, s{sh}, 1
    s_lshl_b32 s{dst}, s{dst}, 5
    s_and_b32 s{S_T0}, s{sh}, 1
    s_lshl_b32 s{S_T0}, s{S_T0}, 2
    s_add_u32 s{dst}, s{dst}, s{S_T0}
    s_add_u32 s{dst}, s{dst}, 4
    """)


def cw_b_off(a, dst, sc):
    a(f"""
    s_lshr_b32 s{dst}, s{sc}, 1
    s_lshl_b32 s{dst}, s{dst}, 5
    s_add_u32 s{dst}, s{dst}, 12
    """)


NSLOT = 32


def gen_main_prologue(a, force_fb=False, diag=False):
    global NSLOT
    NSLOT = 13 if force_fb else 32
    a(f"""
    s_cmp_ge_u32 s2, 256
    s_cbranch_scc1 L_exit
    s_load_dwordx2 s[{S_X}:{S_X+1}], s[0:1], 0
    s_load_dwordx4 s[{S_OUT}:{S_OUT+3}], s[0:1], 104
    s_load_dwordx2 s[{S_WS}:{S_WS+1}], s[0:1], 120
    s_load_dwordx16 s[60:75], s[0:1], 8
    s_load_dwordx2 s[76:77], s[0:1], 96
    {'s_memrealtime s[90:91]' if diag else ''}
    v_lshrrev_b32 v1, 6, v0
    s_getreg_b32 s{S_T3}, hwreg(HW_REG_XCC_ID)
    v_readfirstlane_b32 s{S_WAVE}, v1
    s_and_b32 s{S_T3}, s{S_T3}, 15
    s_min_u32 s{S_T3}, s{S_T3}, 8
    s_lshl_b32 s{S_T0}, s{S_T3}, 5
    s_cmp_eq_u32 s{S_T3}, 8
    s_cselect_b32 s{S_T0}, 28, s{S_T0}
    v_mov_b32 v2, s{S_T0}
    v_accvgpr_write_b32 a255, 1
    s_mov_b32 s{SRD_WS+2}, 0x10000000
    s_mov_b32 s{SRD_WS+3}, 0x20000
    s_mov_b32 s{SRD_X+2}, {2048*896}
    s_mov_b32 s{SRD_X+3}, 0x20000
    s_mov_b32 s{SRD_DBG+2}, 256
    s_mov_b32 s{SRD_DBG+3}, 0x20000
    s_and_b32 s{S_T0}, s2, 7
    s_lshr_b32 s{S_T1}, s2, 3
    s_waitcnt lgkmcnt(0)
    s_mov_b32 s{SRD_WS}, s{S_WS}
    s_mov_b32 s{SRD_WS+1}, s{S_WS+1}
    s_mov_b32 s{SRD_X}, s{S_X}
    s_mov_b32 s{SRD_X+1}, s{S_X+1}
    s_mov_b32 s{SRD_DBG}, s{S_DBG}
    s_mov_b32 s{SRD_DBG+1}, s{S_DBG+1}
    v_mov_b32 v3, {EP_OFF}
    buffer_load_dword a254, v3, {WS}, 0 offen
    s_cmp_lg_u32 s{S_WAVE}, 0
    s_cbranch_scc1 L_noatom
    s_mov_b64 exec, 1
    buffer_atomic_add a255, v2, {DBG}, 0 offen sc0 sc1
    s_mov_b64 exec, -1
    L_noatom:
    s_cmp_eq_u32 s{S_T0}, 0
    s_cbranch_scc1 L_unit_misc
    s_sub_u32 s{S_T0}, s{S_T0}, 1
    s_lshl_b32 s{S_T0}, s{S_T0}, 5
    s_add_u32 s{S_T1}, s{S_T1}, s{S_T0}
    """)
    gpre.gen_ab(a, S_T1)
    a("s_branch L_unit_done")
    a.label("L_unit_misc")
    gpre.gen_misc(a, S_T1)
    a.label("L_unit_done")
    gpre.ev(a, 4)
    a("s_waitcnt vmcnt(0)")
    gpre.ev(a, 5)
    gpre.ev_flush(a)
    a(f"""
    v_accvgpr_read_b32 v3, a254
    v_add_u32 v3, 1, v3
    s_barrier
    v_readfirstlane_b32 s{S_EP}, v3
    s_cmp_lg_u32 s{S_WAVE}, 0
    s_cbranch_scc1 L_elect_wait
    v_mov_b32 v2, s89
    s_mov_b32 s{S_T0}, {FL_OFF}
    s_mov_b64 exec, 1
    buffer_store_dword v3, v2, {WS}, s{S_T0} offen sc1
    s_mov_b64 exec, -1
    v_accvgpr_read_b32 v3, a255
    v_readfirstlane_b32 s{S_T2}, v3
    s_lshl_b32 s{S_ROLE}, s{S_T3}, 5
    s_add_u32 s{S_ROLE}, s{S_ROLE}, s{S_T2}
    s_cmp_lt_u32 s{S_T2}, {NSLOT}
    s_cselect_b32 s{S_T0}, s{S_T3}, 99
    s_cmp_lt_u32 s{S_T0}, 8
    s_cbranch_scc0 L_overflow
    L_elect_done:
    v_mov_b32 v2, 0
    v_mov_b32 v3, s{S_ROLE}
    ds_write_b32 v2, v3
    s_waitcnt lgkmcnt(0)
    L_elect_wait:
    s_barrier
    v_mov_b32 v2, 0
    ds_read_b32 v3, v2
    s_waitcnt lgkmcnt(0)
    v_readfirstlane_b32 s{S_ROLE}, v3
    s_barrier
    """)
    if diag:
        a(f"""
        s_lshl_b32 s98, s{S_ROLE}, 2
        s_add_u32 s98, s98, s{S_WAVE}
        s_lshl_b32 s98, s98, 5
        s_add_u32 s98, s98, {EVT_OFF}
        v_mov_b32 v2, s90
        v_mov_b32 v3, 0
        s_mov_b64 exec, 1
        buffer_store_dword v2, v3, {WS}, s98 offen
        s_mov_b64 exec, -1
        """)
    a(f"""
    s_cmp_lt_u32 s{S_ROLE}, 16
    s_cbranch_scc1 L_role_T
    s_cmp_lt_u32 s{S_ROLE}, 30
    s_cbranch_scc1 L_role_V
    s_cmp_lt_u32 s{S_ROLE}, 32
    s_cbranch_scc1 L_role_W
    s_cmp_ge_u32 s{S_ROLE}, 256
    s_cbranch_scc1 L_exit
    """)


def gen_overflow(a):
    a.label("L_overflow")
    wait_all(a)
    a(f"""
    s_sub_u32 s{S_T1}, s{S_T2}, {NSLOT}
    s_cmp_lt_u32 s{S_T3}, 8
    s_cselect_b32 s{S_T1}, s{S_T1}, s{S_T2}
    """)
    for x in range(8):
        a(f"s_sub_u32 s{S_T0}, s{S_CNTS+x}, {NSLOT}")
        a(f"s_max_i32 s{S_T0}, s{S_T0}, 0")
        a(f"s_cmp_lt_u32 {x}, s{S_T3}")
        a(f"s_cselect_b32 s{S_T0}, s{S_T0}, 0")
        a(f"s_add_u32 s{S_T1}, s{S_T1}, s{S_T0}")
    a(f"s_mov_b32 s{S_ROLE}, 0xfff")
    for x in range(8):
        a(f"""
        s_min_u32 s{S_T0}, s{S_CNTS+x}, {NSLOT}
        s_sub_u32 s{S_T2}, 32, s{S_T0}
        s_add_u32 s{S_T0}, s{S_T0}, s{S_T1}
        s_add_u32 s{S_T0}, s{S_T0}, {32*x}
        s_cmp_lt_u32 s{S_T1}, s{S_T2}
        s_cselect_b32 s{S_ROLE}, s{S_T0}, s{S_ROLE}
        s_sub_u32 s{S_T1}, s{S_T1}, s{S_T2}
        """)
    a("s_branch L_elect_done")
```

```python
from asmlib import *
from layout import *
import gen_chain as gc
from gen_chain import (SRD_WS, SRD_X, S_WAVE, S_ROLE, S_LIM, S_CNT, S_STEP, S_T0, S_T1, S_T2, S_T3, S_OUT, WS, XS,
                       SPIN_LIMIT, OOB)
from gen_pre import f32hex, srd, LOG2E
import gen_pre as pre

S_H, S_C, S_RANK, S_FLG = 34, 35, 36, 37
LN, G, L15, L16, IDX, TMP = 1, 2, 3, 4, 5, 6
NEG = "0xf149f2ca"


def WBr(t, ks, n=4):
    return ar(56 * t + 4 * ks, n)


def WAr(t, ks):
    return ar(112 + 56 * t + 4 * ks, 4)


def flagwait(a, vaddr, vthr, vval, sleep=8, full=None):
    top, go = a.newlabel("fw"), a.newlabel("fgo")
    a(f"""
    s_mov_b32 s{S_CNT}, s{S_LIM}
    {top}:
    buffer_load_dword v{vval}, v{vaddr}, {WS}, 0 offen sc1
    s_waitcnt vmcnt(0)
    v_cmp_lt_u32 vcc, v{vthr}, v{vval}
    s_cmp_eq_u64 vcc, {"exec" if full else "-1"}
    s_cbranch_scc1 {go}
    s_sleep {sleep}
    s_sub_u32 s{S_CNT}, s{S_CNT}, 1
    s_cmp_lg_u32 s{S_CNT}, 0
    s_cbranch_scc1 {top}
    s_mov_b32 s{S_LIM}, 1
    {go}:
    """)


def mempoll(a, dst, soff, sleep=4):
    top, done = a.newlabel("mp"), a.newlabel("mpd")
    a(f"s_mov_b32 s{S_CNT}, s{S_LIM}")
    a(f"s_add_u32 s{S_T3}, s{soff}, 4096")
    a.label(top)
    for u in range(7):
        so = soff if u < 4 else S_T3
        a(f"buffer_load_dwordx4 {vr(dst+4*u,4)}, v{L16}, {WS}, s{so} offen offset:{(u&3)*1024} sc1")
    a("s_waitcnt vmcnt(0)")
    r = list(range(dst, dst + 28))
    a(f"v_max3_u32 v{TMP}, v{r[0]}, v{r[1]}, v{r[2]}")
    r = r[3:]
    while len(r) >= 2:
        a(f"v_max3_u32 v{TMP}, v{TMP}, v{r[0]}, v{r[1]}"); r = r[2:]
    a(f"v_max_u32 v{TMP}, v{TMP}, v{r[0]}")
    a(f"""
    v_cmp_eq_u32 vcc, -1, v{TMP}
    s_cbranch_vccz {done}
    s_sleep {sleep}
    s_sub_u32 s{S_CNT}, s{S_CNT}, 1
    s_cmp_lg_u32 s{S_CNT}, 0
    s_cbranch_scc1 {top}
    s_mov_b32 s{S_LIM}, 1
    {done}:
    """)


def xg_reduce(a, op, v, t):
    a(f"v_mov_b32 v{t}, v{v}")
    a(f"v_permlane16_swap_b32 v{v}, v{t}")
    a(f"{op} v{v}, v{v}, v{t}")
    a(f"v_mov_b32 v{t}, v{v}")
    a(f"v_permlane32_swap_b32 v{v}, v{t}")
    a(f"{op} v{v}, v{v}, v{t}")


def full_reduce(a, op, v, t):
    for d in gc.DPPS:
        a(f"{op}_dpp v{v}, v{v}, v{v} {d} row_mask:0xf bank_mask:0xf")
    xg_reduce(a, op, v, t)


def rbf(a, v):
    a(f"v_cvt_pk_bf16_f32 v{v}, v{v}, v{v}")
    a(f"v_and_b32 v{v}, 0xffff0000, v{v}")


def gen_helper(a, diag=False):
    global DIAG
    DIAG = diag
    a.c("helper: rank = role-32")
    gc.evt(a, 1, diag, 8, 9)
    a(f"s_sub_u32 s{S_RANK}, s{S_ROLE}, 32")
    gc.evt(a, 6, diag, 8, 9)
    a(f"""
    s_mul_i32 s{S_H}, s{S_RANK}, 4682
    s_lshr_b32 s{S_H}, s{S_H}, 16
    s_mul_i32 s{S_T0}, s{S_H}, 14
    s_sub_u32 s{S_C}, s{S_RANK}, s{S_T0}
    s_lshl_b32 s{S_FLG}, s{S_RANK}, 6
    s_add_u32 s{S_FLG}, s{S_FLG}, {PROG_OFF}
    s_mov_b32 s{S_LIM}, {SPIN_LIMIT}
    v_and_b32 v{LN}, 63, v0
    v_lshrrev_b32 v{G}, 4, v{LN}
    v_and_b32 v{L15}, 15, v{LN}
    v_lshlrev_b32 v{L16}, 4, v{LN}
    v_and_b32 v8, 1, v0
    v_cmp_eq_u32 vcc, 0, v8
    v_mov_b32 v8, 0xEEEE
    v_mov_b32 v9, 0x4444
    v_cndmask_b32 v{IDX}, v8, v9, vcc
    s_mul_i32 s{S_T0}, s{S_H}, 28
    s_lshl_b32 s{S_T1}, s{S_C}, 1
    s_add_u32 s{S_T0}, s{S_T0}, s{S_T1}
    s_mul_i32 s{S_T0}, s{S_T0}, {14*FR}
    s_add_u32 s{S_T1}, s{S_T0}, {WB_OFF}
    """)
    a(f"s_mov_b32 s45, s{S_T0}")
    gc.fwait(a, f"v_mov_b32 v8, {GO_OFF-FL_OFF}", 8, gc.OPT["hsl"])
    a(f"s_mov_b32 s{S_T0}, s45")
    gc.evt(a, 7, diag, 8, 9)
    a(f"""
    s_mul_i32 s{S_T2}, s{S_WAVE}, {14*FR}
    s_mov_b32 m0, s{S_T2}
    s_add_u32 s{S_T1}, s{S_T1}, s{S_T2}
    s_add_u32 s{S_T0}, s{S_T0}, s{S_T2}
    s_sub_u32 s{S_T0}, s{S_T0}, {28*FR}
    s_cmp_lt_u32 s{S_WAVE}, 2
    s_cselect_b32 s{S_T0}, s{S_T1}, s{S_T0}
    s_mov_b32 s{S_T1}, 14
    H_wl:
    buffer_load_dwordx4 v{L16}, {WS}, s{S_T0} offen lds
    s_add_u32 s{S_T0}, s{S_T0}, 1024
    s_add_u32 m0, m0, 1024
    s_sub_u32 s{S_T1}, s{S_T1}, 1
    s_cmp_lg_u32 s{S_T1}, 0
    s_cbranch_scc1 H_wl
    s_and_b32 s{S_T2}, s{S_RANK}, 31
    s_lshl2_add_u32 s{S_T2}, s{S_T2}, s{S_WAVE}
    s_mul_i32 s{S_T2}, s{S_T2}, {14*FR}
    s_add_u32 s{S_T2}, s{S_T2}, {XF_OFF}
    v_lshlrev_b32 v12, 7, v{LN}
    buffer_load_dword v13, v12, {WS}, s{S_T2} offen
    s_add_u32 s{S_T2}, s{S_T2}, 6144
    buffer_load_dword v14, v12, {WS}, s{S_T2} offen
    s_waitcnt vmcnt(0)
    s_barrier
    """)
    XB, AV, AT, OV = 32, 144, 160, 16
    S_XA, S_XB2, S_VO, S_TO = 45, 46, 47, 48
    a(f"""
    s_mul_i32 s{S_XA}, s{S_WAVE}, {28*FR}
    s_add_u32 s{S_XA}, s{S_XA}, {XF_OFF}
    """)

    def xload(ks, mt):
        f = mt * 14 + ks
        return [f"s_add_u32 s{S_T2}, s{S_XA}, {(f & ~3) * FR}",
                f"buffer_load_dwordx4 {vr(XB+8*ks+4*mt,4)}, v{L16}, {WS}, s{S_T2} offen offset:{(f&3)*FR}"]
    for ks in range(14):
        for mt in range(2):
            for s_ in xload(ks, mt):
                a(s_)
    for f in range(56):
        a(f"ds_read_b128 {ar(4*f,4)}, v{L16} offset:{f*FR}")
    a(f"""
    s_lshl_b32 s{S_T0}, s{S_WAVE}, 4
    s_add_u32 s{S_T0}, s{S_T0}, s{S_H}
    s_mul_i32 s{S_T0}, s{S_T0}, 14
    s_add_u32 s{S_T0}, s{S_T0}, s{S_C}
    s_lshl_b32 s{S_T0}, s{S_T0}, 11
    s_add_u32 s{S_VO}, s{S_T0}, {VX_OFF}
    s_add_u32 s{S_TO}, s{S_T0}, {TX_OFF}
    s_lshl_b32 s{S_T0}, s{S_WAVE}, 2
    v_mov_b32 v7, s{S_T0}
    s_mov_b32 s{S_STEP}, 0
    s_waitcnt vmcnt(0) lgkmcnt(0)
    """)
    gc.evt(a, 2, diag, 8, 9)
    a(f"""
    H_gemm:
    s_add_u32 s{S_XA}, s{S_XA}, {4*28*FR}
    s_cmp_eq_u32 s{S_STEP}, 15
    s_cselect_b32 s{S_XA}, {XF_OFF}, s{S_XA}
    v_mov_b32 v8, s{S_STEP}
    """)
    GF = gc.OPT["gfl"]
    for ks in range(14):
        a(f"s_waitcnt vmcnt({30 if ks < GF else 2 * GF if ks == GF else 2 * ks + 1})")
        if ks == GF:
            a("s_mov_b64 exec, 1")
            a(f"buffer_store_dword v8, v7, {WS}, s{S_FLG} offen sc1")
            a("s_mov_b64 exec, -1")
        z = ks == 0
        for mt in range(2):
            for t in range(2):
                d = AV + 8 * mt + 4 * t
                a(f"v_mfma_f32_16x16x32_bf16 {vr(d,4)}, {vr(XB+8*ks+4*mt,4)}, {WBr(t,ks)}, {'0' if z else vr(d,4)}")
            for t in range(2):
                d = AT + 8 * mt + 4 * t
                a(f"v_mfma_f32_16x16x32_bf16 {vr(d,4)}, {WAr(t,ks)}, {vr(XB+8*ks+4*mt,4)}, {'0' if z else vr(d,4)}")
            for s_ in xload(ks, mt):
                a(s_)
    for t in range(2):
        o = OV + 4 * t
        for mt in range(2):
            d = AV + 8 * mt + 4 * t
            a(f"v_cvt_pk_bf16_f32 v{o+2*mt}, v{d}, v{d+1}")
            a(f"v_cvt_pk_bf16_f32 v{o+2*mt+1}, v{d+2}, v{d+3}")
        a(f"buffer_store_dwordx4 {vr(o,4)}, v{L16}, {WS}, s{S_VO} offen offset:{t*FR}{'' if gc.OPT['g_plain'] else ' sc1'}")
    for mt in range(2):
        o = OV + 8 + 4 * mt
        for t in range(2):
            d = AT + 8 * mt + 4 * t
            a(f"v_cvt_pk_bf16_f32 v{o+2*t}, v{d}, v{d+1}")
            a(f"v_cvt_pk_bf16_f32 v{o+2*t+1}, v{d+2}, v{d+3}")
        a(f"buffer_store_dwordx4 {vr(o,4)}, v{L16}, {WS}, s{S_TO} offen offset:{mt*FR}{'' if gc.OPT['g_plain'] else ' sc1'}")
    a(f"""
    s_add_u32 s{S_VO}, s{S_VO}, {4*VX_STEP}
    s_add_u32 s{S_TO}, s{S_TO}, {4*VX_STEP}
    s_add_u32 s{S_STEP}, s{S_STEP}, 1
    s_cmp_lt_u32 s{S_STEP}, 16
    s_cbranch_scc1 H_gemm
    v_mov_b32 v8, 16
    s_waitcnt vmcnt(0)
    s_mov_b64 exec, 1
    buffer_store_dword v8, v7, {WS}, s{S_FLG} offen sc1
    s_mov_b64 exec, -1
    """)
    gc.evt(a, 3, diag, 8, 9)
    a(f"""
    s_cmp_lt_u32 s{S_RANK}, 28
    s_cbranch_scc0 H_phase2
    """)
    gen_mod(a)
    a.label("H_phase2")
    gc.evt(a, 4, diag, 8, 9)
    a(f"""
    s_cmp_eq_u32 s{S_WAVE}, 0
    s_cbranch_scc1 H_vp
    s_cmp_eq_u32 s{S_WAVE}, 3
    s_cbranch_scc1 H_f2
    """)
    gen_f1(a)
    gen_vp(a)
    gen_f2(a)


def gen_mod(a):
    SG, SU, SD = 48, 52, 56
    S_IDX, S_RM = 60, 61
    a(f"""
    s_load_dwordx4 s[64:67], s[0:1], 72
    s_load_dwordx2 s[68:69], s[0:1], 88
    s_mov_b32 s{S_T0}, {RG_OFF}
    s_mov_b32 s{S_T1}, {RG_OFF+4096}
    """)
    R = 32
    for k in range(8):
        a(f"buffer_load_dwordx4 {vr(R+4*k,4)}, v{L16}, {WS}, s{S_T0 if k < 4 else S_T1} offen offset:{(k&3)*1024}")
    a("s_waitcnt lgkmcnt(0)")
    srd(a, SG, 64, 448 * 3584)
    srd(a, SU, 66, 448 * 3584)
    srd(a, SD, 68, 1792 * 896)
    a("s_waitcnt vmcnt(0)")
    a(f"v_max3_f32 v8, v{R}, v{R+1}, v{R+2}")
    for k in range(3, 31, 2):
        a(f"v_max3_f32 v8, v8, v{R+k}, v{R+k+1}")
    a(f"v_max_f32 v8, v8, v{R+31}")
    full_reduce(a, "v_max_f32", 8, 9)
    a(f"v_lshlrev_b32 v10, 2, v{LN}")
    a(f"v_mov_b32 v11, 0x7fffffff")
    for k in range(31, -1, -1):
        a(f"v_cmp_eq_f32 vcc, v8, v{R+k}")
        a(f"v_add_u32 v12, {256*(k>>2)+(k&3)}, v10")
        a(f"v_cndmask_b32 v11, v11, v12, vcc")
    full_reduce(a, "v_min_u32", 11, 9)
    a(f"""
    v_min_u32 v11, 2047, v11
    v_readfirstlane_b32 s{S_IDX}, v11
    v_readfirstlane_b32 s{S_RM}, v8
    v_lshrrev_b32 v12, 3, v{LN}
    v_and_b32 v13, 7, v{LN}
    v_lshlrev_b32 v14, 1, v12
    v_mul_u32_u24 v15, 3584, v12
    v_lshl_add_u32 v15, v13, 4, v15
    s_mul_i32 s{S_T0}, s{S_IDX}, 896
    s_mul_i32 s{S_T1}, s{S_WAVE}, 224
    s_add_u32 s{S_T0}, s{S_T0}, s{S_T1}
    s_mul_i32 s{S_T1}, s{S_WAVE}, {112*3584}
    s_lshl_b32 s{S_T2}, s{S_RANK}, 7
    s_add_u32 s{S_T1}, s{S_T1}, s{S_T2}
    """)
    XSEL, WG_, WU_, AC = 16, 32, 88, 144
    for i in range(14):
        a(f"buffer_load_ushort v{XSEL+i}, v14, {XS}, s{S_T0} offen offset:{16*i}")
    for i in range(14):
        a(f"buffer_load_dwordx4 {vr(WG_+4*i,4)}, v15, s[{SG}:{SG+3}], s{S_T1} offen")
        a(f"buffer_load_dwordx4 {vr(WU_+4*i,4)}, v15, s[{SU}:{SU+3}], s{S_T1} offen")
        a(f"s_add_u32 s{S_T1}, s{S_T1}, {8*3584}")
    for r in range(16):
        a(f"v_mov_b32 v{AC+r}, 0")
    for i in range(14):
        a(f"s_waitcnt vmcnt({26-2*i})")
        a(f"v_lshlrev_b32 v{XSEL+i}, 16, v{XSEL+i}")
        for m, base in enumerate((WG_, WU_)):
            for q in range(4):
                w = base + 4 * i + q
                a(f"v_lshlrev_b32 v8, 16, v{w}")
                a(f"v_and_b32 v9, 0xffff0000, v{w}")
                a(f"v_fmac_f32 v{AC+8*m+2*q}, v8, v{XSEL+i}")
                a(f"v_fmac_f32 v{AC+8*m+2*q+1}, v9, v{XSEL+i}")
    a(f"""
    s_lshl_b32 s{S_T0}, s{S_WAVE}, 12
    v_lshlrev_b32 v8, 9, v12
    v_lshl_add_u32 v8, v13, 5, v8
    v_add_u32 v8, s{S_T0}, v8
    ds_write_b128 v8, {vr(AC,4)}
    ds_write_b128 v8, {vr(AC+4,4)} offset:16
    ds_write_b128 v8, {vr(AC+8,4)} offset:256
    ds_write_b128 v8, {vr(AC+12,4)} offset:272
    s_lshl_b32 s{S_T0}, s{S_RANK}, 6
    s_lshl_b32 s{S_T1}, s{S_WAVE}, 4
    s_add_u32 s{S_T0}, s{S_T0}, s{S_T1}
    s_mul_i32 s{S_T0}, s{S_T0}, 896
    v_mov_b32 v9, {OOB}
    v_cmp_gt_u32 vcc, 56, v{LN}
    v_cndmask_b32 v9, v9, v{L16}, vcc
    """)
    WD = 32
    for i in range(16):
        a(f"buffer_load_dwordx4 {vr(WD+4*i,4)}, v9, s[{SD}:{SD+3}], s{S_T0} offen")
        a(f"s_add_u32 s{S_T0}, s{S_T0}, 896")
    a(f"""
    s_waitcnt lgkmcnt(0)
    s_barrier
    v_lshlrev_b32 v10, 2, v{LN}
    v_mov_b32 v12, 0
    v_mov_b32 v13, 0
    """)
    P = 100
    for half in range(4):
        for p in range(8):
            a(f"ds_read2_b32 {vr(P+2*p,2)}, v10 offset0:0 offset1:64")
            a(f"v_add_u32 v10, 512, v10")
        a("s_waitcnt lgkmcnt(0)")
        for p in range(8):
            a(f"v_add_f32 v12, v12, v{P+2*p}")
            a(f"v_add_f32 v13, v13, v{P+2*p+1}")
    rbf(a, 12)
    rbf(a, 13)
    a(f"""
    v_mul_f32 v14, {f32hex(-LOG2E)}, v12
    v_exp_f32 v14, v14
    v_add_f32 v14, 1.0, v14
    v_rcp_f32 v14, v14
    v_mul_f32 v12, v12, v14
    """)
    rbf(a, 12)
    a("v_mul_f32 v12, v12, v13")
    rbf(a, 12)
    a(f"s_lshl_b32 s{S_T1}, s{S_WAVE}, 4")
    for r in range(8):
        a(f"v_mov_b32 v{AC+r}, 0")
    for i in range(16):
        a(f"s_add_u32 s{S_T2}, s{S_T1}, {i}")
        a(f"v_readlane_b32 s{S_T0}, v12, s{S_T2}")
        a(f"s_waitcnt vmcnt({15-i})")
        for q in range(4):
            w = WD + 4 * i + q
            a(f"v_lshlrev_b32 v8, 16, v{w}")
            a(f"v_and_b32 v9, 0xffff0000, v{w}")
            a(f"v_fmac_f32 v{AC+2*q}, s{S_T0}, v8")
            a(f"v_fmac_f32 v{AC+2*q+1}, s{S_T0}, v9")
    a(f"""
    s_barrier
    s_lshl_b32 s{S_T0}, s{S_WAVE}, 11
    v_lshlrev_b32 v8, 5, v{LN}
    v_add_u32 v9, s{S_T0}, v8
    ds_write_b128 v9, {vr(AC,4)}
    ds_write_b128 v9, {vr(AC+4,4)} offset:16
    s_waitcnt lgkmcnt(0)
    s_barrier
    s_cmp_lg_u32 s{S_WAVE}, 0
    s_cbranch_scc1 H_mod_done
    """)
    for w in range(1, 4):
        a(f"ds_read_b128 {vr(P+8*w,4)}, v8 offset:{2048*w}")
        a(f"ds_read_b128 {vr(P+8*w+4,4)}, v8 offset:{2048*w+16}")
    a("s_waitcnt lgkmcnt(0)")
    for w in range(1, 4):
        for r in range(8):
            a(f"v_add_f32 v{AC+r}, v{AC+r}, v{P+8*w+r}")
    a(f"""
    v_mov_b32 v9, {OOB}
    v_cmp_gt_u32 vcc, 56, v{LN}
    v_cndmask_b32 v9, v9, v8, vcc
    s_mul_i32 s{S_T0}, s{S_RANK}, 1792
    s_add_u32 s{S_T0}, s{S_T0}, {YM_OFF}
    buffer_store_dwordx4 {vr(AC,4)}, v9, {WS}, s{S_T0} offen sc1
    buffer_store_dwordx4 {vr(AC+4,4)}, v9, {WS}, s{S_T0} offen offset:16 sc1
    v_mov_b32 v10, s{S_IDX}
    v_mov_b32 v11, s{S_RM}
    v_mov_b32 v12, 32
    v_mov_b32 v13, 28
    v_mov_b32 v14, 1
    s_mov_b64 exec, 1
    buffer_store_dwordx2 v[10:11], v12, {WS}, s{S_FLG} offen sc1
    s_waitcnt vmcnt(0)
    buffer_store_dword v14, v13, {WS}, s{S_FLG} offen sc1
    s_mov_b64 exec, -1
    H_mod_done:
    s_barrier
    """)


def gen_vp(a):
    SETS, AC, O = (32, 64), 96, 104
    S_MO, S_VPO, S_MO2, S_PO, S_PO2 = 45, 46, 47, 48, 49

    def loads(dst, s0, s1):
        for u in range(7):
            a(f"buffer_load_dwordx4 {vr(dst+4*u,4)}, v{L16}, {WS}, s{s0 if u < 4 else s1} offen offset:{(u&3)*1024} sc1")

    def check(dst, ok):
        r = list(range(dst, dst + 28))
        a(f"v_max3_u32 v{TMP}, v{r[0]}, v{r[1]}, v{r[2]}")
        r = r[3:]
        while len(r) >= 2:
            a(f"v_max3_u32 v{TMP}, v{TMP}, v{r[0]}, v{r[1]}"); r = r[2:]
        a(f"v_max_u32 v{TMP}, v{TMP}, v{r[0]}")
        a(f"v_cmp_eq_u32 vcc, -1, v{TMP}")
        a(f"s_cbranch_vccz {ok}")

    def flag(sval):
        a(f"v_mov_b32 v8, s{sval}")
        a("s_mov_b64 exec, 1")
        a(f"buffer_store_dword v8, v7, {WS}, s{S_FLG} offen sc1")
        a("s_mov_b64 exec, -1")

    a.label("H_vp")
    a(f"""
    s_mov_b32 s{S_STEP}, 0
    s_mov_b32 s{S_MO}, {MEMR_OFF}
    s_mov_b32 s{S_MO2}, {MEMR_OFF+4096}
    s_lshl_b32 s{S_VPO}, s{S_RANK}, 10
    s_add_u32 s{S_VPO}, s{S_VPO}, {VP_OFF}
    v_mov_b32 v7, 16
    v_mov_b32 v9, {MFLAG_OFF}
    """)
    loads(SETS[0], S_MO, S_MO2)
    a("s_waitcnt vmcnt(0)")
    a.label("H_vp_step")
    for ph in range(2):
        cur, nxt = SETS[ph], SETS[1 - ph]
        a(f"""
        s_mov_b32 s{S_PO}, s{S_MO}
        s_mov_b32 s{S_PO2}, s{S_MO2}
        s_cmp_lt_u32 s{S_STEP}, 63
        s_cselect_b32 s{S_T0}, {MEMS_STEP}, 0
        s_add_u32 s{S_MO}, s{S_MO}, s{S_T0}
        s_add_u32 s{S_MO2}, s{S_MO2}, s{S_T0}
        """)
        loads(nxt, S_MO, S_MO2)
        for r in range(8):
            a(f"v_mov_b32 v{AC+r}, 0")
        a(f"s_sub_u32 s{S_T0}, s{S_STEP}, 1")
        a(f"s_max_i32 s{S_T0}, s{S_T0}, 0")
        a("s_waitcnt vmcnt(9)")
        flag(S_T0)
        check(cur, f"H_vp_go{ph}")
        a("s_waitcnt vmcnt(0)")
        flag(S_STEP)
        a(f"""
        s_mov_b32 s{S_CNT}, s{S_LIM}
        H_vp_l{ph}:
        buffer_load_dword v{TMP}, v9, {WS}, 0 offen
        s_waitcnt vmcnt(0)
        v_cmp_le_u32 vcc, s{S_STEP}, v{TMP}
        s_cbranch_vccnz H_vp_lg{ph}
        s_sleep {gc.OPT["vpsl"]}
        """)
        gc.retry(a, f"H_vp_l{ph}")
        a.label(f"H_vp_lg{ph}")
        a(f"s_mov_b32 s{S_CNT}, s{S_LIM}")
        a.label(f"H_vp_poll{ph}")
        loads(cur, S_PO, S_PO2)
        a("s_waitcnt vmcnt(0)")
        check(cur, f"H_vp_go{ph}")
        a("s_sleep 1")
        gc.retry(a, f"H_vp_poll{ph}")
        a.label(f"H_vp_go{ph}")
        for u in range(7):
            for t in range(2):
                a(f"v_smfmac_f32_16x16x64_bf16 {vr(AC+4*t,4)}, {vr(cur+4*u,4)}, {WBr(t,2*u,8)}, v{IDX}")
        a(f"s_add_u32 s{S_STEP}, s{S_STEP}, 1")
        for t in range(2):
            a(f"v_cvt_pk_bf16_f32 v{O+2*t}, v{AC+4*t}, v{AC+4*t+1}")
            a(f"v_cvt_pk_bf16_f32 v{O+2*t+1}, v{AC+4*t+2}, v{AC+4*t+3}")
        a(f"buffer_store_dwordx4 {vr(O,4)}, v{L16}, {WS}, s{S_VPO} offen sc1")
        a(f"s_add_u32 s{S_VPO}, s{S_VPO}, {224*FR}")
    a(f"""
    s_cmp_lt_u32 s{S_STEP}, 64
    s_cbranch_scc1 H_vp_step
    s_waitcnt vmcnt(0)
    """)
    flag(S_STEP)
    a("s_waitcnt vmcnt(0)")
    gc.evt(a, 5, DIAG, 8, 9)
    a("s_endpgm")


def gen_f1(a):
    TXr, KX, MKr, D, MSK = 16, 72, 184, 240, 8
    MFm = KX
    V_FA, V_LB, V_MA, V_PM, V_FLG = 252, 253, 254, 255, 7
    S_S, S_N, S_QT, S_MO = 45, 46, 47, 48
    a(f"""
    s_sub_u32 s{S_QT}, s{S_WAVE}, 1
    s_mov_b32 s{S_S}, s{S_C}
    s_mov_b32 s{S_N}, 0
    s_lshl_b32 s{S_T0}, s{S_QT}, 4
    v_add_u32 v16, s{S_T0}, v{L15}
    v_lshlrev_b32 v17, 2, v{G}
    v_mov_b32 v18, {NEG}
    """)
    for kt in range(2):
        for r in range(4):
            a(f"v_add_u32 v19, {16*kt+r}, v17")
            a(f"v_cmp_le_u32 vcc, v19, v16")
            a(f"v_cndmask_b32 v{MSK+4*kt+r}, v18, 0, vcc")
    a(f"""
    s_lshl_b32 s{S_T0}, s{S_WAVE}, 13
    v_add_u32 v{V_LB}, s{S_T0}, v{L16}
    v_lshrrev_b32 v16, 1, v{G}
    v_lshlrev_b32 v16, 8, v16
    v_lshrrev_b32 v17, 1, v{L15}
    v_lshl_add_u32 v16, v17, 5, v16
    v_and_b32 v17, 1, v{G}
    v_lshl_add_u32 v16, v17, 3, v16
    v_add_u32 v{V_MA}, s{S_T0}, v16
    s_and_b32 s{S_T0}, s{S_H}, 1
    s_lshl_b32 s{S_T0}, s{S_T0}, 3
    v_add_u32 v{V_PM}, s{S_T0}, v{L16}
    v_min_u32 v16, 13, v{LN}
    s_mul_i32 s{S_T0}, s{S_H}, 14
    v_add_u32 v16, s{S_T0}, v16
    v_lshlrev_b32 v16, 6, v16
    v_add_u32 v{V_FA}, {PROG_OFF}, v16
    s_lshl_b32 s{S_T0}, s{S_QT}, 2
    s_add_u32 s{S_T0}, s{S_T0}, 20
    v_mov_b32 v{V_FLG}, s{S_T0}
    H_f1_step:
    s_and_b32 s{S_T0}, s{S_S}, 3
    s_lshl_b32 s{S_T0}, s{S_T0}, 2
    v_add_u32 v{D}, s{S_T0}, v{V_FA}
    s_lshr_b32 s{S_T0}, s{S_S}, 2
    v_mov_b32 v{D+1}, s{S_T0}
    """)
    flagwait(a, D, D + 1, D + 2)
    a(f"""
    s_lshl_b32 s{S_T0}, s{S_S}, 4
    s_add_u32 s{S_T0}, s{S_T0}, s{S_H}
    s_mul_i32 s{S_T0}, s{S_T0}, {28*FR}
    s_lshl_b32 s{S_T1}, s{S_QT}, 10
    s_add_u32 s{S_T0}, s{S_T0}, s{S_T1}
    s_add_u32 s{S_T0}, s{S_T0}, {TX_OFF}
    s_mul_i32 s{S_T1}, s{S_S}, {28*FR}
    s_add_u32 s{S_T1}, s{S_T1}, {XF_OFF}
    s_add_u32 s{S_T2}, s{S_T1}, {14*FR}
    """)
    for ks in range(14):
        a(f"buffer_load_dwordx4 {vr(TXr+4*ks,4)}, v{L16}, {WS}, s{S_T0} offen offset:{(ks&1)*2048} sc1")
        a(f"buffer_load_dwordx4 {vr(KX+8*ks,4)}, v{L16}, {WS}, s{S_T1} offen offset:{(ks&3)*1024}")
        a(f"buffer_load_dwordx4 {vr(KX+8*ks+4,4)}, v{L16}, {WS}, s{S_T2} offen offset:{(ks&3)*1024}")
        if ks & 1:
            a(f"s_add_u32 s{S_T0}, s{S_T0}, 4096")
        if ks & 3 == 3:
            a(f"s_add_u32 s{S_T1}, s{S_T1}, 4096\ns_add_u32 s{S_T2}, s{S_T2}, 4096")
    for ks in range(14):
        a(f"s_waitcnt vmcnt({39-3*ks})")
        for kt in range(2):
            c_ = vr(MSK + 4 * kt, 4) if ks == 0 else vr(D + 4 * kt, 4)
            a(f"v_mfma_f32_16x16x32_bf16 {vr(D+4*kt,4)}, {vr(KX+8*ks+4*kt,4)}, {vr(TXr+4*ks,4)}, {c_}")
    a(f"s_mul_i32 s{S_MO}, s{S_S}, {MEMS_STEP}")
    a(f"s_add_u32 s{S_MO}, s{S_MO}, {MEMR_OFF}")
    a(f"""
    s_mov_b32 s{S_CNT}, s{S_LIM}
    v_mov_b32 v{MKr}, {MFLAG_OFF}
    H_f1_light:
    buffer_load_dword v{TMP}, v{MKr}, {WS}, 0 offen sc1
    s_waitcnt vmcnt(0)
    v_cmp_le_u32 vcc, s{S_S}, v{TMP}
    s_cbranch_vccnz H_f1_lgo
    s_sleep {gc.OPT["vpsl"]}
    """)
    gc.retry(a, "H_f1_light")
    a.label("H_f1_lgo")
    mempoll(a, MFm, S_MO, sleep=1)
    for u in range(7):
        a(f"ds_write_b128 v{V_LB}, {vr(MFm+4*u,4)} offset:{u*1024}")
    a(f"v_mov_b32 v{TMP}, v{V_MA}")
    for ks in range(14):
        o = 128 * (ks & 1)
        a(f"ds_read2_b32 {vr(MKr+4*ks,2)}, v{TMP} offset0:{o} offset1:{o+4}")
        a(f"ds_read2_b32 {vr(MKr+4*ks+2,2)}, v{TMP} offset0:{o+1} offset1:{o+5}")
        if ks & 1:
            a(f"v_add_u32 v{TMP}, 1024, v{TMP}")
        if ks == 6:
            a("s_waitcnt lgkmcnt(0)")
    for ks in range(14):
        if ks >= 7:
            a(f"s_waitcnt lgkmcnt({2*(13-ks)})")
        c_ = "0" if ks == 0 else vr(D + 8, 4)
        a(f"v_mfma_f32_16x16x32_bf16 {vr(D+8,4)}, {vr(MKr+4*ks,4)}, {vr(TXr+4*ks,4)}, {c_}")
    Mx, T2 = KX, KX + 1
    a(f"""
    s_lshl_b32 s{S_T0}, s{S_S}, 1
    s_add_u32 s{S_T0}, s{S_T0}, s{S_QT}
    s_mul_i32 s{S_T0}, s{S_T0}, {24*FR}
    s_add_u32 s{S_T0}, s{S_T0}, {PX_OFF}
    s_lshl_b32 s{S_T1}, s{S_H}, 10
    s_add_u32 s{S_T1}, s{S_T1}, s{S_T0}
    s_lshr_b32 s{S_T2}, s{S_H}, 1
    s_lshl_b32 s{S_T2}, s{S_T2}, 10
    s_add_u32 s{S_T2}, s{S_T2}, s{S_T0}
    s_add_u32 s{S_T2}, s{S_T2}, {16*FR}
    v_max3_f32 v{Mx}, v{D}, v{D+1}, v{D+2}
    v_max3_f32 v{Mx}, v{Mx}, v{D+3}, v{D+4}
    v_max3_f32 v{Mx}, v{Mx}, v{D+5}, v{D+6}
    v_max3_f32 v{Mx}, v{Mx}, v{D+7}, v{D+8}
    v_max_f32 v{Mx}, v{Mx}, v{D+10}
    """)
    xg_reduce(a, "v_max_f32", Mx, T2)
    vals = list(range(D, D + 8)) + [D + 8, D + 10]
    for v in vals:
        a(f"v_sub_f32 v{v}, v{v}, v{Mx}")
    for v in vals:
        a(f"v_exp_f32 v{v}, v{v}")
    a(f"v_add_f32 v{Mx}, v{vals[0]}, v{vals[1]}")
    for v in vals[2:]:
        a(f"v_add_f32 v{Mx}, v{Mx}, v{v}")
    xg_reduce(a, "v_add_f32", Mx, T2)
    a(f"v_rcp_f32 v{Mx}, v{Mx}")
    for v in vals:
        a(f"v_mul_f32 v{v}, v{v}, v{Mx}")
    O = KX + 4
    for q in range(4):
        a(f"v_cvt_pk_bf16_f32 v{O+q}, v{D+2*q}, v{D+2*q+1}")
    a(f"""
    v_cvt_pk_bf16_f32 v{O+4}, v{D+8}, v{D+8}
    v_cvt_pk_bf16_f32 v{O+5}, v{D+10}, v{D+10}
    buffer_store_dwordx4 {vr(O,4)}, v{L16}, {WS}, s{S_T1} offen sc1
    buffer_store_dwordx2 {vr(O+4,2)}, v{V_PM}, {WS}, s{S_T2} offen sc1
    s_add_u32 s{S_N}, s{S_N}, 1
    v_mov_b32 v{TMP}, s{S_N}
    s_waitcnt vmcnt(0)
    s_mov_b64 exec, 1
    buffer_store_dword v{TMP}, v{V_FLG}, {WS}, s{S_FLG} offen sc1
    s_mov_b64 exec, -1
    s_add_u32 s{S_S}, s{S_S}, 14
    s_cmp_lt_u32 s{S_S}, 64
    s_cbranch_scc1 H_f1_step
    s_waitcnt vmcnt(0)
    """)
    gc.evt(a, 5, DIAG, 8, 9)
    a("s_endpgm")


def gen_f2(a):
    PXX, PXM, VPr, D, XV, GV = 16, 80, 112, 176, 184, 188
    V_F0, V_F1, V_THR, V_VAL, V_OA = 8, 9, 10, 11, 12
    S_U, S_S, S_QT, S_MT, S_IDX, S_RS = 45, 46, 47, 48, 49, 50
    SO = 52
    a.label("H_f2")
    srd(a, SO, S_OUT, 2048 * 896)
    a(f"""
    v_mov_b32 v{V_F0}, {PROG_OFF+28}
    v_mov_b32 v{V_THR}, 0
    """)
    flagwait(a, V_F0, V_THR, V_VAL)
    a(f"""
    v_mov_b32 v{V_F0}, {PROG_OFF+32}
    buffer_load_dwordx2 v[14:15], v{V_F0}, {WS}, 0 offen sc1
    s_and_b32 s{S_QT}, s{S_H}, 1
    s_lshr_b32 s{S_S}, s{S_H}, 1
    s_mov_b32 s{S_U}, 0
    v_mul_u32_u24 v{V_F0}, {14*64}, v{L15}
    v_add_u32 v{V_F0}, {PROG_OFF}, v{V_F0}
    v_mul_u32_u24 v{V_OA}, 896, v{L15}
    v_lshl_add_u32 v{V_OA}, v{G}, 4, v{V_OA}
    s_waitcnt vmcnt(0)
    v_readfirstlane_b32 s{S_IDX}, v14
    v_cvt_pk_bf16_f32 v15, v15, v15
    v_and_b32 v15, 0xffff0000, v15
    v_mul_f32 v15, {f32hex(-LOG2E)}, v15
    v_exp_f32 v15, v15
    v_add_f32 v15, 1.0, v15
    v_rcp_f32 v15, v15
    v_cvt_pk_bf16_f32 v15, v15, v15
    v_and_b32 v15, 0xffff0000, v15
    v_readfirstlane_b32 s{S_RS}, v15
    H_f2_step:
    s_lshl_b32 s{S_MT}, s{S_S}, 1
    s_add_u32 s{S_MT}, s{S_MT}, s{S_QT}
    s_lshl_b32 s{S_T0}, s{S_C}, 6
    s_and_b32 s{S_T1}, s{S_S}, 3
    s_lshl_b32 s{S_T1}, s{S_T1}, 2
    s_add_u32 s{S_T1}, s{S_T1}, s{S_T0}
    v_add_u32 v{V_F1}, s{S_T1}, v{V_F0}
    s_lshr_b32 s{S_T1}, s{S_S}, 2
    v_mov_b32 v{V_THR}, s{S_T1}
    """)
    flagwait(a, V_F1, V_THR, V_VAL)
    a(f"""
    s_mul_i32 s{S_T0}, s{S_S}, {VX_STEP}
    s_lshl_b32 s{S_T1}, s{S_C}, 11
    s_add_u32 s{S_T0}, s{S_T0}, s{S_T1}
    s_add_u32 s{S_T0}, s{S_T0}, {VX_OFF}
    """)
    for h in range(16):
        for t in range(2):
            a(f"buffer_load_dwordx4 {ar(8*h+4*t,4)}, v{L16}, {WS}, s{S_T0} offen offset:{t*FR} sc1")
        a(f"s_add_u32 s{S_T0}, s{S_T0}, {28*FR}")
    a(f"""
    s_mul_i32 s{S_T0}, s{S_MT}, 14
    s_add_u32 s{S_T0}, s{S_T0}, s{S_C}
    s_lshl_b32 s{S_T0}, s{S_T0}, 10
    s_add_u32 s{S_T0}, s{S_T0}, {XF_OFF}
    buffer_load_dwordx4 {vr(XV,4)}, v{L16}, {WS}, s{S_T0} offen
    s_lshl_b32 s{S_T0}, s{S_MT}, 6
    s_add_u32 s{S_T0}, s{S_T0}, {RG_OFF+8192}
    v_lshlrev_b32 v13, 2, v{L15}
    buffer_load_dword v{GV}, v13, {WS}, s{S_T0} offen
    ; lanes 0..15: V' flag (h', c) word 4 > s ; lanes 16..: F1 flag (h', s%14) word 5+qt > s/14
    s_mul_i32 s{S_T1}, s{S_S}, 4682
    s_lshr_b32 s{S_T1}, s{S_T1}, 16
    s_mul_i32 s{S_T2}, s{S_T1}, 14
    s_sub_u32 s{S_T2}, s{S_S}, s{S_T2}
    s_lshl_b32 s{S_T2}, s{S_T2}, 6
    s_lshl_b32 s{S_T3}, s{S_QT}, 2
    s_add_u32 s{S_T2}, s{S_T2}, s{S_T3}
    s_add_u32 s{S_T2}, s{S_T2}, 20
    s_lshl_b32 s{S_T0}, s{S_C}, 6
    s_add_u32 s{S_T0}, s{S_T0}, 16
    v_mov_b32 v13, s{S_T0}
    v_mov_b32 v14, s{S_T2}
    v_mov_b32 v15, s{S_S}
    v_mov_b32 v{V_THR}, s{S_T1}
    v_cmp_gt_u32 vcc, 16, v{LN}
    v_cndmask_b32 v13, v14, v13, vcc
    v_cndmask_b32 v{V_THR}, v{V_THR}, v15, vcc
    v_add_u32 v{V_F1}, v13, v{V_F0}
    """)
    a(f"""
    v_mov_b32 v13, {MFLAG_OFF}
    s_mov_b32 s{S_CNT}, s{S_LIM}
    H_f2_l:
    buffer_load_dword v14, v13, {WS}, 0 offen
    s_waitcnt vmcnt(0)
    v_cmp_le_u32 vcc, s{S_S}, v14
    s_cbranch_vccnz H_f2_lg
    s_sleep 8
    """)
    gc.retry(a, "H_f2_l")
    a.label("H_f2_lg")
    a(f"s_sleep {gc.OPT['f2pre']}")
    a("s_mov_b64 exec, 0xffffffff")
    flagwait(a, V_F1, V_THR, V_VAL, sleep=gc.OPT["f2sl"], full="0xffffffff")
    a("s_mov_b64 exec, -1")
    a(f"""
    s_mul_i32 s{S_T0}, s{S_MT}, {24*FR}
    s_add_u32 s{S_T0}, s{S_T0}, {PX_OFF}
    s_mul_i32 s{S_T1}, s{S_S}, {224*FR}
    s_lshl_b32 s{S_T2}, s{S_C}, 10
    s_add_u32 s{S_T1}, s{S_T1}, s{S_T2}
    s_add_u32 s{S_T1}, s{S_T1}, {VP_OFF}
    """)
    for f in range(24):
        dst = PXX + 4 * f
        a(f"buffer_load_dwordx4 {vr(dst,4)}, v{L16}, {WS}, s{S_T0} offen offset:{(f&3)*FR} sc1")
        if f & 3 == 3:
            a(f"s_add_u32 s{S_T0}, s{S_T0}, 4096")
    for h in range(16):
        a(f"buffer_load_dwordx4 {vr(VPr+4*h,4)}, v{L16}, {WS}, s{S_T1} offen sc1")
        a(f"s_add_u32 s{S_T1}, s{S_T1}, {14*FR}")
    for h in range(16):
        a(f"s_waitcnt vmcnt({39-h})")
        for t in range(2):
            c_ = "0" if h == 0 else vr(D + 4 * t, 4)
            a(f"v_mfma_f32_16x16x32_bf16 {vr(D+4*t,4)}, {ar(8*h+4*t,4)}, {vr(PXX+4*h,4)}, {c_}")
    for hp in range(8):
        b = VPr + 8 * hp
        a(f"s_waitcnt vmcnt({14-2*hp})")
        a(f"v_swap_b32 v{b+2}, v{b+4}")
        a(f"v_swap_b32 v{b+3}, v{b+5}")
        for t in range(2):
            a(f"v_mfma_f32_16x16x32_bf16 {vr(D+4*t,4)}, {vr(b+4*t,4)}, {vr(PXM+4*hp,4)}, {vr(D+4*t,4)}")
    B = PXX
    for r in range(4):
        a(f"v_lshlrev_b32 v{B+2*r}, 16, v{XV+r}")
        a(f"v_and_b32 v{B+2*r+1}, 0xffff0000, v{XV+r}")
    a(f"""
    s_lshr_b32 s{S_T0}, s{S_IDX}, 4
    s_cmp_lg_u32 s{S_T0}, s{S_MT}
    s_cbranch_scc1 H_f2_nomod
    v_min_u32 v13, 27, v{LN}
    v_lshlrev_b32 v13, 6, v13
    v_add_u32 v13, {PROG_OFF+28}, v13
    v_mov_b32 v{V_THR}, 0
    """)
    flagwait(a, 13, V_THR, V_VAL)
    Y, YL = PXM, PXM + 8
    a(f"""
    v_lshlrev_b32 v13, 5, v{G}
    s_lshl_b32 s{S_T0}, s{S_C}, 7
    s_add_u32 s{S_T0}, s{S_T0}, {YM_OFF}
    s_mov_b32 s{S_T1}, 28
    """)
    for r in range(8):
        a(f"v_mov_b32 v{Y+r}, 0")
    a(f"""
    H_f2_ysum:
    buffer_load_dwordx4 {vr(YL,4)}, v13, {WS}, s{S_T0} offen sc1
    buffer_load_dwordx4 {vr(YL+4,4)}, v13, {WS}, s{S_T0} offen offset:16 sc1
    s_add_u32 s{S_T0}, s{S_T0}, 1792
    s_waitcnt vmcnt(0)
    """)
    for r in range(8):
        a(f"v_add_f32 v{Y+r}, v{Y+r}, v{YL+r}")
    a(f"""
    s_sub_u32 s{S_T1}, s{S_T1}, 1
    s_cmp_lg_u32 s{S_T1}, 0
    s_cbranch_scc1 H_f2_ysum
    s_and_b32 s{S_T0}, s{S_IDX}, 15
    v_cmp_eq_u32 vcc, s{S_T0}, v{L15}
    """)
    for r in range(8):
        rbf(a, Y + r)
        a(f"v_mul_f32 v{Y+r}, s{S_RS}, v{Y+r}")
        rbf(a, Y + r)
        a(f"v_add_f32 v{Y+r}, v{Y+r}, v{B+r}")
        rbf(a, Y + r)
        a(f"v_cndmask_b32 v{B+r}, v{B+r}, v{Y+r}, vcc")
    a.label("H_f2_nomod")
    OM = PXM + 16
    a(f"v_sub_f32 v{OM}, 1.0, v{GV}")
    rbf(a, OM)
    O = PXM + 20
    for r in range(4):
        lo, hi = D + r, D + 4 + r
        T = PXM + 24
        a(f"v_cvt_pk_bf16_f32 v{T}, v{lo}, v{hi}")
        a(f"v_lshlrev_b32 v{lo}, 16, v{T}")
        a(f"v_and_b32 v{hi}, 0xffff0000, v{T}")
        a(f"v_mul_f32 v{lo}, v{lo}, v{GV}")
        a(f"v_mul_f32 v{hi}, v{hi}, v{GV}")
        a(f"v_cvt_pk_bf16_f32 v{T}, v{lo}, v{hi}")
        a(f"v_lshlrev_b32 v{lo}, 16, v{T}")
        a(f"v_and_b32 v{hi}, 0xffff0000, v{T}")
        a(f"v_mul_f32 v{B+2*r}, v{B+2*r}, v{OM}")
        a(f"v_mul_f32 v{B+2*r+1}, v{B+2*r+1}, v{OM}")
        a(f"v_cvt_pk_bf16_f32 v{T}, v{B+2*r}, v{B+2*r+1}")
        a(f"v_lshlrev_b32 v{B+2*r}, 16, v{T}")
        a(f"v_and_b32 v{B+2*r+1}, 0xffff0000, v{T}")
        a(f"v_add_f32 v{lo}, v{lo}, v{B+2*r}")
        a(f"v_add_f32 v{hi}, v{hi}, v{B+2*r+1}")
        a(f"v_cvt_pk_bf16_f32 v{O+r}, v{lo}, v{hi}")
    a(f"""
    s_mul_i32 s{S_T0}, s{S_MT}, {16*896}
    s_lshl_b32 s{S_T1}, s{S_C}, 6
    s_add_u32 s{S_T0}, s{S_T0}, s{S_T1}
    buffer_store_dwordx4 {vr(O,4)}, v{V_OA}, s[{SO}:{SO+3}], s{S_T0} offen
    s_add_u32 s{S_S}, s{S_S}, 8
    s_add_u32 s{S_U}, s{S_U}, 1
    s_cmp_lt_u32 s{S_U}, 8
    s_cbranch_scc1 H_f2_step
    s_waitcnt vmcnt(0)
    """)
    gc.evt(a, 5, DIAG, 8, 9)
    a("s_endpgm")
```

```python
from asmlib import *
from layout import *
import math, struct

C1 = math.log2(math.e) / 16.0
LOG2E = math.log2(math.e)
SRD_WS, SRD_X, SRD_DBG, S_WAVE, S_XCC = 16, 20, 24, 28, 44
WSs, XSs, DBGs = "s[16:19]", "s[20:23]", "s[24:27]"


def f32hex(x):
    return "0x%08x" % struct.unpack("<I", struct.pack("<f", x))[0]


def srd(a, d, ptr, size):
    a(f"s_mov_b32 s{d}, s{ptr}\ns_mov_b32 s{d+1}, s{ptr+1}\ns_mov_b32 s{d+2}, {size}\ns_mov_b32 s{d+3}, 0x20000")


def CW_A(h): return 8 * (h >> 1) + 1 + (h & 1)
def CW_B(j): return 8 * j + 3
CW_M = 60
CW_K = 59


DIAG = False


def ev(a, k):
    import gen_chain as gc
    if DIAG:
        a("s_memrealtime s[96:97]\ns_waitcnt lgkmcnt(0)")
        a(f"s_mov_b32 s{90+k}, s96")


def ev_flush(a):
    import gen_chain as gc
    if not DIAG:
        return
    a(f"""
    s_lshl_b32 s98, s2, 2
    s_add_u32 s98, s98, s{S_WAVE}
    s_lshl_b32 s98, s98, 5
    s_add_u32 s98, s98, {gc.EVT_OFF + 32768}
    s_mov_b64 exec, 1
    """)
    for k in range(1, 6):
        a(f"v_mov_b32 v2, s{90+k}\nv_mov_b32 v3, {4*k}\nbuffer_store_dword v2, v3, {WSs}, s98 offen")
    a("s_mov_b64 exec, -1")


def arrive(a, sword, t=2):
    lab = a.newlabel("arr")
    if t == 2:
        ev(a, 4)
        a("s_waitcnt vmcnt(0)")
        ev(a, 5)
        ev_flush(a)
    a(f"""
    s_waitcnt vmcnt(0)
    s_barrier
    s_cmp_lg_u32 s{S_WAVE}, 0
    s_cbranch_scc1 {lab}
    v_mov_b32 v{t}, s{sword}
    v_mov_b32 v{t+1}, 1
    s_mov_b64 exec, 1
    buffer_atomic_add v{t+1}, v{t}, {DBGs}, 0 offen sc1
    s_mov_b64 exec, -1
    {lab}:
    """)


def gen_ab(a, sRANK):
    WSZ_B = 448 * 4096 * 2
    SA_, SB_ = 48, 52
    SAs, SBs = f"s[{SA_}:{SA_+3}]", f"s[{SB_}:{SB_+3}]"
    sW = S_WAVE
    sH, sJ, sP, t0, t1, t2, t3, sBUF, sOUT, sHO, sSC, sKS, sN, sI, sK14, sPEND, sHF = 56, 57, 78, 79, 80, 81, 82, 83, 84, 85, 86, 87, 88, 45, 46, 47, 58
    LN, G, L15 = 1, 2, 3
    BR, ACC, AF = 128, 96, 32
    RA, L16 = 8, 6
    STG = 131072
    ev(a, 1)
    a(f"""
    v_and_b32 v{LN}, 63, v0
    s_mul_i32 s{sH}, s{sRANK}, 4682
    s_lshr_b32 s{sH}, s{sH}, 16
    s_mul_i32 s{t3}, s{sH}, 14
    s_sub_u32 s{t3}, s{sRANK}, s{t3}
    s_lshr_b32 s{sJ}, s{t3}, 1
    s_and_b32 s{sHF}, s{t3}, 1
    s_mul_i32 s{sHF}, s{sHF}, 7
    v_lshrrev_b32 v6, 5, v{LN}
    v_and_b32 v7, 31, v{LN}
    v_xor_b32 v7, v7, v6
    v_lshlrev_b32 v7, 4, v7
    v_lshl_add_u32 v24, v6, 13, v7
    v_xor_b32 v25, 32, v24
    v_xor_b32 v26, 64, v24
    v_xor_b32 v27, 64, v25
    s_lshl_b32 s{sBUF}, s{sW}, 14
    s_lshl_b32 s{sHO}, s{sH}, 9
    s_mov_b32 s{SA_}, s62
    s_mov_b32 s{SA_+1}, s63
    s_mov_b32 s{SA_+2}, {WSZ_B}
    s_mov_b32 s{SA_+3}, 0x20000
    s_mov_b32 s{SB_}, s64
    s_mov_b32 s{SB_+1}, s65
    s_mov_b32 s{SB_+2}, s{SA_+2}
    s_mov_b32 s{SB_+3}, 0x20000
    s_movk_i32 s{sI}, 0x4000
    s_lshl2_add_u32 s{t0}, s{sJ}, s{sW}
    s_lshl_b32 s{t0}, s{t0}, 17
    s_add_u32 s{t0}, s{t0}, s{sHO}
    s_lshl_b32 s{t1}, s{sW}, 13
    s_add_u32 m0, s{t1}, {STG}
    s_and_b32 s{t1}, s{sW}, 1
    s_lshl_b32 s{t1}, s{t1}, 7
    v_xor_b32 v12, s{t1}, v24
    v_xor_b32 v13, s{t1}, v25
    v_xor_b32 v14, s{t1}, v26
    v_xor_b32 v15, s{t1}, v27
    s_movk_i32 s{t1}, 0x400
    """)
    for ii in range(8):
        a(f"buffer_load_dwordx4 v{12+(ii>>2)*2+(ii&1)}, {SBs}, s{t0} offen lds")
        a(f"s_add_u32 s{t0}, s{t0}, s{sI}")
        a(f"s_add_u32 m0, m0, s{t1}")

    def blk_addr():
        a(f"""
        s_sub_u32 s{t0}, s{sKS}, 7
        s_min_u32 s{t0}, s{t0}, s{sKS}
        s_sub_u32 s{t2}, s{t0}, 7
        s_min_u32 s{t0}, s{t0}, s{t2}
        s_add_u32 s{sK14}, s{t0}, s{sHF}
        s_lshl_b32 s{t0}, s{sK14}, 18
        s_add_u32 s{t0}, s{t0}, s{sHO}
        s_mov_b32 m0, s{sBUF}
        s_xor_b32 s{sBUF}, s{sBUF}, 65536
        s_add_u32 s{sKS}, s{sKS}, 4
        """)
    a(f"""
    s_add_u32 s{sKS}, s{sJ}, s{sW}
    v_xor_b32 v28, 0x80, v24
    v_xor_b32 v29, 32, v28
    v_xor_b32 v30, 64, v28
    v_xor_b32 v31, 64, v29
    """)
    blk_addr()
    for i in range(16):
        a(f"buffer_load_dwordx4 v{24+(i>>2)*2+(i&1)}, {SAs}, s{t0} offen lds")
        a(f"s_add_u32 s{t0}, s{t0}, s{sI}")
        a(f"s_add_u32 m0, m0, s{t1}")
    a(f"""
    s_mov_b32 s{SB_}, s68
    s_mov_b32 s{SB_+1}, s69
    v_lshrrev_b32 v12, 3, v{LN}
    v_and_b32 v13, 7, v{LN}
    v_mul_u32_u24 v14, 896, v12
    v_lshl_add_u32 v14, v13, 4, v14
    s_lshl2_add_u32 s{t0}, s{sH}, s{sW}
    s_mul_i32 s{t0}, s{t0}, {64*896}
    s_lshl_b32 s{t2}, s{sJ}, 7
    s_add_u32 s{t0}, s{t0}, s{t2}
    s_movk_i32 s{t2}, {8*896}
    """)
    for i in range(8):
        a(f"buffer_load_dwordx4 {ar(4*i,4)}, v14, {SBs}, s{t0} offen")
        if i < 7:
            a(f"s_add_u32 s{t0}, s{t0}, s{t2}")
    a(f"""
    v_lshrrev_b32 v{G}, 4, v{LN}
    v_and_b32 v{L15}, 15, v{LN}
    v_lshlrev_b32 v{L16}, 4, v{LN}
    v_lshrrev_b32 v16, 2, v{L15}
    v_lshlrev_b32 v16, 3, v16
    v_and_b32 v17, 3, v{L15}
    v_add_u32 v16, v16, v17
    v_lshlrev_b32 v16, 9, v16
    v_xor_b32 v17, v{G}, v{L15}
    v_lshl_add_u32 v7, v17, 4, v16
    v_add_u32 v{RA}, {STG}, v7
    v_xor_b32 v{RA+1}, 64, v{RA}
    v_xor_b32 v{RA+2}, 0x80, v{RA}
    v_xor_b32 v{RA+3}, 0xc0, v{RA}
    s_lshl_b32 s89, s{sRANK}, 6
    s_mul_i32 s{sOUT}, s{sH}, 28
    s_lshl2_add_u32 s{sOUT}, s{sJ}, s{sOUT}
    s_mul_i32 s{sOUT}, s{sOUT}, {14*FR}
    s_cmp_eq_u32 s{sW}, 3
    s_cselect_b32 s{sN}, 1, 2
    s_mov_b32 s{sSC}, {f32hex(C1)}
    s_mov_b32 s{sP}, 0
    s_mov_b32 s{sPEND}, 0
    s_waitcnt vmcnt(24)
    s_barrier
    """)
    for tl in range(4):
        for es in range(8):
            a(f"ds_read_b128 {vr(BR+32*tl+4*es,4)}, v{RA+(es&3)} offset:{(tl>>1)*16384+(tl&1)*2048+(es>>2)*256}")
    a(f"""
    s_lshl_b32 s{t0}, s{sW}, 14
    v_add_u32 v{RA}, s{t0}, v7
    v_xor_b32 v{RA+1}, 64, v{RA}
    v_xor_b32 v{RA+2}, 0x80, v{RA}
    v_xor_b32 v{RA+3}, 0xc0, v{RA}
    v_lshlrev_b32 v15, 7, v12
    v_and_b32 v16, 3, v13
    v_lshl_add_u32 v15, v16, 3, v15
    s_lshl_b32 s{t2}, s{sW}, 13
    s_add_u32 s{t2}, s{t2}, {STG}
    v_add_u32 v15, s{t2}, v15
    v_lshrrev_b32 v16, 2, v13
    v_lshlrev_b32 v16, 1, v16
    v_bfe_u32 v17, v12, 1, 1
    v_xor_b32 v16, v16, v17
    v_lshl_add_u32 v20, v16, 5, v15
    v_lshrrev_b32 v12, 2, v{L15}
    v_lshl_add_u32 v13, v{G}, 3, v12
    v_lshlrev_b32 v13, 7, v13
    v_and_b32 v14, 3, v{L15}
    v_lshl_add_u32 v13, v14, 3, v13
    v_add_u32 v13, {STG}, v13
    v_lshrrev_b32 v12, 1, v12
    v_and_b32 v14, 1, v{G}
    v_lshl_add_u32 v12, v14, 1, v12
    v_lshl_add_u32 v21, v12, 5, v13
    v_accvgpr_read_b32 v5, a254
    s_waitcnt lgkmcnt(0)
    s_barrier
    v_add_u32 v5, 1, v5
    """)
    ev(a, 2)
    a.label("P_blk")
    a(f"""
    s_lshl_b32 s{t3}, s{sK14}, 10
    s_add_u32 s{t3}, s{t3}, s{sOUT}
    s_add_u32 s{t0}, s{sN}, s{sP}
    s_cmp_lg_u32 s{t0}, 1
    s_cselect_b32 s{t0}, 1, s{sP}
    s_cmp_lg_u32 s{t0}, 0
    s_cbranch_scc1 P_nosw
    s_mov_b32 s{SA_}, s66
    s_mov_b32 s{SA_+1}, s67
    s_sub_u32 s{sKS}, s{sJ}, s{sW}
    s_add_u32 s{sKS}, s{sKS}, 3
    P_nosw:
    """)
    blk_addr()
    a("s_waitcnt vmcnt(4)")
    for es in range(8):
        for tt in range(2):
            a(f"ds_read_b128 {vr(AF+8*es+4*tt,4)}, v{RA+(es&3)} offset:{tt*2048+(es>>2)*256}")
    n = 0
    for es in range(8):
        a(f"s_waitcnt lgkmcnt({14-2*es})")
        for tt in range(2):
            for tl in range(4):
                d = ACC + 8 * tl + 4 * tt
                a(f"v_mfma_f32_16x16x32_bf16 {vr(d,4)}, {vr(AF+8*es+4*tt,4)}, {vr(BR+32*tl+4*es,4)}, {'0' if es == 0 else vr(d,4)}")
                if n < 32:
                    i = n >> 1
                    if n & 1 == 0:
                        a(f"buffer_load_dwordx4 v{24+(i>>2)*2+(i&1)}, {SAs}, s{t0} offen lds")
                    else:
                        a(f"s_add_u32 s{t0}, s{t0}, s{sI}")
                        a(f"s_add_u32 m0, m0, s{t1}")
                n += 1
    for e in range(4):
        a(f"v_xor_b32 v{RA+e}, 65536, v{RA+e}")
    a(f"""
    s_cmp_eq_u32 s{sPEND}, 0
    s_cbranch_scc1 P_nofl
    s_lshl2_add_u32 s{t0}, s{sW}, s89
    s_add_u32 s{t0}, s{t0}, {FL_OFF}
    v_mov_b32 v4, 0
    s_mov_b32 s{sPEND}, 0
    s_waitcnt vmcnt(16)
    s_mov_b64 exec, 1
    buffer_store_dword v5, v4, {WSs}, s{t0} offen sc1
    s_mov_b64 exec, -1
    P_nofl:
    s_movk_i32 s{t2}, {14*FR}
    s_nop 2
    """)
    for tl in range(4):
        d = ACC + 8 * tl
        for r in range(8):
            a(f"v_mul_f32 v{d+r}, s{sSC}, v{d+r}")
        o = AF + 4 * tl
        for q in range(4):
            a(f"v_cvt_pk_bf16_f32 v{o+q}, v{d+2*q}, v{d+2*q+1}")
        a(f"buffer_store_dwordx4 {vr(o,4)}, v{L16}, {WSs}, s{t3} offen sc1")
        a(f"s_add_u32 s{t3}, s{t3}, s{t2}")
    a(f"""
    s_sub_u32 s{sN}, s{sN}, 1
    s_cmp_lg_u32 s{sN}, 0
    s_cbranch_scc1 P_blk
    s_cmp_lg_u32 s{sP}, 0
    s_cbranch_scc1 P_done
    s_mov_b32 s{sP}, 1
    s_mov_b32 s{sPEND}, 1
    s_cmp_eq_u32 s{sW}, 0
    s_cselect_b32 s{sN}, 1, 2
    s_add_u32 s{sOUT}, s{sOUT}, {WB_OFF}
    s_mov_b32 s{sSC}, 1.0
    s_mov_b32 s{t2}, 0x05040100
    s_mov_b32 s{t3}, 0x07060302
    v_xor_b32 v22, 32, v20
    s_waitcnt vmcnt(20)
    """)
    ev(a, 3)
    for i in range(8):
        for q in range(4):
            a(f"v_accvgpr_read_b32 v{12+q}, a{4*i+q}")
        a(f"v_perm_b32 v16, v13, v12, s{t2}")
        a(f"v_perm_b32 v17, v15, v14, s{t2}")
        a(f"v_perm_b32 v18, v13, v12, s{t3}")
        a(f"v_perm_b32 v19, v15, v14, s{t3}")
        a(f"ds_write_b64 v20, v[16:17] offset:{i*1024}")
        a(f"ds_write_b64 v22, v[18:19] offset:{i*1024}")
        a("v_xor_b32 v20, 64, v20")
        a("v_xor_b32 v22, 64, v22")
    a(f"""
    v_xor_b32 v22, 32, v21
    v_xor_b32 v23, 64, v21
    v_xor_b32 v20, 0x60, v21
    s_waitcnt lgkmcnt(0)
    s_barrier
    """)
    rb = [21, 22, 23, 20]
    for tl in range(4):
        for es in range(8):
            for hh in range(2):
                a(f"ds_read_b64_tr_b16 {vr(BR+32*tl+4*es+2*hh,2)}, v{rb[tl]} offset:{es*4096+hh*512}")
    a("s_branch P_blk")
    a.label("P_done")
    a("s_add_u32 s89, s89, 16")


def gen_misc(a, sM):
    sW = S_WAVE
    t0, t1, t2, t3, sODD, sCC0, sCCL, sN, sXF = range(78, 87)
    LN, G, L15 = 1, 2, 3
    WL = 65536
    ev(a, 1)
    a(f"""
    v_and_b32 v{LN}, 63, v0
    v_lshrrev_b32 v{G}, 4, v{LN}
    v_and_b32 v{L15}, 15, v{LN}
    v_lshlrev_b32 v4, 4, v{LN}
    s_lshl2_add_u32 s{sXF}, s{sM}, s{sW}
    s_mul_i32 s{t0}, s{sXF}, {16*896}
    s_mul_i32 m0, s{sW}, {16*912}
    s_mov_b32 exec_hi, 0x00ffffff
    s_mov_b32 s{sN}, 16
    M_lx:
    buffer_load_dwordx4 v4, {XSs}, s{t0} offen lds
    s_add_u32 s{t0}, s{t0}, 896
    s_add_u32 m0, m0, 912
    s_sub_u32 s{sN}, s{sN}, 1
    s_cmp_lg_u32 s{sN}, 0
    s_cbranch_scc1 M_lx
    s_cmp_eq_u32 s{sW}, 0
    s_cselect_b32 s48, s74, s76
    s_cselect_b32 s49, s75, s77
    s_mov_b32 s50, 896
    s_mov_b32 s51, 0x20000
    s_cselect_b32 s{t0}, 0, 1024
    s_add_u32 m0, s{t0}, {WL}
    s_nop 0
    buffer_load_dwordx4 v4, s[48:51], 0 offen lds
    s_mov_b64 exec, -1
    v_mov_b32 v8, -1
    v_mov_b32 v9, -1
    v_mov_b32 v10, -1
    v_mov_b32 v11, -1
    """)
    a(f"""
    s_lshl_b32 s{t0}, s{sXF}, 10
    s_add_u32 s{t1}, s{t0}, {MEMS_OFF+MEMS_STEP}
    s_cmp_eq_u32 s{S_XCC}, 0
    s_cbranch_scc0 M_s1b
    M_s1:
    buffer_store_dwordx4 v[8:11], v4, {WSs}, s{t1} offen
    s_add_u32 s{t1}, s{t1}, {128*1024}
    s_cmp_lt_u32 s{t1}, {MEMR_OFF}
    s_cbranch_scc1 M_s1
    s_branch M_s1e
    M_s1b:
    buffer_store_dwordx4 v[8:11], v4, {WSs}, s{t1} offen sc1
    s_add_u32 s{t1}, s{t1}, {128*1024}
    s_cmp_lt_u32 s{t1}, {MEMR_OFF}
    s_cbranch_scc1 M_s1b
    M_s1e:
    s_add_u32 s{t1}, s{t0}, {MEMR_OFF+MEMS_STEP}
    M_s2:
    buffer_store_dwordx4 v[8:11], v4, {WSs}, s{t1} offen sc1
    s_add_u32 s{t1}, s{t1}, {128*1024}
    s_cmp_lt_u32 s{t1}, {SENT_END}
    s_cbranch_scc1 M_s2
    v_mov_b32 v12, 0
    v_lshlrev_b32 v13, 2, v{LN}
    s_lshl_b32 s{t2}, s{sXF}, 7
    s_add_u32 s{t2}, s{t2}, {PROG_OFF}
    s_mov_b32 exec_hi, 0
    buffer_store_dword v12, v13, {WSs}, s{t2} offen sc1
    s_mov_b64 exec, -1
    s_cmp_ge_u32 s{sM}, 7
    s_cbranch_scc1 P_nomem
    s_mov_b32 s52, s60
    s_mov_b32 s53, s61
    s_mov_b32 s54, 7168
    s_mov_b32 s55, 0x20000
    v_bfe_u32 v12, v{LN}, 1, 3
    v_mul_u32_u24 v12, 896, v12
    v_lshl_add_u32 v12, v{G}, 5, v12
    v_and_b32 v14, 1, v{LN}
    v_lshl_add_u32 v12, v14, 2, v12
    s_lshl_b32 s{t0}, s{sM}, 7
    s_lshl3_add_u32 s{t0}, s{sW}, s{t0}
    s_lshl_b32 s{t1}, s{sW}, 2
    v_add_u32 v14, s{t1}, v4
    buffer_load_dword v16, v12, s[52:55], s{t0} offen
    s_lshl_b32 s{t1}, s{sM}, 10
    s_add_u32 s{t1}, s{t1}, {MEMS_OFF}
    s_add_u32 s{t2}, s{t1}, {MEMR_OFF-MEMS_OFF}
    s_waitcnt vmcnt(0)
    buffer_store_dword v16, v14, {WSs}, s{t1} offen sc1
    buffer_store_dword v16, v14, {WSs}, s{t2} offen sc1
    P_nomem:
    """)
    ev(a, 2)
    a("s_waitcnt vmcnt(13)")
    ev(a, 3)
    a(f"""
    s_barrier
    s_and_b32 s{sODD}, s{sW}, 1
    s_mul_i32 s{t0}, s{sW}, 7
    s_add_u32 s{sCC0}, s{t0}, s{sODD}
    s_lshr_b32 s{sCC0}, s{sCC0}, 1
    s_add_u32 s{t1}, s{t0}, 6
    s_cmp_eq_u32 s{sODD}, 1
    s_cselect_b32 s{sCCL}, s{t0}, s{t1}
    s_lshr_b32 s{sCCL}, s{sCCL}, 1
    v_and_b32 v20, 1, v{G}
    v_lshrrev_b32 v21, 1, v{G}
    v_cmp_eq_u32 vcc, 1, v20
    v_add_u32 v22, s{sCC0}, v20
    s_add_u32 s{t0}, s{sCC0}, 2
    v_mov_b32 v23, s{t0}
    v_mov_b32 v24, s{sCCL}
    v_cndmask_b32 v23, v23, v24, vcc
    s_sub_u32 s{t0}, s{sODD}, 1
    s_not_b32 s{t1}, s{t0}
    v_mov_b32 v24, s{t0}
    v_cndmask_b32 v30, -1, v24, vcc
    v_mov_b32 v24, s{t1}
    v_cndmask_b32 v31, -1, v24, vcc
    v_mov_b32 v28, -1
    v_mov_b32 v29, -1
    v_bfe_u32 v25, v{L15}, 1, 1
    v_lshlrev_b32 v25, 4, v25
    v_lshrrev_b32 v26, 2, v{L15}
    v_lshl_add_u32 v25, v26, 2, v25
    v_and_b32 v26, 1, v{L15}
    v_lshl_add_u32 v25, v26, 1, v25
    v_mul_u32_u24 v25, 912, v25
    v_lshl_add_u32 v25, v21, 4, v25
    v_lshl_add_u32 v6, v22, 6, v25
    v_lshl_add_u32 v7, v23, 6, v25
    s_mul_i32 s{t0}, s{sM}, {2*XK_STEP}
    s_lshl_b32 s{t1}, s{sW}, 13
    s_add_u32 s{t0}, s{t0}, s{t1}
    s_add_u32 s{t0}, s{t0}, {XK_OFF}
    s_mov_b32 s{t1}, 4096
    s_mov_b32 s{sN}, 4
    M_xk:
    """)
    base = 32
    for t in range(2):
        for b in range(2):
            o4 = (t * 912 + b * 32) // 4
            a(f"ds_read2_b32 {vr(base+8*t+4*b,2)}, v6 offset0:{o4} offset1:{o4+2}")
            a(f"ds_read2_b32 {vr(base+8*t+4*b+2,2)}, v6 offset0:{o4+1} offset1:{o4+3}")
    a(f"v_add_u32 v6, {32*912}, v6")
    a("v_swap_b32 v6, v7")
    a("s_waitcnt lgkmcnt(0)")
    for r in range(16):
        a(f"v_and_b32 v{base+r}, v{base+r}, v{28+(r&1)}")
    a("v_swap_b32 v28, v30")
    a("v_swap_b32 v29, v31")
    a(f"s_cmp_eq_u32 s{S_XCC}, 0\ns_cbranch_scc0 M_xkb")
    for f in range(4):
        a(f"buffer_store_dwordx4 {vr(base+4*f,4)}, v4, {WSs}, s{t0} offen offset:{f*1024}")
    a("s_branch M_xke\nM_xkb:")
    for f in range(4):
        a(f"buffer_store_dwordx4 {vr(base+4*f,4)}, v4, {WSs}, s{t0} offen offset:{f*1024} sc1")
    a.label("M_xke")
    a(f"""
    s_add_u32 s{t0}, s{t0}, s{t1}
    s_sub_u32 s{t1}, {XK_STEP}, s{t1}
    s_sub_u32 s{sN}, s{sN}, 1
    s_cmp_lg_u32 s{sN}, 0
    s_cbranch_scc1 M_xk
    s_waitcnt vmcnt(0)
    s_barrier
    s_cmp_lg_u32 s{sW}, 0
    s_cbranch_scc1 M_ka
    v_accvgpr_read_b32 v5, a254
    s_lshl_b32 s{t0}, s{sM}, 6
    s_add_u32 s{t0}, s{t0}, {FL_OFF + 224*64 + 20}
    v_mov_b32 v2, 0
    v_add_u32 v5, 1, v5
    s_mov_b64 exec, 1
    buffer_store_dword v5, v2, {WSs}, s{t0} offen sc1
    s_mov_b64 exec, -1
    M_ka:
    v_lshrrev_b32 v{G}, 4, v{LN}
    s_lshl_b32 s{t0}, s{sW}, 4
    v_add_u32 v6, s{t0}, v{L15}
    v_mul_u32_u24 v6, 912, v6
    v_lshl_add_u32 v6, v{G}, 4, v6
    v_lshlrev_b32 v7, 4, v{G}
    v_add_u32 v7, {WL}, v7
    s_mul_i32 s{t0}, s{sXF}, {14*FR}
    s_add_u32 s{t0}, s{t0}, {XF_OFF}
    v_mov_b32 v8, 0
    v_mov_b32 v9, 0
    s_mov_b32 s{sN}, 14
    M_xf:
    ds_read_b128 v[16:19], v6
    ds_read_b128 v[20:23], v7
    ds_read_b128 v[24:27], v7 offset:1024
    v_add_u32 v6, 64, v6
    v_add_u32 v7, 64, v7
    s_waitcnt lgkmcnt(0)
    buffer_store_dwordx4 v[16:19], v4, {WSs}, s{t0} offen sc1
    """)
    for q in range(4):
        a(f"v_dot2_f32_bf16 v8, v{16+q}, v{20+q}, v8")
        a(f"v_dot2_f32_bf16 v9, v{16+q}, v{24+q}, v9")
    a(f"""
    s_add_u32 s{t0}, s{t0}, 1024
    s_sub_u32 s{sN}, s{sN}, 1
    s_cmp_lg_u32 s{sN}, 0
    s_cbranch_scc1 M_xf
    v_mov_b32 v10, v8
    v_mov_b32 v11, v9
    v_permlane16_swap_b32 v8, v10
    v_permlane16_swap_b32 v9, v11
    v_add_f32 v8, v8, v10
    v_add_f32 v9, v9, v11
    v_mov_b32 v10, v8
    v_mov_b32 v11, v9
    v_permlane32_swap_b32 v8, v10
    v_permlane32_swap_b32 v9, v11
    v_add_f32 v8, v8, v10
    v_add_f32 v9, v9, v11
    v_cvt_pk_bf16_f32 v9, v9, v9
    v_and_b32 v9, 0xffff0000, v9
    v_mul_f32 v9, {f32hex(-LOG2E)}, v9
    v_exp_f32 v9, v9
    v_add_f32 v9, 1.0, v9
    v_rcp_f32 v9, v9
    v_cvt_pk_bf16_f32 v9, v9, v9
    v_and_b32 v9, 0xffff0000, v9
    s_lshl_b32 s{t2}, s{sXF}, 6
    s_add_u32 s{t2}, s{t2}, {RG_OFF}
    s_mov_b64 exec, 0xffff
    buffer_store_dword v8, v13, {WSs}, s{t2} offen sc1
    s_add_u32 s{t2}, s{t2}, 8192
    buffer_store_dword v9, v13, {WSs}, s{t2} offen sc1
    s_mov_b64 exec, -1
    s_lshl_b32 s89, s{sM}, 6
    s_add_u32 s89, s89, {224*64+16}
    """)
```
